```python
import torch

def _softmax(x, axis=-1):
    return torch.softmax(x, dim=axis)
def _gelu(x):
    return torch.nn.functional.gelu(x, approximate="tanh")
def _silu(x):
    return torch.nn.functional.silu(x)
def _sigmoid(x):
    return torch.sigmoid(x)
def _layernorm(x, axis=-1, eps=1e-5):
    m = x.mean(dim=axis, keepdim=True)
    v = x.var(dim=axis, keepdim=True, unbiased=False)
    return (x - m) / torch.sqrt(v + eps)
def _scatter_add(tgt, idx, src, axis=0):
    return tgt.clone().index_add_(axis, idx, src)
def _segment_sum(src, seg, n):
    out = torch.zeros((n,) + src.shape[1:], dtype=src.dtype)
    return out.index_add_(0, seg, src)
def _pad(x, pw):
    flat = tuple(v for pair in reversed(pw) for v in pair)
    return torch.nn.functional.pad(x, flat)

kernel_name = 'gated_mix__sliding_block_cached__dense_activation_relu__decode'

def setup_inputs():

    _w = (lambda a: (lambda t: t.to(torch.bfloat16) if t.is_floating_point() else t)(torch.as_tensor(a)))
    def _A_setup():
        B, Sq, D = 2, 1, 576
        Hq, Hkv, Sk, Dh = 32, 16, 8192, 128
        assert Hq % Hkv == 0, (Hq, Hkv)
        return {
            "x": _w((lambda *s: torch.randn(*s, dtype=torch.bfloat16) * 0.05)(B, Sq, D)),
            "k_cache": _w((lambda *s: torch.randn(*s, dtype=torch.bfloat16) * 6.4)(B, Hkv, Sk, Dh)),
            "v_cache": _w((lambda *s: torch.randn(*s, dtype=torch.bfloat16) * 1.6)(B, Hkv, Sk, Dh)),
            "wq": _w((lambda *s: torch.randn(*s, dtype=torch.bfloat16) * 6.4)(D, Hq * Dh) * (D ** -0.5)),
            "wo": _w((lambda *s: torch.randn(*s, dtype=torch.bfloat16) * 1.6)(Hq * Dh, D) * ((Hq * Dh) ** -0.5)),
        }
    _A_in = _A_setup()

    def _B_setup():
        B, S, D, Dff = 2, 1, 576, 4608
        return {
            "x": _w((lambda *s: torch.randn(*s, dtype=torch.bfloat16) * 0.05)(B, S, D)),
            "w1": _w((lambda *s: torch.randn(*s, dtype=torch.bfloat16) * 0.05)(D, Dff)),
            "w2": _w((lambda *s: torch.randn(*s, dtype=torch.bfloat16) * 0.05)(Dff, D)),
        }
    _B_in = _B_setup()

    return {
        "A_x": _A_in["x"],
        "A_k_cache": _A_in["k_cache"],
        "A_v_cache": _A_in["v_cache"],
        "A_wq": _A_in["wq"],
        "A_wo": _A_in["wo"],
        "B_x": _B_in["x"],
        "B_w1": _B_in["w1"],
        "B_w2": _B_in["w2"],
        "gate_w": _w((lambda *s: torch.randn(*s, dtype=torch.bfloat16) * 0.05)(576) * 16.0),
    }

def reference(A_x, A_k_cache, A_v_cache, A_wq, A_wo, B_x, B_w1, B_w2, gate_w):
    def _A_ref(x, k_cache, v_cache, wq, wo):
        B, Sq, D = x.shape
        Hq, Dh = 32, 128
        Hkv, Sk = k_cache.shape[1], k_cache.shape[2]
        W = min(4096, max(256, Sk // 4))
        rep = Hq // Hkv
        q = (lambda x, *d: x.permute(*d))((x @ wq).reshape(B, Sq, Hq, Dh), 0, 2, 1, 3)
        k = (lambda x, n, axis: torch.repeat_interleave(x, n, dim=axis))(k_cache[:, :, Sk - W:, :], rep, axis=1)
        v = (lambda x, n, axis: torch.repeat_interleave(x, n, dim=axis))(v_cache[:, :, Sk - W:, :], rep, axis=1)
        scores = torch.einsum("bhqd,bhkd->bhqk", q, k) * (Dh ** -0.5)
        p = _softmax(scores, axis=-1)
        o = torch.einsum("bhqk,bhkd->bhqd", p, v)
        return (lambda x, *d: x.permute(*d))(o, 0, 2, 1, 3).reshape(B, Sq, Hq * Dh) @ wo

    def _B_ref(x, w1, w2):
        h = torch.einsum("bsd,df->bsf", x, w1)
        zero = torch.zeros_like(h)
        h = torch.maximum(h, zero)
        return torch.einsum("bsf,fd->bsd", h, w2)

    x = A_x
    g = _sigmoid((x * gate_w).sum(-1, keepdims=True))
    a = _A_ref(x, A_k_cache, A_v_cache, A_wq, A_wo)
    b = _B_ref(x, B_w1, B_w2)
    return g * a + (1 - g) * b
```

```python
import sys
KNAME='gated_mix__sliding_block_cached__dense_activation_relu__decode_kernel'
opts=dict(a.split('=') for a in sys.argv[2:])
STAMPS=int(opts.get('stamps','0'))
out=sys.argv[1]

EPOCH=0x0
QP=0x1000
OP=QP+0x40000
HP=OP+0x80000
FP=HP+8*2*4608*4
WS_END=FP+256*4608
WS_SIZE=0x10000000 if STAMPS else WS_END
STAMP_OFF=0x8000000
NST=16
QL=0x000; PL=0x200; ML=0x600; QF=0x640; PF=0x644; OC=0x648; FC=0x64c; GL=0x680; FACC=0x6C0; OACC=0x800; OL=0xC00; SL=0x1000
LDS=0x1100
SPIN=1<<17
SC=0.08838834764831845*1.4426950408889634
import struct
def f2u(f): return struct.unpack('<I',struct.pack('<f',f))[0]

L=[]
def A(s): L.append(s)
lab=[0]
def newlab(p):
    lab[0]+=1; return f'L_{p}{lab[0]}'

def srd(d,p,n):
    A(f's_mov_b32 s{d}, s{p}'); A(f's_mov_b32 s{d+1}, s{p+1}'); A(f's_mov_b32 s{d+2}, {hex(n)}'); A(f's_mov_b32 s{d+3}, 0x20000')
stamp_regs={}
def stamp(k, role):
    if not STAMPS: return
    lst=stamp_regs.setdefault(role,[])
    i=len(lst); lst.append(k)
    assert i<8
    A(f's_memrealtime s[{84+2*i}:{85+2*i}]')
def flush_stamps(role, cond=None):
    if not STAMPS: return
    lst=stamp_regs.get(role,[])
    skip=newlab('nost')
    if cond is not None:
        A(f's_cmp_lg_u32 s3, {cond}'); A(f's_cbranch_scc1 {skip}')
    A('s_waitcnt lgkmcnt(0)')
    A(f's_lshl_b32 s8, s2, 7'); A(f's_add_u32 s8, s8, {hex(STAMP_OFF)}')
    A('v_mov_b32 v3, 0')
    for i,k in enumerate(lst):
        A(f'v_mov_b32 v4, s{84+2*i}'); A(f'v_mov_b32 v5, s{85+2*i}')
        A(f'buffer_store_dwordx2 v[4:5], v3, s[52:55], s8 offen offset:{k*8}')
        A('s_waitcnt vmcnt(0)')
    A(f'{skip}:')
def kernargs_wait():
    A('s_waitcnt lgkmcnt(0)')
    A(f's_load_dword s40, s[38:39], {EPOCH}')
    srd(52,38,WS_SIZE)
    A('s_mov_b32 s41, 0xfff')
def tag_ready(vt):
    A('s_waitcnt lgkmcnt(0)')
    A('s_add_u32 s42, s40, 1')
    A('s_and_b32 s40, s42, s41')
    A(f'v_mov_b32 v{vt}, s40')
def selectors(base, tmp):
    A(f'v_mov_b32 v{tmp}, 0x0c0c0100'); A(f'v_mov_b32 v{tmp+1}, 0x01000c0c')
    A('s_mov_b32 s60, 0xaaaaaaaa'); A('s_mov_b32 s61, 0xaaaaaaaa')
    A(f'v_cndmask_b32 v{tmp}, v{tmp}, v{tmp+1}, s[60:61]')
    A(f'v_mov_b32 v{tmp+1}, 0x0c0c0302'); A(f'v_mov_b32 v{tmp+2}, 0x03020c0c')
    A(f'v_cndmask_b32 v{tmp+1}, v{tmp+1}, v{tmp+2}, s[60:61]')
    A(f'v_mov_b32 v{tmp+2}, 0x0c0c0c0c')
    for d in range(4):
        m=(0x03030303<<(2*d))&0xffffffff
        A(f's_mov_b32 s60, {hex(m)}'); A(f's_mov_b32 s61, {hex(m)}')
        A(f'v_cndmask_b32 v{base+d}, v{tmp+2}, v{tmp}, s[60:61]')
        A(f'v_cndmask_b32 v{base+4+d}, v{tmp+2}, v{tmp+1}, s[60:61]')
def buildA(dst, src, odd, sel):
    for d in range(4):
        A(f'v_perm_b32 v{dst+d}, v{src}, v{src}, v{sel+(4 if odd else 0)+d}')
def lds_spin(addr, val, vt, name):
    l=newlab(name); d=newlab(name+'d')
    A(f'v_mov_b32 v{vt}, {addr}')
    A(f's_mov_b32 s62, {SPIN}')
    A(f'{l}:')
    A(f'ds_read_b32 v{vt+1}, v{vt}')
    A('s_sub_u32 s62, s62, 1')
    A('s_waitcnt lgkmcnt(0)')
    A(f'v_readfirstlane_b32 s63, v{vt+1}')
    A(f's_cbranch_scc1 {d}')
    A(f's_cmp_ge_u32 s63, {val}')
    A(f's_cbranch_scc1 {d}')
    A('s_sleep 1')
    A(f's_branch {l}')
    A(f'{d}:')
DPP=' row_mask:0xf bank_mask:0xf'
def allreduce(op, regs, steps, tmp=None):
    n=len(regs)
    pad=max(0,2-(n-1))
    ctl={'x1':'quad_perm:[1,0,3,2]','x2':'quad_perm:[2,3,0,1]','hm':'row_half_mirror','m':'row_mirror','ror4':'row_ror:4','ror8':'row_ror:8'}
    for s in steps:
        if s in ctl:
            if pad: A(f's_nop {pad-1}')
            for r in regs: A(f'{op}_dpp v{r}, v{r}, v{r} {ctl[s]}{DPP}')
        else:
            ins='v_permlane16_swap_b32' if s=='r16' else 'v_permlane32_swap_b32'
            for i,r in enumerate(regs): A(f'v_mov_b32 v{tmp+i}, v{r}')
            A('s_nop 1')
            for i,r in enumerate(regs): A(f'{ins} v{r}, v{tmp+i}')
            A('s_nop 0')
            for i,r in enumerate(regs): A(f'{op} v{r}, v{r}, v{tmp+i}')

A(f'; @launch grid=(256,1,1) block=(1024,1,1) lds={LDS}')
A('.amdgcn_target "amdgcn-amd-amdhsa--gfx950"')
A('.text')
A(f'.globl {KNAME}')
A('.p2align 8')
A(f'.type {KNAME},@function')
A(f'{KNAME}:')
if STAMPS: A('s_memrealtime s[82:83]')
A('s_cmp_ge_u32 s2, 256')
A('s_cbranch_scc1 L_end')
A('s_load_dwordx16 s[16:31], s[0:1], 0')
A('s_load_dwordx8 s[32:39], s[0:1], 64')
A('v_lshrrev_b32 v1, 6, v0')
A('v_and_b32 v0, 63, v0')
A('s_and_b32 s4, s2, 7')
A('v_readfirstlane_b32 s3, v1')
A('s_lshl_b32 s4, s4, 1'); A('s_bfe_u32 s5, s2, 0x10003'); A('s_add_u32 s4, s4, s5')
A('s_bfe_u32 s5, s2, 0x10004')
A('s_lshr_b32 s6, s2, 5')
A('s_lshr_b32 s7, s2, 4')
A('v_and_b32 v1, 15, v0')
A('v_lshrrev_b32 v2, 4, v0')
A('s_cmp_eq_u32 s3, 12'); A('s_cbranch_scc1 L_Q')
A('s_cmp_lt_u32 s3, 4');  A('s_cbranch_scc1 L_K')
A('s_cmp_lt_u32 s3, 8');  A('s_cbranch_scc1 L_V')
A('s_cmp_eq_u32 s3, 13'); A('s_cbranch_scc1 L_H')
A('s_cmp_eq_u32 s3, 14'); A('s_cbranch_scc1 L_H')
A('s_branch L_W')

def stage1(role):
    isq = role=='Q'
    pitch = 8192 if isq else 9216
    A('.p2align 6')
    A(f'L_{role}:')
    A('s_setprio 3')
    if isq:
        A('s_and_b32 s9, s7, 1')
        A('s_lshr_b32 s10, s7, 1')
    else:
        A('s_mov_b32 s11, s2')
        A('s_cmp_eq_u32 s3, 13'); A('s_cbranch_scc1 L_Hgo')
        A('s_add_u32 s11, s2, 32')
        A('s_cmp_ge_u32 s2, 224'); A('s_cbranch_scc1 L_Hgo')
        A('s_endpgm')
        A('L_Hgo:')
        A('s_lshr_b32 s9, s11, 3')
        A('s_and_b32 s10, s11, 7')
    A(f'v_mul_u32_u24 v3, {18*pitch}, v2')
    A('v_lshl_add_u32 v3, v1, 4, v3')
    A('v_bfe_u32 v4, v0, 3, 1'); A('v_mul_u32_u24 v4, 1152, v4')
    A('v_mul_u32_u24 v5, 36, v2'); A('v_add_u32 v4, v4, v5')
    A('s_mul_i32 s8, s10, 144')
    A(f's_mul_i32 s12, s10, {72*pitch}')
    if isq:
        A('s_lshl_b32 s13, s4, 9'); A('s_add_u32 s12, s12, s13'); A('s_lshl_b32 s13, s9, 8'); A('s_add_u32 s12, s12, s13')
    else:
        A('s_lshl_b32 s13, s9, 8'); A('s_add_u32 s12, s12, s13')
    kernargs_wait()
    srd(44,16,2304)
    if isq: srd(48,22,576*8192)
    else: srd(48,28,576*9216)
    if not isq: A('s_barrier')
    A('buffer_load_dwordx4 v[16:19], v4, s[44:47], s8 offen')
    A('buffer_load_dwordx4 v[20:23], v4, s[44:47], s8 offen offset:16')
    A('buffer_load_dword v24, v4, s[44:47], s8 offen offset:32')
    for t in range(18):
        A(f'buffer_load_dwordx4 v[{32+4*t}:{35+4*t}], v3, s[48:51], s12 offen nt')
        if t<17: A(f's_add_u32 s12, s12, {pitch}')
    if isq: A('s_barrier')
    A('s_barrier')
    selectors(8, 104)
    if isq:
        A('v_lshrrev_b32 v5, 1, v2'); A('v_lshlrev_b32 v5, 13, v5')
        A('s_lshl_b32 s13, s4, 14'); A('s_lshl_b32 s14, s10, 10'); A('s_add_u32 s13, s13, s14'); A('s_lshl_b32 s14, s9, 9'); A('s_add_u32 s13, s13, s14'); A(f's_add_u32 s13, s13, {hex(QP)}')
    else:
        A('v_lshrrev_b32 v5, 1, v2'); A(f'v_mul_u32_u24 v5, {4608*4}, v5')
        A(f's_mul_i32 s13, s10, {2*4608*4}'); A('s_lshl_b32 s14, s9, 9'); A('s_add_u32 s13, s13, s14'); A(f's_add_u32 s13, s13, {hex(HP)}')
    A('v_lshl_add_u32 v5, v1, 5, v5'); A('v_and_b32 v6, 1, v2'); A('v_lshl_add_u32 v5, v6, 4, v5')
    tag_ready(7)
    A('s_waitcnt vmcnt(18)')
    for t in range(18):
        a=104+4*(t&1)
        buildA(a, 16+t//2, t&1, 8)
        A(f's_waitcnt vmcnt({17-t})')
        A('s_nop 0')
        c='0' if t==0 else 'v[112:115]'
        A(f'v_mfma_f32_16x16x32_bf16 v[112:115], v[{a}:{a+3}], v[{32+4*t}:{35+4*t}], {c}')
    A('s_nop 7')
    for r in range(4): A(f'v_bfi_b32 v{112+r}, s41, v7, v{112+r}')
    A('buffer_store_dwordx4 v[112:115], v5, s[52:55], s13 offen sc1')
    stamp(1 if isq else 12, role)
    if isq:
        A('v_lshlrev_b32 v5, 4, v0')
        A('s_lshl_b32 s13, s4, 1'); A('s_add_u32 s13, s13, s5'); A('s_lshl_b32 s13, s13, 13'); A(f's_add_u32 s13, s13, {hex(QP)}'); A('s_add_u32 s14, s13, 4096')
        A(f's_mov_b32 s62, {SPIN}')
        A('L_qpoll:')
        for r in range(8):
            A(f'buffer_load_dwordx4 v[{32+4*r}:{35+4*r}], v5, s[52:55], s{13 if r<4 else 14} offen offset:{(r&3)*1024} sc1')
        A('s_sub_u32 s62, s62, 1')
        A('s_cbranch_scc1 L_qgo')
        A('v_mov_b32 v6, 0')
        for r in range(8):
            A(f's_waitcnt vmcnt({7-r})')
            for k in range(4): A(f'v_xor_b32 v{32+4*r+k}, v7, v{32+4*r+k}')
            A(f'v_or3_b32 v6, v6, v{32+4*r}, v{33+4*r}'); A(f'v_or3_b32 v6, v6, v{34+4*r}, v{35+4*r}')
        A('v_and_b32 v6, s41, v6')
        A('v_cmp_ne_u32 vcc, 0, v6')
        A('s_cbranch_vccnz L_qpoll')
        A('L_qgo:')
        A('s_waitcnt vmcnt(0)')
        for r in (1,3,5,7):
            for k in (0,2): A(f'v_pk_add_f32 v[{32+4*(r-1)+k}:{33+4*(r-1)+k}], v[{32+4*(r-1)+k}:{33+4*(r-1)+k}], v[{32+4*r+k}:{33+4*r+k}]')
        for r in (2,6):
            for k in (0,2): A(f'v_pk_add_f32 v[{32+4*(r-2)+k}:{33+4*(r-2)+k}], v[{32+4*(r-2)+k}:{33+4*(r-2)+k}], v[{32+4*r+k}:{33+4*r+k}]')
        for k in (0,2): A(f'v_pk_add_f32 v[{32+k}:{33+k}], v[{32+k}:{33+k}], v[{48+k}:{49+k}]')
        A('v_cvt_pk_bf16_f32 v32, v32, v33'); A('v_cvt_pk_bf16_f32 v33, v34, v35')
        A('v_lshlrev_b32 v5, 3, v0')
        A(f'ds_write_b64 v5, v[32:33] offset:{QL}')
        A('v_mov_b32 v6, 1'); A(f'v_mov_b32 v5, {QF}')
        A('s_waitcnt lgkmcnt(0)')
        A('ds_write_b32 v5, v6')
        stamp(2, role)
        flush_stamps(role)
    else:
        flush_stamps(role, 13)
    A('s_endpgm')
stage1('Q'); stage1('H')

def kv_tail(role):
    A('s_lshl_b32 s8, s4, 15'); A('s_lshl_b32 s9, s7, 7'); A('s_add_u32 s8, s8, s9'); A('s_lshl_b32 s9, s3, 12'); A('s_add_u32 s8, s8, s9'); A(f's_add_u32 s8, s8, {hex(OP)}')
    A('s_add_u32 s44, s38, s8'); A('s_addc_u32 s45, s39, 0')
    A('s_lshl_b32 s8, s3, 7'); A(f's_add_u32 s8, s8, {OL}'); A('s_lshl_b32 s9, s3, 5'); A(f's_add_u32 s9, s9, {SL-128}')
    A('v_mov_b32 v10, s8'); A('v_mov_b32 v11, s9')
    A('s_mov_b32 s60, 0'); A('s_mov_b32 s61, -1')
    A('v_cndmask_b32 v10, v10, v11, s[60:61]')
    A('v_lshl_add_u32 v10, v0, 2, v10')
    A('v_mov_b32 v12, v7')
    lp=newlab('opoll'); go=newlab('ogo')
    A(f's_mov_b32 s62, {SPIN}')
    A(f'{lp}:')
    A('s_load_dwordx16 s[64:79], s[44:45], 0 glc')
    A('s_load_dwordx16 s[16:31], s[44:45], 2048 glc')
    A('s_load_dwordx4 s[56:59], s[44:45], 64 glc')
    A('s_load_dwordx4 s[48:51], s[44:45], 2112 glc')
    A('s_sub_u32 s62, s62, 1')
    A(f's_cbranch_scc1 {go}')
    A('s_waitcnt lgkmcnt(0)')
    A('s_xor_b32 s8, s79, s40'); A('s_xor_b32 s9, s31, s40'); A('s_or_b32 s8, s8, s9')
    A('s_xor_b32 s9, s59, s40'); A('s_or_b32 s8, s8, s9'); A('s_xor_b32 s9, s51, s40'); A('s_or_b32 s8, s8, s9')
    A('s_and_b32 s8, s8, s41')
    A(f's_cbranch_scc1 {lp}')
    for i in range(16): A(f'v_writelane_b32 v12, s{64+i}, {i}')
    for i in range(16): A(f'v_writelane_b32 v12, s{16+i}, {16+i}')
    for i in range(4): A(f'v_writelane_b32 v12, s{56+i}, {32+i}')
    for i in range(4): A(f'v_writelane_b32 v12, s{48+i}, {36+i}')
    A('v_xor_b32 v13, v7, v12')
    A('v_and_b32 v14, s41, v13')
    A('v_cmp_ne_u32 vcc, 0, v14')
    A(f's_cbranch_vccnz {lp}')
    A(f'{go}:')
    A('s_waitcnt lgkmcnt(0)')
    A('s_mov_b32 exec_lo, -1'); A('s_mov_b32 exec_hi, 0xff')
    A('ds_write_b32 v10, v13')
    A('s_mov_b64 exec, -1')
    if role=='K': stamp(7, role)
    A('s_waitcnt lgkmcnt(0)')
    A('s_barrier')
    fin=newlab('fin')
    A('s_cmp_ge_u32 s2, 72'); A(f's_cbranch_scc1 {fin}')
    A('v_lshrrev_b32 v5, 2, v0'); A('v_mul_u32_u24 v5, 4608, v5'); A('v_and_b32 v6, 3, v0'); A('v_lshl_add_u32 v5, v6, 4, v5')
    A(f's_mul_i32 s8, s3, {32*4608}'); A('s_lshl_b32 s9, s2, 6'); A('s_add_u32 s8, s8, s9'); A(f's_add_u32 s8, s8, {hex(FP)}'); A(f's_add_u32 s9, s8, {16*4608}')
    A('v_bfe_u32 v8, v0, 2, 2'); A('v_lshl_add_u32 v8, v6, 2, v8'); A('v_lshlrev_b32 v8, 2, v8')
    lp=newlab('fpoll'); go=newlab('fgo')
    A(f's_mov_b32 s62, {SPIN}')
    A(f'{lp}:')
    A('buffer_load_dwordx4 v[16:19], v5, s[52:55], s8 offen sc1')
    A('buffer_load_dwordx4 v[20:23], v5, s[52:55], s9 offen sc1')
    A('s_sub_u32 s62, s62, 1')
    A(f's_cbranch_scc1 {go}')
    A('s_waitcnt vmcnt(0)')
    for k in range(8): A(f'v_xor_b32 v{16+k}, v7, v{16+k}')
    A('v_or3_b32 v9, v16, v17, v18'); A('v_or3_b32 v9, v9, v19, v20'); A('v_or3_b32 v9, v9, v21, v22'); A('v_or_b32 v9, v9, v23')
    A('v_and_b32 v9, s41, v9')
    A('v_cmp_ne_u32 vcc, 0, v9')
    A(f's_cbranch_vccnz {lp}')
    A(f'{go}:')
    A('s_waitcnt vmcnt(0)')
    if role=='K': stamp(10, role)
    for k in range(4): A(f'v_add_f32 v{16+k}, v{16+k}, v{20+k}')
    allreduce('v_add_f32',[16,17,18,19],['ror4','ror8'])
    A('s_mov_b32 s60, 0x00f000f0'); A('s_mov_b32 s61, 0x00f000f0'); A('v_cndmask_b32 v16, v16, v17, s[60:61]')
    A('s_mov_b32 s60, 0x0f000f00'); A('s_mov_b32 s61, 0x0f000f00'); A('v_cndmask_b32 v16, v16, v18, s[60:61]')
    A('s_mov_b32 s60, 0xf000f000'); A('s_mov_b32 s61, 0xf000f000'); A('v_cndmask_b32 v16, v16, v19, s[60:61]')
    A(f'ds_add_f32 v8, v16 offset:{FACC}')
    A('v_mov_b32 v9, 1'); A(f'v_mov_b32 v10, {FC}')
    A('s_mov_b64 exec, 1')
    A('ds_add_rtn_u32 v9, v10, v9')
    A('s_mov_b64 exec, -1')
    A('s_waitcnt lgkmcnt(0)')
    A('v_readfirstlane_b32 s8, v9')
    A('s_cmp_lg_u32 s8, 7'); A(f's_cbranch_scc1 {fin}')
    A('v_lshlrev_b32 v8, 3, v0')
    A('s_mov_b64 exec, 0xff')
    A(f'ds_read_b64 v[16:17], v8 offset:{FACC}')
    srd(44,34,2304)
    A('s_lshl_b32 s8, s2, 5')
    A('v_lshlrev_b32 v8, 2, v0')
    A('s_waitcnt lgkmcnt(0)')
    A('v_cvt_pk_bf16_f32 v16, v16, v17')
    A('buffer_store_dword v16, v8, s[44:47], s8 offen')
    if STAMPS:
        A('s_memrealtime s[80:81]'); A('s_waitcnt lgkmcnt(0)'); A('v_mov_b32 v20, s80'); A('v_mov_b32 v21, s81'); A('v_mov_b32 v22, 0')
        A(f's_lshl_b32 s8, s2, 7'); A(f's_add_u32 s8, s8, {hex(STAMP_OFF)}')
        A('buffer_store_dwordx2 v[20:21], v22, s[52:55], s8 offen offset:88')
    A('s_mov_b64 exec, 1')
    A('s_cmp_lg_u32 s2, 0'); A(f's_cbranch_scc1 {fin}')
    A('v_mov_b32 v9, s42'); A('v_mov_b32 v8, 0')
    A(f'buffer_store_dword v9, v8, s[52:55], 0 offen offset:{EPOCH} sc1')
    A(f'{fin}:')
    A('s_mov_b64 exec, -1')

def kvbase():
    A('s_lshl_b32 s12, s5, 4'); A('s_add_u32 s12, s12, s4'); A('s_lshl_b32 s12, s12, 21')
    A('s_lshl_b32 s13, s6, 16'); A('s_add_u32 s12, s12, s13'); A('s_add_u32 s12, s12, 0x180000')
    A('s_lshr_b32 s13, s2, 3'); A('s_add_u32 s13, s13, s2'); A('s_add_u32 s13, s13, s15')
    for t in range(4):
        A(f's_add_u32 s14, s13, {4*t}'); A('s_and_b32 s14, s14, 15'); A('s_lshl_b32 s14, s14, 12'); A(f's_add_u32 s{8+t}, s12, s14')

A('.p2align 6')
A('L_K:')
A('s_setprio 2')
A('s_mov_b32 s15, s3')
if STAMPS:
    stamp_regs['K']=[0]; A('s_mov_b64 s[84:85], s[82:83]') if False else None
A('v_mov_b32 v4, 0'); A('s_lshl_b32 s8, s3, 8'); A('v_lshl_add_u32 v5, v0, 2, s8')
A(f'ds_write_b32 v5, v4 offset:{OACC}')
A('v_lshlrev_b32 v5, 2, v0')
A(f'ds_write_b32 v5, v4 offset:{ML}')
A('v_lshlrev_b32 v3, 8, v1'); A('v_lshl_add_u32 v3, v2, 4, v3')
kvbase()
kernargs_wait()
srd(44,18,0x4000000)
A('s_barrier'); A('s_barrier')
for t in range(4):
    for ks in range(4):
        r=16+16*t+4*ks
        A(f'buffer_load_dwordx4 v[{r}:{r+3}], v3, s[44:47], s{8+t} offen offset:{ks*64} nt')
tag_ready(7)
if STAMPS: A('s_mov_b64 s[84:85], s[82:83]')
A('v_and_b32 v5, 1, v0'); A('v_lshlrev_b32 v5, 8, v5'); A('v_lshl_add_u32 v5, v2, 4, v5')
A('v_and_b32 v6, 3, v0'); A('v_lshlrev_b32 v6, 5, v6'); A('v_lshrrev_b32 v8, 2, v0'); A('v_lshl_add_u32 v6, v8, 1, v6'); A('s_lshl_b32 s8, s3, 8'); A('v_add_u32 v6, s8, v6')
A(f's_mov_b32 s43, {hex(f2u(SC))}')
if STAMPS:
    A('s_waitcnt vmcnt(0)'); stamp(3,'K')
lds_spin(QF,1,8,'qf')
for ks in range(4): A(f'ds_read_b128 v[{80+4*ks}:{83+4*ks}], v5 offset:{QL+ks*64}')
A('s_waitcnt vmcnt(0) lgkmcnt(0)')
for ks in range(4):
    for t in range(4):
        r=16+16*t+4*ks; d=96+4*t
        c='0' if ks==0 else f'v[{d}:{d+3}]'
        A(f'v_mfma_f32_16x16x32_bf16 v[{d}:{d+3}], v[{80+4*ks}:{83+4*ks}], v[{r}:{r+3}], {c}')
A('s_mov_b32 s60, 0xffff0000'); A('s_mov_b32 s61, 0'); A('s_mov_b32 s64, 0'); A('s_mov_b32 s65, 0xffff'); A('s_mov_b32 s66, 0'); A('s_mov_b32 s67, 0xffff0000')
A('s_nop 3')
for h in range(2):
    A(f'v_cndmask_b32 v{16+h}, v{96+h}, v{100+h}, s[60:61]')
for h in range(2):
    A(f'v_cndmask_b32 v{16+h}, v{16+h}, v{104+h}, s[64:65]')
for h in range(2):
    A(f'v_cndmask_b32 v{16+h}, v{16+h}, v{108+h}, s[66:67]')
A('v_mov_b32 v18, v16'); A('v_mov_b32 v19, v17')
allreduce('v_max_f32',[18,19],['x1','x2','hm','m','r16','r32'],tmp=20)
A('v_mul_f32 v18, s43, v18'); A('v_mul_f32 v19, s43, v19')
A('v_fma_f32 v16, v16, s43, -v18'); A('v_fma_f32 v17, v17, s43, -v19')
A('v_exp_f32 v16, v16'); A('v_exp_f32 v17, v17')
A('s_nop 0')
A('v_cvt_pk_bf16_f32 v22, v16, v17')
A(f'ds_write_b16 v6, v22 offset:{PL}')
A(f'ds_write_b16_d16_hi v6, v22 offset:{PL+128}')
allreduce('v_add_f32',[16,17],['x1','x2','hm','m','r16','r32'],tmp=20)
A('s_lshl_b32 s8, s3, 2'); A('v_mov_b32 v5, s8')
A('s_mov_b64 exec, 1')
A(f'ds_write2_b32 v5, v18, v19 offset0:{ML//4} offset1:{ML//4+4}') if ML//4+12<256 else None
if ML//4+12>=256:
    A(f'v_add_u32 v5, {ML}, v5')
    A('ds_write2_b32 v5, v18, v19 offset0:0 offset1:4')
    A('ds_write2_b32 v5, v16, v17 offset0:8 offset1:12')
else:
    A(f'ds_write2_b32 v5, v16, v17 offset0:{ML//4+8} offset1:{ML//4+12}')
A('v_mov_b32 v6, 1'); A(f'v_mov_b32 v5, {PF}')
A('ds_add_u32 v5, v6')
A('s_mov_b64 exec, -1')
stamp(4,'K')
lds_spin(OC,4,8,'oc')
kv_tail('K')
flush_stamps('K',0)
A('s_endpgm')

A('.p2align 6')
A('L_V:')
A('s_setprio 1')
A('s_sub_u32 s15, s3, 4')
A('v_lshlrev_b32 v3, 4, v0')
kvbase()
kernargs_wait()
srd(44,20,0x4000000)
A('s_barrier'); A('s_barrier')
for t in range(16):
    r=16+4*t
    A(f'buffer_load_dwordx4 v[{r}:{r+3}], v3, s[44:47], s{8+t//4} offen offset:{(t&3)*1024} nt')
A('s_setprio 2')
stamp(14,'V')
tag_ready(7)
selectors(8,104)
A('v_bfe_u32 v4, v0, 3, 1'); A('v_lshl_add_u32 v4, v4, 2, v2'); A('v_lshlrev_b32 v4, 5, v4'); A('s_lshl_b32 s8, s15, 8'); A('v_add_u32 v4, s8, v4')
A('v_lshrrev_b32 v5, 5, v0'); A('v_lshlrev_b32 v5, 4, v5'); A('s_lshl_b32 s8, s15, 2'); A('v_add_u32 v6, s8, v5')
A('v_lshrrev_b32 v121, 5, v0'); A('v_lshlrev_b32 v121, 3, v121'); A('v_lshrrev_b32 v122, 1, v1'); A('v_add_u32 v121, v121, v122'); A('v_lshlrev_b32 v121, 7, v121')
A('v_and_b32 v122, 1, v1'); A('v_lshl_add_u32 v120, v122, 5, v121'); A('v_and_b32 v122, 1, v2'); A('v_lshl_add_u32 v120, v122, 4, v120')
A('s_lshl_b32 s12, s4, 1'); A('s_add_u32 s12, s12, s5'); A('s_lshl_b32 s12, s12, 3'); A('s_add_u32 s12, s12, s6')
A('s_lshl_b32 s12, s12, 11'); A(f's_add_u32 s12, s12, {hex(OP)}')
A('v_lshlrev_b32 v122, 2, v0')
lds_spin(PF,4,104,'pf')
A(f'ds_read_b128 v[80:83], v4 offset:{PL}'); A(f'ds_read_b128 v[84:87], v4 offset:{PL+16}')
A(f'ds_read_b128 v[88:91], v5 offset:{ML}'); A(f'ds_read_b128 v[92:95], v5 offset:{ML+32}'); A(f'ds_read_b32 v96, v6 offset:{ML}')
A('s_waitcnt lgkmcnt(0)')
A('v_max3_f32 v97, v88, v89, v90'); A('v_max_f32 v97, v97, v91'); A('v_and_b32 v97, 0xfffff000, v97')
for k in range(4): A(f'v_sub_f32 v{88+k}, v{88+k}, v97')
A('v_sub_f32 v96, v96, v97')
for k in range(4): A(f'v_exp_f32 v{88+k}, v{88+k}')
A('v_exp_f32 v96, v96')
A('v_mul_f32 v99, v88, v92')
for k in range(1,4): A(f'v_fmac_f32 v99, v{88+k}, v{92+k}')
A('v_or_b32 v100, v97, v7'); A('v_bfi_b32 v101, s41, v7, v99'); A('v_mov_b32 v102, v100'); A('v_mov_b32 v103, v101')
for t in range(16):
    a=104+4*(t&1)
    buildA(a, 80+t//2, t&1, 8)
    A(f's_waitcnt vmcnt({15-t})')
    A('s_nop 0')
    c='0' if t==0 else 'v[112:115]'
    A(f'v_mfma_f32_16x16x32_bf16 v[112:115], v[{a}:{a+3}], v[{16+4*t}:{19+4*t}], {c}')
A('v_mov_b32 v104, 1'); A(f'v_mov_b32 v105, {OC}')
A('s_nop 5')
for r in range(4): A(f'v_mul_f32 v{112+r}, v96, v{112+r}')
for r in range(4): A(f'ds_add_f32 v122, v{112+r} offset:{OACC+256*r}')
A('s_mov_b64 exec, 1')
A('ds_add_rtn_u32 v104, v105, v104')
A('s_mov_b64 exec, -1')
stamp(5,'V')
A('s_waitcnt lgkmcnt(0)')
A('v_readfirstlane_b32 s8, v104')
A('s_cmp_lg_u32 s8, 3'); A('s_cbranch_scc1 L_Vnopub')
A(f'ds_read2st64_b32 v[112:113], v122 offset0:{OACC//256} offset1:{OACC//256+1}')
A(f'ds_read2st64_b32 v[114:115], v122 offset0:{OACC//256+2} offset1:{OACC//256+3}')
A('s_setprio 3')
A('s_waitcnt lgkmcnt(0)')
for r in range(4): A(f'v_bfi_b32 v{112+r}, s41, v7, v{112+r}')
A('buffer_store_dwordx4 v[112:115], v120, s[52:55], s12 offen sc1')
A('s_mov_b32 exec_lo, 0x5555'); A('s_mov_b32 exec_hi, 0x5555')
A('buffer_store_dwordx4 v[100:103], v121, s[52:55], s12 offen offset:64 sc1')
A('s_mov_b64 exec, -1')
A('L_Vnopub:')
stamp(6,'V')
kv_tail('V')
flush_stamps('V',4)
A('s_endpgm')

A('.p2align 6')
A('L_W:')
A('s_sub_u32 s15, s3, 8'); A('s_min_u32 s15, s15, 4')
A('s_mul_i32 s10, s2, 20'); A('s_add_u32 s10, s10, 128'); A('s_mov_b32 s9, 5')
A('s_sub_u32 s11, s2, 224'); A('s_lshl_b32 s11, s11, 2')
A('s_cmp_ge_u32 s2, 224'); A('s_cselect_b32 s10, s11, s10'); A('s_cselect_b32 s9, 1, s9')
A('s_cselect_b32 s14, 0x7f000000, 0')
A('v_lshlrev_b32 v3, 4, v1')
A('v_mov_b32 v4, 0x7f000000'); A('s_cmp_eq_u32 s15, 4'); A('s_cselect_b32 s60, 0xff00ff00, 0'); A('s_mov_b32 s61, s60')
A('v_cndmask_b32 v3, v3, v4, s[60:61]')
A(f'v_mul_u32_u24 v4, {4*1152}, v2'); A('v_add_u32 v4, v4, v3')
A('s_mul_i32 s8, s9, 1152'); A('v_mul_u32_u24 v5, s8, v2'); A('v_add_u32 v5, v5, v3')
A('v_and_b32 v6, 7, v0'); A('v_lshlrev_b32 v6, 1, v6'); A('v_bfe_u32 v9, v0, 3, 1'); A('v_add_u32 v6, v6, v9'); A('v_mul_u32_u24 v6, 4608, v6')
A('v_mul_u32_u24 v9, s9, v2'); A('v_add_u32 v6, v6, v9'); A('v_lshlrev_b32 v6, 2, v6')
A('s_lshl_b32 s11, s10, 2'); A(f's_add_u32 s11, s11, {hex(HP)}')
A('s_lshl_b32 s8, s15, 8')
A('s_mul_i32 s10, s10, 1152'); A('s_add_u32 s10, s10, s8')
A('s_add_u32 s13, s10, 1152'); A('s_add_u32 s13, s13, s14')
A('s_lshl_b32 s12, s4, 4'); A('s_add_u32 s12, s12, s7'); A(f's_mul_i32 s12, s12, {16*1152}'); A('s_add_u32 s12, s12, s8')
kernargs_wait()
srd(44,24,4096*1152); srd(48,30,4608*1152)
A('s_cmp_lg_u32 s3, 15'); A('s_cbranch_scc1 L_Wnogate')
srd(56,16,2304)
A('v_and_b32 v9, 31, v0'); A('v_mul_u32_u24 v9, 36, v9'); A('v_lshrrev_b32 v10, 5, v0'); A('v_mul_u32_u24 v10, 1152, v10'); A('v_add_u32 v10, v10, v9')
for k in range(3): A(f'buffer_load_dwordx3 v[{64+4*k}:{66+4*k}], v10, s[56:59], 0 offen offset:{12*k}')
srd(56,32,1152)
for k in range(3): A(f'buffer_load_dwordx3 v[{80+4*k}:{82+4*k}], v9, s[56:59], 0 offen offset:{12*k}')
A('L_Wnogate:')
A('s_barrier'); A('s_barrier')
A('s_cmp_lg_u32 s3, 15'); A('s_cbranch_scc1 L_Wnogate2')
A('s_waitcnt vmcnt(0)')
A('v_mov_b32 v100, 0')
for k in range(3):
    for i in range(3):
        x=64+4*k+i; w=80+4*k+i
        A(f'v_lshlrev_b32 v96, 16, v{x}'); A(f'v_lshlrev_b32 v97, 16, v{w}'); A(f'v_and_b32 v98, 0xffff0000, v{x}'); A(f'v_and_b32 v99, 0xffff0000, v{w}')
        A('v_mul_f32 v96, v96, v97'); A('v_mul_f32 v98, v98, v99')
        A('v_cvt_pk_bf16_f32 v96, v96, v98')
        A('v_lshlrev_b32 v97, 16, v96'); A('v_and_b32 v98, 0xffff0000, v96')
        A('v_add_f32 v100, v100, v97'); A('v_add_f32 v100, v100, v98')
A('s_nop 1')
allreduce('v_add_f32',[100],['x1','x2','hm','m','r16'],tmp=101)
A('v_cvt_pk_bf16_f32 v100, v100, v100'); A('v_and_b32 v100, 0xffff0000, v100')
A(f'v_mul_f32 v100, {hex(f2u(-1.4426950408889634))}, v100')
A('v_exp_f32 v100, v100'); A('s_nop 0'); A('v_add_f32 v100, 1.0, v100'); A('v_rcp_f32 v100, v100'); A('s_nop 0')
A('v_cvt_pk_bf16_f32 v100, v100, v100'); A('v_and_b32 v100, 0xffff0000, v100')
A('v_sub_f32 v101, 1.0, v100'); A('v_cvt_pk_bf16_f32 v101, v101, v101'); A('v_and_b32 v101, 0xffff0000, v101')
A('v_lshrrev_b32 v9, 5, v0'); A('v_lshlrev_b32 v9, 3, v9')
A(f'ds_write_b64 v9, v[100:101] offset:{GL}')
A('L_Wnogate2:')
A('buffer_load_dwordx4 v[64:67], v6, s[52:55], s11 offen sc1')
A('buffer_load_dword v68, v6, s[52:55], s11 offen offset:16 sc1')
A('buffer_load_dwordx4 v[16:19], v5, s[48:51], s10 offen nt')
for t in range(1,5): A(f'buffer_load_dwordx4 v[{16+4*t}:{19+4*t}], v5, s[48:51], s13 offen offset:{(t-1)*1152} nt')
for t in range(4): A(f'buffer_load_dwordx4 v[{36+4*t}:{39+4*t}], v4, s[44:47], s12 offen offset:{t*1152} nt')
A('s_setprio 2')
stamp(15,'W')
tag_ready(7)
selectors(8,104)
A('v_lshrrev_b32 v120, 5, v0'); A('v_lshlrev_b32 v121, 3, v120'); A('v_mul_u32_u24 v120, 2304, v120'); A('v_lshl_add_u32 v120, v3, 1, v120'); A('v_and_b32 v122, 1, v2'); A('v_lshl_add_u32 v120, v122, 4, v120')
A('s_mul_i32 s14, s2, 4608'); A('s_lshl_b32 s8, s15, 9'); A('s_add_u32 s14, s14, s8'); A(f's_add_u32 s14, s14, {hex(FP)}')
A('v_lshlrev_b32 v122, 6, v1'); A('v_lshl_add_u32 v122, v2, 4, v122')
A('v_lshlrev_b32 v123, 4, v1')
A('s_waitcnt vmcnt(9)')
A(f's_mov_b32 s62, {SPIN}')
A('L_hchk:')
for k in range(5): A(f'v_xor_b32 v{64+k}, v7, v{64+k}')
A('v_or3_b32 v69, v64, v65, v66'); A('v_or3_b32 v69, v69, v67, v68'); A('v_and_b32 v69, s41, v69')
A('v_cmp_ne_u32 vcc, 0, v69')
A('s_cbranch_vccz L_hgo')
A('s_sub_u32 s62, s62, 1'); A('s_cbranch_scc1 L_hgo')
A('buffer_load_dwordx4 v[64:67], v6, s[52:55], s11 offen sc1')
A('buffer_load_dword v68, v6, s[52:55], s11 offen offset:16 sc1')
A('s_waitcnt vmcnt(0)')
A('s_branch L_hchk')
A('L_hgo:')
stamp(13,'W')
allreduce('v_add_f32',[64,65,66,67,68],['x1','x2','hm'])
for k in range(5): A(f'v_max_f32 v{64+k}, 0, v{64+k}')
A('v_cvt_pk_bf16_f32 v64, v64, v65'); A('v_cvt_pk_bf16_f32 v65, v66, v67'); A('v_cvt_pk_bf16_f32 v66, v68, v68')
for t in range(5):
    a=104+4*(t&1)
    buildA(a, 64+t//2, t&1, 8)
    A(f's_waitcnt vmcnt({8-t})')
    A('s_nop 0')
    c='0' if t==0 else 'v[116:119]'
    A(f'v_mfma_f32_16x16x32_bf16 v[116:119], v[{a}:{a+3}], v[{16+4*t}:{19+4*t}], {c}')
A('s_barrier')
A(f'ds_read_b128 v[64:67], v122 offset:{OL}')
A(f'ds_read_b64 v[68:69], v123 offset:{SL}')
A(f'ds_read_b64 v[72:73], v121 offset:{GL}')
A('s_waitcnt lgkmcnt(1)')
A('v_mov_b32 v70, v68')
allreduce('v_max_f32',[70],['x1','x2','hm'])
A('v_sub_f32 v68, v68, v70'); A('v_exp_f32 v68, v68'); A('s_nop 0')
A('v_mul_f32 v69, v68, v69')
for k in range(4): A(f'v_mul_f32 v{64+k}, v68, v{64+k}')
allreduce('v_add_f32',[69,64,65,66,67],['x1','x2','hm'])
A('v_rcp_f32 v69, v69'); A('s_nop 0')
for k in range(4): A(f'v_mul_f32 v{64+k}, v69, v{64+k}')
A('v_cvt_pk_bf16_f32 v64, v64, v65'); A('v_cvt_pk_bf16_f32 v65, v66, v67')
for t in range(4): buildA(80+4*t, 64+t//2, t&1, 8)
A('s_waitcnt vmcnt(0) lgkmcnt(0)')
stamp(8,'W')
for t in range(4):
    c='0' if t==0 else 'v[112:115]'
    A(f'v_mfma_f32_16x16x32_bf16 v[112:115], v[{80+4*t}:{83+4*t}], v[{36+4*t}:{39+4*t}], {c}')
for r in range(4): A(f'v_mul_f32 v{116+r}, v73, v{116+r}')
A('s_nop 3')
for r in range(4): A(f'v_fma_f32 v{112+r}, v72, v{112+r}, v{116+r}')
for r in range(4): A(f'v_bfi_b32 v{112+r}, s41, v7, v{112+r}')
A('buffer_store_dwordx4 v[112:115], v120, s[52:55], s14 offen sc1')
stamp(9,'W')
flush_stamps('W',8)
A('L_end:')
A('s_endpgm')
A('.section .rodata,"a"'); A('.p2align 6'); A(f'.amdhsa_kernel {KNAME}')
A('  .amdhsa_next_free_vgpr 128'); A('  .amdhsa_next_free_sgpr 102'); A('  .amdhsa_accum_offset 128')
A('  .amdhsa_group_segment_fixed_size 0'); A('  .amdhsa_kernarg_size 96'); A('  .amdhsa_user_sgpr_count 2'); A('  .amdhsa_user_sgpr_kernarg_segment_ptr 1'); A('  .amdhsa_system_sgpr_workgroup_id_x 1')
A('  .amdhsa_float_denorm_mode_32 3')
A('.end_amdhsa_kernel')
open(out,'w').write('\n'.join(x for x in L if x is not None)+'\n')
print('lines',len(L),'ws end',hex(WS_END))
```

```python
import sys
KNAME='gated_mix__sliding_block_cached__dense_activation_relu__decode_kernel'
opts=dict(a.split('=') for a in sys.argv[2:])
STAMPS=int(opts.get('stamps','0'))
DBG=int(opts.get('dbg','0'))
out=sys.argv[1]

EPOCH=0x0
QP=0x1000
OP=QP+0x40000
HP=OP+0x80000
FP=HP+8*2*4608*4
WS_END=FP+256*4608
WS_SIZE=0x10000000 if STAMPS else WS_END
STAMP_OFF=0x8000000
NST=16
QL=0x000; PL=0x200; ML=0x600; QF=0x640; PF=0x644; OC=0x648; FC=0x64c; GL=0x680; FACC=0x6C0; OACC=0x800; OL=0xC00; SL=0x1000
LDS=0x1100
SPIN=1<<17
SC=0.08838834764831845*1.4426950408889634
import struct
def f2u(f): return struct.unpack('<I',struct.pack('<f',f))[0]

L=[]
def A(s): L.append(s)
lab=[0]
def newlab(p):
    lab[0]+=1; return f'L_{p}{lab[0]}'

def srd(d,p,n):
    A(f's_mov_b32 s{d}, s{p}'); A(f's_mov_b32 s{d+1}, s{p+1}'); A(f's_mov_b32 s{d+2}, {hex(n)}'); A(f's_mov_b32 s{d+3}, 0x20000')
stamp_regs={}
def stamp(k, role):
    if not STAMPS: return
    lst=stamp_regs.setdefault(role,[])
    i=len(lst); lst.append(k)
    assert i<8
    A(f's_memrealtime s[{84+2*i}:{85+2*i}]')
def flush_stamps(role, cond=None):
    if not STAMPS: return
    lst=stamp_regs.get(role,[])
    skip=newlab('nost')
    if cond is not None:
        A(f's_cmp_lg_u32 s3, {cond}'); A(f's_cbranch_scc1 {skip}')
    A('s_waitcnt lgkmcnt(0)')
    A(f's_lshl_b32 s8, s2, 7'); A(f's_add_u32 s8, s8, {hex(STAMP_OFF)}')
    A('v_mov_b32 v3, 0')
    if DBG:
        srd(44,36,256); A('s_mov_b64 exec, 1')
    for i,k in enumerate(lst):
        A(f'v_mov_b32 v4, s{84+2*i}'); A(f'v_mov_b32 v5, s{85+2*i}')
        if DBG:
            if k==0: A('v_not_b32 v4, v4')
            A(f'buffer_atomic_umax v4, v3, s[44:47], 0 offen offset:{k*4}')
        else:
            A(f'buffer_store_dwordx2 v[4:5], v3, s[52:55], s8 offen offset:{k*8}')
        A('s_waitcnt vmcnt(0)')
    A(f'{skip}:')
def kernargs_wait():
    A('s_waitcnt lgkmcnt(0)')
    A(f's_load_dword s40, s[38:39], {EPOCH}')
    srd(52,38,WS_SIZE)
    A('s_mov_b32 s41, 0xfff')
def tag_ready(vt):
    A('s_waitcnt lgkmcnt(0)')
    A('s_add_u32 s42, s40, 1')
    A('s_and_b32 s40, s42, s41')
    A(f'v_mov_b32 v{vt}, s40')
def selectors(base, tmp):
    A(f'v_mov_b32 v{tmp}, 0x0c0c0100'); A(f'v_mov_b32 v{tmp+1}, 0x01000c0c')
    A('s_mov_b32 s60, 0xaaaaaaaa'); A('s_mov_b32 s61, 0xaaaaaaaa')
    A(f'v_cndmask_b32 v{tmp}, v{tmp}, v{tmp+1}, s[60:61]')
    A(f'v_mov_b32 v{tmp+1}, 0x0c0c0302'); A(f'v_mov_b32 v{tmp+2}, 0x03020c0c')
    A(f'v_cndmask_b32 v{tmp+1}, v{tmp+1}, v{tmp+2}, s[60:61]')
    A(f'v_mov_b32 v{tmp+2}, 0x0c0c0c0c')
    for d in range(4):
        m=(0x03030303<<(2*d))&0xffffffff
        A(f's_mov_b32 s60, {hex(m)}'); A(f's_mov_b32 s61, {hex(m)}')
        A(f'v_cndmask_b32 v{base+d}, v{tmp+2}, v{tmp}, s[60:61]')
        A(f'v_cndmask_b32 v{base+4+d}, v{tmp+2}, v{tmp+1}, s[60:61]')
def buildA(dst, src, odd, sel):
    for d in range(4):
        A(f'v_perm_b32 v{dst+d}, v{src}, v{src}, v{sel+(4 if odd else 0)+d}')
def lds_spin(addr, val, vt, name):
    l=newlab(name); d=newlab(name+'d')
    A(f'v_mov_b32 v{vt}, {addr}')
    A(f's_mov_b32 s62, {SPIN}')
    A(f'{l}:')
    A(f'ds_read_b32 v{vt+1}, v{vt}')
    A('s_sub_u32 s62, s62, 1')
    A('s_waitcnt lgkmcnt(0)')
    A(f'v_readfirstlane_b32 s63, v{vt+1}')
    A(f's_cbranch_scc1 {d}')
    A(f's_cmp_ge_u32 s63, {val}')
    A(f's_cbranch_scc1 {d}')
    A('s_sleep 1')
    A(f's_branch {l}')
    A(f'{d}:')
DPP=' row_mask:0xf bank_mask:0xf'
def allreduce(op, regs, steps, tmp=None):
    n=len(regs)
    pad=max(0,2-(n-1))
    ctl={'x1':'quad_perm:[1,0,3,2]','x2':'quad_perm:[2,3,0,1]','hm':'row_half_mirror','m':'row_mirror','ror4':'row_ror:4','ror8':'row_ror:8'}
    for s in steps:
        if s in ctl:
            if pad: A(f's_nop {pad-1}')
            for r in regs: A(f'{op}_dpp v{r}, v{r}, v{r} {ctl[s]}{DPP}')
        else:
            ins='v_permlane16_swap_b32' if s=='r16' else 'v_permlane32_swap_b32'
            for i,r in enumerate(regs): A(f'v_mov_b32 v{tmp+i}, v{r}')
            A('s_nop 1')
            for i,r in enumerate(regs): A(f'{ins} v{r}, v{tmp+i}')
            A('s_nop 0')
            for i,r in enumerate(regs): A(f'{op} v{r}, v{r}, v{tmp+i}')

A(f'; @launch grid=(256,1,1) block=(1024,1,1) lds={LDS}')
A('.amdgcn_target "amdgcn-amd-amdhsa--gfx950"')
A('.text')
A(f'.globl {KNAME}')
A('.p2align 8')
A(f'.type {KNAME},@function')
A(f'{KNAME}:')
if STAMPS: A('s_memrealtime s[82:83]')
A('s_cmp_ge_u32 s2, 256')
A('s_cbranch_scc1 L_end')
A('s_load_dwordx16 s[16:31], s[0:1], 0')
A('s_load_dwordx8 s[32:39], s[0:1], 64')
A('v_lshrrev_b32 v1, 6, v0')
A('v_and_b32 v0, 63, v0')
A('s_and_b32 s4, s2, 7')
A('v_readfirstlane_b32 s3, v1')
A('s_lshl_b32 s4, s4, 1'); A('s_bfe_u32 s5, s2, 0x10003'); A('s_add_u32 s4, s4, s5')
A('s_bfe_u32 s5, s2, 0x10004')
A('s_lshr_b32 s6, s2, 5')
A('s_lshr_b32 s7, s2, 4')
A('v_and_b32 v1, 15, v0')
A('v_lshrrev_b32 v2, 4, v0')
A('s_cmp_eq_u32 s3, 12'); A('s_cbranch_scc1 L_Q')
A('s_cmp_lt_u32 s3, 4');  A('s_cbranch_scc1 L_K')
A('s_cmp_lt_u32 s3, 8');  A('s_cbranch_scc1 L_V')
A('s_cmp_eq_u32 s3, 13'); A('s_cbranch_scc1 L_H')
A('s_cmp_eq_u32 s3, 14'); A('s_cbranch_scc1 L_H')
A('s_branch L_W')

def stage1(role):
    isq = role=='Q'
    pitch = 8192 if isq else 9216
    A('.p2align 6')
    A(f'L_{role}:')
    A('s_setprio 3')
    if isq:
        A('s_and_b32 s9, s7, 1')
        A('s_lshr_b32 s10, s7, 1')
    else:
        A('s_mov_b32 s11, s2')
        A('s_cmp_eq_u32 s3, 13'); A('s_cbranch_scc1 L_Hgo')
        A('s_add_u32 s11, s2, 32')
        A('s_cmp_ge_u32 s2, 224'); A('s_cbranch_scc1 L_Hgo')
        A('s_endpgm')
        A('L_Hgo:')
        A('s_lshr_b32 s9, s11, 3')
        A('s_and_b32 s10, s11, 7')
    A(f'v_mul_u32_u24 v3, {18*pitch}, v2')
    A('v_lshl_add_u32 v3, v1, 4, v3')
    A('v_bfe_u32 v4, v0, 3, 1'); A('v_mul_u32_u24 v4, 1152, v4')
    A('v_mul_u32_u24 v5, 36, v2'); A('v_add_u32 v4, v4, v5')
    A('s_mul_i32 s8, s10, 144')
    A(f's_mul_i32 s12, s10, {72*pitch}')
    if isq:
        A('s_lshl_b32 s13, s4, 9'); A('s_add_u32 s12, s12, s13'); A('s_lshl_b32 s13, s9, 8'); A('s_add_u32 s12, s12, s13')
    else:
        A('s_lshl_b32 s13, s9, 8'); A('s_add_u32 s12, s12, s13')
    kernargs_wait()
    srd(44,16,2304)
    if isq: srd(48,22,576*8192)
    else: srd(48,28,576*9216)
    if not isq: A('s_barrier')
    A('buffer_load_dwordx4 v[16:19], v4, s[44:47], s8 offen')
    A('buffer_load_dwordx4 v[20:23], v4, s[44:47], s8 offen offset:16')
    A('buffer_load_dword v24, v4, s[44:47], s8 offen offset:32')
    for t in range(18):
        A(f'buffer_load_dwordx4 v[{32+4*t}:{35+4*t}], v3, s[48:51], s12 offen nt')
        if t<17: A(f's_add_u32 s12, s12, {pitch}')
    if isq: A('s_barrier')
    A('s_barrier')
    selectors(8, 104)
    if isq:
        A('v_lshrrev_b32 v5, 1, v2'); A('v_lshlrev_b32 v5, 13, v5')
        A('s_lshl_b32 s13, s4, 14'); A('s_lshl_b32 s14, s10, 10'); A('s_add_u32 s13, s13, s14'); A('s_lshl_b32 s14, s9, 9'); A('s_add_u32 s13, s13, s14'); A(f's_add_u32 s13, s13, {hex(QP)}')
    else:
        A('v_lshrrev_b32 v5, 1, v2'); A(f'v_mul_u32_u24 v5, {4608*4}, v5')
        A(f's_mul_i32 s13, s10, {2*4608*4}'); A('s_lshl_b32 s14, s9, 9'); A('s_add_u32 s13, s13, s14'); A(f's_add_u32 s13, s13, {hex(HP)}')
    A('v_lshl_add_u32 v5, v1, 5, v5'); A('v_and_b32 v6, 1, v2'); A('v_lshl_add_u32 v5, v6, 4, v5')
    tag_ready(7)
    A('s_waitcnt vmcnt(18)')
    for t in range(18):
        a=104+4*(t&1)
        buildA(a, 16+t//2, t&1, 8)
        A(f's_waitcnt vmcnt({17-t})')
        A('s_nop 0')
        c='0' if t==0 else 'v[112:115]'
        A(f'v_mfma_f32_16x16x32_bf16 v[112:115], v[{a}:{a+3}], v[{32+4*t}:{35+4*t}], {c}')
    A('s_nop 7')
    for r in range(4): A(f'v_bfi_b32 v{112+r}, s41, v7, v{112+r}')
    A('buffer_store_dwordx4 v[112:115], v5, s[52:55], s13 offen sc1')
    stamp(1 if isq else 12, role)
    if isq:
        A('v_lshlrev_b32 v5, 4, v0')
        A('s_lshl_b32 s13, s4, 1'); A('s_add_u32 s13, s13, s5'); A('s_lshl_b32 s13, s13, 13'); A(f's_add_u32 s13, s13, {hex(QP)}'); A('s_add_u32 s14, s13, 4096')
        A(f's_mov_b32 s62, {SPIN}')
        A('L_qpoll:')
        for r in range(8):
            A(f'buffer_load_dwordx4 v[{32+4*r}:{35+4*r}], v5, s[52:55], s{13 if r<4 else 14} offen offset:{(r&3)*1024} sc1')
        A('s_sub_u32 s62, s62, 1')
        A('s_cbranch_scc1 L_qgo')
        A('v_mov_b32 v6, 0')
        for r in range(8):
            A(f's_waitcnt vmcnt({7-r})')
            for k in range(4): A(f'v_xor_b32 v{32+4*r+k}, v7, v{32+4*r+k}')
            A(f'v_or3_b32 v6, v6, v{32+4*r}, v{33+4*r}'); A(f'v_or3_b32 v6, v6, v{34+4*r}, v{35+4*r}')
        A('v_and_b32 v6, s41, v6')
        A('v_cmp_ne_u32 vcc, 0, v6')
        A('s_cbranch_vccnz L_qpoll')
        A('L_qgo:')
        A('s_waitcnt vmcnt(0)')
        for r in (1,3,5,7):
            for k in (0,2): A(f'v_pk_add_f32 v[{32+4*(r-1)+k}:{33+4*(r-1)+k}], v[{32+4*(r-1)+k}:{33+4*(r-1)+k}], v[{32+4*r+k}:{33+4*r+k}]')
        for r in (2,6):
            for k in (0,2): A(f'v_pk_add_f32 v[{32+4*(r-2)+k}:{33+4*(r-2)+k}], v[{32+4*(r-2)+k}:{33+4*(r-2)+k}], v[{32+4*r+k}:{33+4*r+k}]')
        for k in (0,2): A(f'v_pk_add_f32 v[{32+k}:{33+k}], v[{32+k}:{33+k}], v[{48+k}:{49+k}]')
        A('v_cvt_pk_bf16_f32 v32, v32, v33'); A('v_cvt_pk_bf16_f32 v33, v34, v35')
        A('v_lshlrev_b32 v5, 3, v0')
        A(f'ds_write_b64 v5, v[32:33] offset:{QL}')
        A('v_mov_b32 v6, 1'); A(f'v_mov_b32 v5, {QF}')
        A('s_waitcnt lgkmcnt(0)')
        A('ds_write_b32 v5, v6')
        stamp(2, role)
        flush_stamps(role)
    else:
        flush_stamps(role, 13)
    A('s_endpgm')
stage1('Q'); stage1('H')

def kv_tail(role):
    A('s_lshl_b32 s8, s4, 15'); A('s_lshl_b32 s9, s7, 7'); A('s_add_u32 s8, s8, s9'); A('s_lshl_b32 s9, s3, 12'); A('s_add_u32 s8, s8, s9'); A(f's_add_u32 s8, s8, {hex(OP)}')
    A('s_add_u32 s44, s38, s8'); A('s_addc_u32 s45, s39, 0')
    A('s_lshl_b32 s8, s3, 7'); A(f's_add_u32 s8, s8, {OL}'); A('s_lshl_b32 s9, s3, 5'); A(f's_add_u32 s9, s9, {SL-128}')
    A('v_mov_b32 v10, s8'); A('v_mov_b32 v11, s9')
    A('s_mov_b32 s60, 0'); A('s_mov_b32 s61, -1')
    A('v_cndmask_b32 v10, v10, v11, s[60:61]')
    A('v_lshl_add_u32 v10, v0, 2, v10')
    A('v_mov_b32 v12, v7')
    lp=newlab('opoll'); go=newlab('ogo')
    A(f's_mov_b32 s62, {SPIN}')
    A(f'{lp}:')
    A('s_load_dwordx16 s[64:79], s[44:45], 0 glc')
    A('s_load_dwordx16 s[16:31], s[44:45], 2048 glc')
    A('s_load_dwordx4 s[56:59], s[44:45], 64 glc')
    A('s_load_dwordx4 s[48:51], s[44:45], 2112 glc')
    A('s_sub_u32 s62, s62, 1')
    A(f's_cbranch_scc1 {go}')
    A('s_waitcnt lgkmcnt(0)')
    A('s_xor_b32 s8, s79, s40'); A('s_xor_b32 s9, s31, s40'); A('s_or_b32 s8, s8, s9')
    A('s_xor_b32 s9, s59, s40'); A('s_or_b32 s8, s8, s9'); A('s_xor_b32 s9, s51, s40'); A('s_or_b32 s8, s8, s9')
    A('s_and_b32 s8, s8, s41')
    A(f's_cbranch_scc1 {lp}')
    for i in range(16): A(f'v_writelane_b32 v12, s{64+i}, {i}')
    for i in range(16): A(f'v_writelane_b32 v12, s{16+i}, {16+i}')
    for i in range(4): A(f'v_writelane_b32 v12, s{56+i}, {32+i}')
    for i in range(4): A(f'v_writelane_b32 v12, s{48+i}, {36+i}')
    A('v_xor_b32 v13, v7, v12')
    A('v_and_b32 v14, s41, v13')
    A('v_cmp_ne_u32 vcc, 0, v14')
    A(f's_cbranch_vccnz {lp}')
    A(f'{go}:')
    A('s_waitcnt lgkmcnt(0)')
    A('s_mov_b32 exec_lo, -1'); A('s_mov_b32 exec_hi, 0xff')
    A('ds_write_b32 v10, v13')
    A('s_mov_b64 exec, -1')
    if role=='K': stamp(7, role)
    A('s_waitcnt lgkmcnt(0)')
    A('s_barrier')
    fin=newlab('fin')
    A('s_cmp_ge_u32 s2, 72'); A(f's_cbranch_scc1 {fin}')
    A('v_lshrrev_b32 v5, 2, v0'); A('v_mul_u32_u24 v5, 4608, v5'); A('v_and_b32 v6, 3, v0'); A('v_lshl_add_u32 v5, v6, 4, v5')
    A(f's_mul_i32 s8, s3, {32*4608}'); A('s_lshl_b32 s9, s2, 6'); A('s_add_u32 s8, s8, s9'); A(f's_add_u32 s8, s8, {hex(FP)}'); A(f's_add_u32 s9, s8, {16*4608}')
    A('v_bfe_u32 v8, v0, 2, 2'); A('v_lshl_add_u32 v8, v6, 2, v8'); A('v_lshlrev_b32 v8, 2, v8')
    lp=newlab('fpoll'); go=newlab('fgo')
    A(f's_mov_b32 s62, {SPIN}')
    A(f'{lp}:')
    A('buffer_load_dwordx4 v[16:19], v5, s[52:55], s8 offen sc1')
    A('buffer_load_dwordx4 v[20:23], v5, s[52:55], s9 offen sc1')
    A('s_sub_u32 s62, s62, 1')
    A(f's_cbranch_scc1 {go}')
    A('s_waitcnt vmcnt(0)')
    for k in range(8): A(f'v_xor_b32 v{16+k}, v7, v{16+k}')
    A('v_or3_b32 v9, v16, v17, v18'); A('v_or3_b32 v9, v9, v19, v20'); A('v_or3_b32 v9, v9, v21, v22'); A('v_or_b32 v9, v9, v23')
    A('v_and_b32 v9, s41, v9')
    A('v_cmp_ne_u32 vcc, 0, v9')
    A(f's_cbranch_vccnz {lp}')
    A(f'{go}:')
    A('s_waitcnt vmcnt(0)')
    if role=='K': stamp(10, role)
    for k in range(4): A(f'v_add_f32 v{16+k}, v{16+k}, v{20+k}')
    allreduce('v_add_f32',[16,17,18,19],['ror4','ror8'])
    A('s_mov_b32 s60, 0x00f000f0'); A('s_mov_b32 s61, 0x00f000f0'); A('v_cndmask_b32 v16, v16, v17, s[60:61]')
    A('s_mov_b32 s60, 0x0f000f00'); A('s_mov_b32 s61, 0x0f000f00'); A('v_cndmask_b32 v16, v16, v18, s[60:61]')
    A('s_mov_b32 s60, 0xf000f000'); A('s_mov_b32 s61, 0xf000f000'); A('v_cndmask_b32 v16, v16, v19, s[60:61]')
    A(f'ds_add_f32 v8, v16 offset:{FACC}')
    A('v_mov_b32 v9, 1'); A(f'v_mov_b32 v10, {FC}')
    A('s_mov_b64 exec, 1')
    A('ds_add_rtn_u32 v9, v10, v9')
    A('s_mov_b64 exec, -1')
    A('s_waitcnt lgkmcnt(0)')
    A('v_readfirstlane_b32 s8, v9')
    A('s_cmp_lg_u32 s8, 7'); A(f's_cbranch_scc1 {fin}')
    A('v_lshlrev_b32 v8, 3, v0')
    A('s_mov_b64 exec, 0xff')
    A(f'ds_read_b64 v[16:17], v8 offset:{FACC}')
    srd(44,34,2304)
    A('s_lshl_b32 s8, s2, 5')
    A('v_lshlrev_b32 v8, 2, v0')
    A('s_waitcnt lgkmcnt(0)')
    A('v_cvt_pk_bf16_f32 v16, v16, v17')
    A('buffer_store_dword v16, v8, s[44:47], s8 offen')
    if STAMPS:
        A('s_memrealtime s[80:81]'); A('s_waitcnt lgkmcnt(0)'); A('v_mov_b32 v20, s80'); A('v_mov_b32 v21, s81'); A('v_mov_b32 v22, 0')
        A(f's_lshl_b32 s8, s2, 7'); A(f's_add_u32 s8, s8, {hex(STAMP_OFF)}')
        if DBG:
            srd(44,36,256); A('s_mov_b64 exec, 1'); A('buffer_atomic_umax v20, v22, s[44:47], 0 offen offset:44')
        else: A('buffer_store_dwordx2 v[20:21], v22, s[52:55], s8 offen offset:88')
    A('s_mov_b64 exec, 1')
    A('s_cmp_lg_u32 s2, 0'); A(f's_cbranch_scc1 {fin}')
    A('v_mov_b32 v9, s42'); A('v_mov_b32 v8, 0')
    A(f'buffer_store_dword v9, v8, s[52:55], 0 offen offset:{EPOCH} sc1')
    A(f'{fin}:')
    A('s_mov_b64 exec, -1')

def kvbase():
    A('s_lshl_b32 s12, s5, 4'); A('s_add_u32 s12, s12, s4'); A('s_lshl_b32 s12, s12, 21')
    A('s_lshl_b32 s13, s6, 16'); A('s_add_u32 s12, s12, s13'); A('s_add_u32 s12, s12, 0x180000')
    A('s_lshr_b32 s13, s2, 3'); A('s_add_u32 s13, s13, s2'); A('s_add_u32 s13, s13, s15')
    for t in range(4):
        A(f's_add_u32 s14, s13, {4*t}'); A('s_and_b32 s14, s14, 15'); A('s_lshl_b32 s14, s14, 12'); A(f's_add_u32 s{8+t}, s12, s14')

A('.p2align 6')
A('L_K:')
A('s_setprio 2')
A('s_mov_b32 s15, s3')
if STAMPS:
    stamp_regs['K']=[0]; A('s_mov_b64 s[84:85], s[82:83]') if False else None
A('v_mov_b32 v4, 0'); A('s_lshl_b32 s8, s3, 8'); A('v_lshl_add_u32 v5, v0, 2, s8')
A(f'ds_write_b32 v5, v4 offset:{OACC}')
A('v_lshlrev_b32 v5, 2, v0')
A(f'ds_write_b32 v5, v4 offset:{ML}')
A('v_lshlrev_b32 v3, 8, v1'); A('v_lshl_add_u32 v3, v2, 4, v3')
kvbase()
kernargs_wait()
srd(44,18,0x4000000)
A('s_barrier'); A('s_barrier')
for t in range(4):
    for ks in range(4):
        r=16+16*t+4*ks
        A(f'buffer_load_dwordx4 v[{r}:{r+3}], v3, s[44:47], s{8+t} offen offset:{ks*64} nt')
tag_ready(7)
if STAMPS: A('s_mov_b64 s[84:85], s[82:83]')
A('v_and_b32 v5, 1, v0'); A('v_lshlrev_b32 v5, 8, v5'); A('v_lshl_add_u32 v5, v2, 4, v5')
A('v_and_b32 v6, 3, v0'); A('v_lshlrev_b32 v6, 5, v6'); A('v_lshrrev_b32 v8, 2, v0'); A('v_lshl_add_u32 v6, v8, 1, v6'); A('s_lshl_b32 s8, s3, 8'); A('v_add_u32 v6, s8, v6')
A(f's_mov_b32 s43, {hex(f2u(SC))}')
if STAMPS:
    A('s_waitcnt vmcnt(0)'); stamp(3,'K')
lds_spin(QF,1,8,'qf')
for ks in range(4): A(f'ds_read_b128 v[{80+4*ks}:{83+4*ks}], v5 offset:{QL+ks*64}')
A('s_waitcnt vmcnt(0) lgkmcnt(0)')
for ks in range(4):
    for t in range(4):
        r=16+16*t+4*ks; d=96+4*t
        c='0' if ks==0 else f'v[{d}:{d+3}]'
        A(f'v_mfma_f32_16x16x32_bf16 v[{d}:{d+3}], v[{80+4*ks}:{83+4*ks}], v[{r}:{r+3}], {c}')
A('s_mov_b32 s60, 0xffff0000'); A('s_mov_b32 s61, 0'); A('s_mov_b32 s64, 0'); A('s_mov_b32 s65, 0xffff'); A('s_mov_b32 s66, 0'); A('s_mov_b32 s67, 0xffff0000')
A('s_nop 3')
for h in range(2):
    A(f'v_cndmask_b32 v{16+h}, v{96+h}, v{100+h}, s[60:61]')
for h in range(2):
    A(f'v_cndmask_b32 v{16+h}, v{16+h}, v{104+h}, s[64:65]')
for h in range(2):
    A(f'v_cndmask_b32 v{16+h}, v{16+h}, v{108+h}, s[66:67]')
A('v_mov_b32 v18, v16'); A('v_mov_b32 v19, v17')
allreduce('v_max_f32',[18,19],['x1','x2','hm','m','r16','r32'],tmp=20)
A('v_mul_f32 v18, s43, v18'); A('v_mul_f32 v19, s43, v19')
A('v_fma_f32 v16, v16, s43, -v18'); A('v_fma_f32 v17, v17, s43, -v19')
A('v_exp_f32 v16, v16'); A('v_exp_f32 v17, v17')
A('s_nop 0')
A('v_cvt_pk_bf16_f32 v22, v16, v17')
A(f'ds_write_b16 v6, v22 offset:{PL}')
A(f'ds_write_b16_d16_hi v6, v22 offset:{PL+128}')
allreduce('v_add_f32',[16,17],['x1','x2','hm','m','r16','r32'],tmp=20)
A('s_lshl_b32 s8, s3, 2'); A('v_mov_b32 v5, s8')
A('s_mov_b64 exec, 1')
A(f'ds_write2_b32 v5, v18, v19 offset0:{ML//4} offset1:{ML//4+4}') if ML//4+12<256 else None
if ML//4+12>=256:
    A(f'v_add_u32 v5, {ML}, v5')
    A('ds_write2_b32 v5, v18, v19 offset0:0 offset1:4')
    A('ds_write2_b32 v5, v16, v17 offset0:8 offset1:12')
else:
    A(f'ds_write2_b32 v5, v16, v17 offset0:{ML//4+8} offset1:{ML//4+12}')
A('v_mov_b32 v6, 1'); A(f'v_mov_b32 v5, {PF}')
A('ds_add_u32 v5, v6')
A('s_mov_b64 exec, -1')
stamp(4,'K')
lds_spin(OC,4,8,'oc')
kv_tail('K')
flush_stamps('K',0)
A('s_endpgm')

A('.p2align 6')
A('L_V:')
A('s_setprio 1')
A('s_sub_u32 s15, s3, 4')
A('v_lshlrev_b32 v3, 4, v0')
kvbase()
kernargs_wait()
srd(44,20,0x4000000)
A('s_barrier'); A('s_barrier')
for t in range(16):
    r=16+4*t
    A(f'buffer_load_dwordx4 v[{r}:{r+3}], v3, s[44:47], s{8+t//4} offen offset:{(t&3)*1024} nt')
A('s_setprio 2')
stamp(14,'V')
tag_ready(7)
selectors(8,104)
A('v_bfe_u32 v4, v0, 3, 1'); A('v_lshl_add_u32 v4, v4, 2, v2'); A('v_lshlrev_b32 v4, 5, v4'); A('s_lshl_b32 s8, s15, 8'); A('v_add_u32 v4, s8, v4')
A('v_lshrrev_b32 v5, 5, v0'); A('v_lshlrev_b32 v5, 4, v5'); A('s_lshl_b32 s8, s15, 2'); A('v_add_u32 v6, s8, v5')
A('v_lshrrev_b32 v121, 5, v0'); A('v_lshlrev_b32 v121, 3, v121'); A('v_lshrrev_b32 v122, 1, v1'); A('v_add_u32 v121, v121, v122'); A('v_lshlrev_b32 v121, 7, v121')
A('v_and_b32 v122, 1, v1'); A('v_lshl_add_u32 v120, v122, 5, v121'); A('v_and_b32 v122, 1, v2'); A('v_lshl_add_u32 v120, v122, 4, v120')
A('s_lshl_b32 s12, s4, 1'); A('s_add_u32 s12, s12, s5'); A('s_lshl_b32 s12, s12, 3'); A('s_add_u32 s12, s12, s6')
A('s_lshl_b32 s12, s12, 11'); A(f's_add_u32 s12, s12, {hex(OP)}')
A('v_lshlrev_b32 v122, 2, v0')
lds_spin(PF,4,104,'pf')
A(f'ds_read_b128 v[80:83], v4 offset:{PL}'); A(f'ds_read_b128 v[84:87], v4 offset:{PL+16}')
A(f'ds_read_b128 v[88:91], v5 offset:{ML}'); A(f'ds_read_b128 v[92:95], v5 offset:{ML+32}'); A(f'ds_read_b32 v96, v6 offset:{ML}')
A('s_waitcnt lgkmcnt(0)')
A('v_max3_f32 v97, v88, v89, v90'); A('v_max_f32 v97, v97, v91'); A('v_and_b32 v97, 0xfffff000, v97')
for k in range(4): A(f'v_sub_f32 v{88+k}, v{88+k}, v97')
A('v_sub_f32 v96, v96, v97')
for k in range(4): A(f'v_exp_f32 v{88+k}, v{88+k}')
A('v_exp_f32 v96, v96')
A('v_mul_f32 v99, v88, v92')
for k in range(1,4): A(f'v_fmac_f32 v99, v{88+k}, v{92+k}')
A('v_or_b32 v100, v97, v7'); A('v_bfi_b32 v101, s41, v7, v99'); A('v_mov_b32 v102, v100'); A('v_mov_b32 v103, v101')
for t in range(16):
    a=104+4*(t&1)
    buildA(a, 80+t//2, t&1, 8)
    A(f's_waitcnt vmcnt({15-t})')
    A('s_nop 0')
    c='0' if t==0 else 'v[112:115]'
    A(f'v_mfma_f32_16x16x32_bf16 v[112:115], v[{a}:{a+3}], v[{16+4*t}:{19+4*t}], {c}')
A('v_mov_b32 v104, 1'); A(f'v_mov_b32 v105, {OC}')
A('s_nop 5')
for r in range(4): A(f'v_mul_f32 v{112+r}, v96, v{112+r}')
for r in range(4): A(f'ds_add_f32 v122, v{112+r} offset:{OACC+256*r}')
A('s_mov_b64 exec, 1')
A('ds_add_rtn_u32 v104, v105, v104')
A('s_mov_b64 exec, -1')
stamp(5,'V')
A('s_waitcnt lgkmcnt(0)')
A('v_readfirstlane_b32 s8, v104')
A('s_cmp_lg_u32 s8, 3'); A('s_cbranch_scc1 L_Vnopub')
A(f'ds_read2st64_b32 v[112:113], v122 offset0:{OACC//256} offset1:{OACC//256+1}')
A(f'ds_read2st64_b32 v[114:115], v122 offset0:{OACC//256+2} offset1:{OACC//256+3}')
A('s_setprio 3')
A('s_waitcnt lgkmcnt(0)')
for r in range(4): A(f'v_bfi_b32 v{112+r}, s41, v7, v{112+r}')
A('buffer_store_dwordx4 v[112:115], v120, s[52:55], s12 offen sc1')
A('s_mov_b32 exec_lo, 0x5555'); A('s_mov_b32 exec_hi, 0x5555')
A('buffer_store_dwordx4 v[100:103], v121, s[52:55], s12 offen offset:64 sc1')
A('s_mov_b64 exec, -1')
A('L_Vnopub:')
stamp(6,'V')
kv_tail('V')
flush_stamps('V',4)
A('s_endpgm')

A('.p2align 6')
A('L_W:')
A('s_sub_u32 s15, s3, 8'); A('s_min_u32 s15, s15, 4')
A('s_mul_i32 s10, s2, 20'); A('s_add_u32 s10, s10, 128'); A('s_mov_b32 s9, 5')
A('s_sub_u32 s11, s2, 224'); A('s_lshl_b32 s11, s11, 2')
A('s_cmp_ge_u32 s2, 224'); A('s_cselect_b32 s10, s11, s10'); A('s_cselect_b32 s9, 1, s9')
A('s_cselect_b32 s14, 0x7f000000, 0')
A('v_lshlrev_b32 v3, 4, v1')
A('v_mov_b32 v4, 0x7f000000'); A('s_cmp_eq_u32 s15, 4'); A('s_cselect_b32 s60, 0xff00ff00, 0'); A('s_mov_b32 s61, s60')
A('v_cndmask_b32 v3, v3, v4, s[60:61]')
A(f'v_mul_u32_u24 v4, {4*1152}, v2'); A('v_add_u32 v4, v4, v3')
A('s_mul_i32 s8, s9, 1152'); A('v_mul_u32_u24 v5, s8, v2'); A('v_add_u32 v5, v5, v3')
A('v_and_b32 v6, 7, v0'); A('v_lshlrev_b32 v6, 1, v6'); A('v_bfe_u32 v9, v0, 3, 1'); A('v_add_u32 v6, v6, v9'); A('v_mul_u32_u24 v6, 4608, v6')
A('v_mul_u32_u24 v9, s9, v2'); A('v_add_u32 v6, v6, v9'); A('v_lshlrev_b32 v6, 2, v6')
A('s_lshl_b32 s11, s10, 2'); A(f's_add_u32 s11, s11, {hex(HP)}')
A('s_lshl_b32 s8, s15, 8')
A('s_mul_i32 s10, s10, 1152'); A('s_add_u32 s10, s10, s8')
A('s_add_u32 s13, s10, 1152'); A('s_add_u32 s13, s13, s14')
A('s_lshl_b32 s12, s4, 4'); A('s_add_u32 s12, s12, s7'); A(f's_mul_i32 s12, s12, {16*1152}'); A('s_add_u32 s12, s12, s8')
kernargs_wait()
srd(44,24,4096*1152); srd(48,30,4608*1152)
A('s_cmp_lg_u32 s3, 15'); A('s_cbranch_scc1 L_Wnogate')
srd(56,16,2304)
A('v_and_b32 v9, 31, v0'); A('v_mul_u32_u24 v9, 36, v9'); A('v_lshrrev_b32 v10, 5, v0'); A('v_mul_u32_u24 v10, 1152, v10'); A('v_add_u32 v10, v10, v9')
for k in range(3): A(f'buffer_load_dwordx3 v[{64+4*k}:{66+4*k}], v10, s[56:59], 0 offen offset:{12*k}')
srd(56,32,1152)
for k in range(3): A(f'buffer_load_dwordx3 v[{80+4*k}:{82+4*k}], v9, s[56:59], 0 offen offset:{12*k}')
A('L_Wnogate:')
A('s_barrier'); A('s_barrier')
A('s_cmp_lg_u32 s3, 15'); A('s_cbranch_scc1 L_Wnogate2')
A('s_waitcnt vmcnt(0)')
A('v_mov_b32 v100, 0')
for k in range(3):
    for i in range(3):
        x=64+4*k+i; w=80+4*k+i
        A(f'v_lshlrev_b32 v96, 16, v{x}'); A(f'v_lshlrev_b32 v97, 16, v{w}'); A(f'v_and_b32 v98, 0xffff0000, v{x}'); A(f'v_and_b32 v99, 0xffff0000, v{w}')
        A('v_mul_f32 v96, v96, v97'); A('v_mul_f32 v98, v98, v99')
        A('v_cvt_pk_bf16_f32 v96, v96, v98')
        A('v_lshlrev_b32 v97, 16, v96'); A('v_and_b32 v98, 0xffff0000, v96')
        A('v_add_f32 v100, v100, v97'); A('v_add_f32 v100, v100, v98')
A('s_nop 1')
allreduce('v_add_f32',[100],['x1','x2','hm','m','r16'],tmp=101)
A('v_cvt_pk_bf16_f32 v100, v100, v100'); A('v_and_b32 v100, 0xffff0000, v100')
A(f'v_mul_f32 v100, {hex(f2u(-1.4426950408889634))}, v100')
A('v_exp_f32 v100, v100'); A('s_nop 0'); A('v_add_f32 v100, 1.0, v100'); A('v_rcp_f32 v100, v100'); A('s_nop 0')
A('v_cvt_pk_bf16_f32 v100, v100, v100'); A('v_and_b32 v100, 0xffff0000, v100')
A('v_sub_f32 v101, 1.0, v100'); A('v_cvt_pk_bf16_f32 v101, v101, v101'); A('v_and_b32 v101, 0xffff0000, v101')
A('v_lshrrev_b32 v9, 5, v0'); A('v_lshlrev_b32 v9, 3, v9')
A(f'ds_write_b64 v9, v[100:101] offset:{GL}')
A('L_Wnogate2:')
A('buffer_load_dwordx4 v[64:67], v6, s[52:55], s11 offen sc1')
A('buffer_load_dword v68, v6, s[52:55], s11 offen offset:16 sc1')
A('buffer_load_dwordx4 v[16:19], v5, s[48:51], s10 offen nt')
for t in range(1,5): A(f'buffer_load_dwordx4 v[{16+4*t}:{19+4*t}], v5, s[48:51], s13 offen offset:{(t-1)*1152} nt')
for t in range(4): A(f'buffer_load_dwordx4 v[{36+4*t}:{39+4*t}], v4, s[44:47], s12 offen offset:{t*1152} nt')
A('s_setprio 2')
stamp(15,'W')
tag_ready(7)
selectors(8,104)
A('v_lshrrev_b32 v120, 5, v0'); A('v_lshlrev_b32 v121, 3, v120'); A('v_mul_u32_u24 v120, 2304, v120'); A('v_lshl_add_u32 v120, v3, 1, v120'); A('v_and_b32 v122, 1, v2'); A('v_lshl_add_u32 v120, v122, 4, v120')
A('s_mul_i32 s14, s2, 4608'); A('s_lshl_b32 s8, s15, 9'); A('s_add_u32 s14, s14, s8'); A(f's_add_u32 s14, s14, {hex(FP)}')
A('v_lshlrev_b32 v122, 6, v1'); A('v_lshl_add_u32 v122, v2, 4, v122')
A('v_lshlrev_b32 v123, 4, v1')
A('s_waitcnt vmcnt(9)')
A(f's_mov_b32 s62, {SPIN}')
A('L_hchk:')
for k in range(5): A(f'v_xor_b32 v{64+k}, v7, v{64+k}')
A('v_or3_b32 v69, v64, v65, v66'); A('v_or3_b32 v69, v69, v67, v68'); A('v_and_b32 v69, s41, v69')
A('v_cmp_ne_u32 vcc, 0, v69')
A('s_cbranch_vccz L_hgo')
A('s_sub_u32 s62, s62, 1'); A('s_cbranch_scc1 L_hgo')
A('buffer_load_dwordx4 v[64:67], v6, s[52:55], s11 offen sc1')
A('buffer_load_dword v68, v6, s[52:55], s11 offen offset:16 sc1')
A('s_waitcnt vmcnt(0)')
A('s_branch L_hchk')
A('L_hgo:')
stamp(13,'W')
allreduce('v_add_f32',[64,65,66,67,68],['x1','x2','hm'])
for k in range(5): A(f'v_max_f32 v{64+k}, 0, v{64+k}')
A('v_cvt_pk_bf16_f32 v64, v64, v65'); A('v_cvt_pk_bf16_f32 v65, v66, v67'); A('v_cvt_pk_bf16_f32 v66, v68, v68')
for t in range(5):
    a=104+4*(t&1)
    buildA(a, 64+t//2, t&1, 8)
    A(f's_waitcnt vmcnt({8-t})')
    A('s_nop 0')
    c='0' if t==0 else 'v[116:119]'
    A(f'v_mfma_f32_16x16x32_bf16 v[116:119], v[{a}:{a+3}], v[{16+4*t}:{19+4*t}], {c}')
A('s_barrier')
A(f'ds_read_b128 v[64:67], v122 offset:{OL}')
A(f'ds_read_b64 v[68:69], v123 offset:{SL}')
A(f'ds_read_b64 v[72:73], v121 offset:{GL}')
A('s_waitcnt lgkmcnt(1)')
A('v_mov_b32 v70, v68')
allreduce('v_max_f32',[70],['x1','x2','hm'])
A('v_sub_f32 v68, v68, v70'); A('v_exp_f32 v68, v68'); A('s_nop 0')
A('v_mul_f32 v69, v68, v69')
for k in range(4): A(f'v_mul_f32 v{64+k}, v68, v{64+k}')
allreduce('v_add_f32',[69,64,65,66,67],['x1','x2','hm'])
A('v_rcp_f32 v69, v69'); A('s_nop 0')
for k in range(4): A(f'v_mul_f32 v{64+k}, v69, v{64+k}')
A('v_cvt_pk_bf16_f32 v64, v64, v65'); A('v_cvt_pk_bf16_f32 v65, v66, v67')
for t in range(4): buildA(80+4*t, 64+t//2, t&1, 8)
A('s_waitcnt vmcnt(0) lgkmcnt(0)')
stamp(8,'W')
for t in range(4):
    c='0' if t==0 else 'v[112:115]'
    A(f'v_mfma_f32_16x16x32_bf16 v[112:115], v[{80+4*t}:{83+4*t}], v[{36+4*t}:{39+4*t}], {c}')
for r in range(4): A(f'v_mul_f32 v{116+r}, v73, v{116+r}')
A('s_nop 3')
for r in range(4): A(f'v_fma_f32 v{112+r}, v72, v{112+r}, v{116+r}')
for r in range(4): A(f'v_bfi_b32 v{112+r}, s41, v7, v{112+r}')
A('buffer_store_dwordx4 v[112:115], v120, s[52:55], s14 offen sc1')
stamp(9,'W')
flush_stamps('W',8)
A('L_end:')
A('s_endpgm')
A('.section .rodata,"a"'); A('.p2align 6'); A(f'.amdhsa_kernel {KNAME}')
A('  .amdhsa_next_free_vgpr 128'); A('  .amdhsa_next_free_sgpr 102'); A('  .amdhsa_accum_offset 128')
A('  .amdhsa_group_segment_fixed_size 0'); A('  .amdhsa_kernarg_size 96'); A('  .amdhsa_user_sgpr_count 2'); A('  .amdhsa_user_sgpr_kernarg_segment_ptr 1'); A('  .amdhsa_system_sgpr_workgroup_id_x 1')
A('  .amdhsa_float_denorm_mode_32 3')
A('.end_amdhsa_kernel')
open(out,'w').write('\n'.join(x for x in L if x is not None)+'\n')
print('lines',len(L),'ws end',hex(WS_END))
```

```python
import sys
KNAME='gated_mix__sliding_block_cached__dense_activation_relu__decode_kernel'
opts=dict(a.split('=') for a in sys.argv[2:])
STAMPS=int(opts.get('stamps','0'))
DBG=int(opts.get('dbg','0'))
PROBE=int(opts.get('probe','-1'))
PMUL=int(opts.get('pmul','2'))
def pol(n):
    p=opts.get(n,'nt').replace('+',' ')
    return '' if p=='none' else ' '+p
PKV=pol('pkv'); PW=pol('pw')
out=sys.argv[1]

EPOCH=0x0
QP=0x1000
OP=QP+0x40000
HP=OP+0x80000
FP=HP+8*2*4608*4
WS_END=FP+256*4608
WS_SIZE=0x10000000 if STAMPS else WS_END
STAMP_OFF=0x8000000
NST=16
QL=0x000; PL=0x200; ML=0x600; QF=0x640; PF=0x644; OC=0x648; FC=0x64c; GL=0x680; FACC=0x6C0; OACC=0x800; OL=0xC00; SL=0x1000
STL=0x1100
LDS=0x1200 if PROBE>=0 else 0x1100
SPIN=1<<17
SC=0.08838834764831845*1.4426950408889634
import struct
def f2u(f): return struct.unpack('<I',struct.pack('<f',f))[0]

L=[]
def A(s): L.append(s)
lab=[0]
def newlab(p):
    lab[0]+=1; return f'L_{p}{lab[0]}'

def srd(d,p,n):
    A(f's_mov_b32 s{d}, s{p}'); A(f's_mov_b32 s{d+1}, s{p+1}'); A(f's_mov_b32 s{d+2}, {hex(n)}'); A(f's_mov_b32 s{d+3}, 0x20000')
stamp_regs={}
def stamp(k, role):
    if PROBE==k:
        first={'K':0,'V':4,'W':8,'Q':12,'H':13}[role]
        sk=newlab('pk')
        A(f's_cmp_lg_u32 s3, {first}'); A(f's_cbranch_scc1 {sk}')
        A('s_memrealtime s[84:85]'); A('s_waitcnt lgkmcnt(0)'); A('v_mov_b32 v126, s84'); A(f'v_mov_b32 v127, {STL}'); A('ds_write_b32 v127, v126'); A('s_waitcnt lgkmcnt(0)')
        A(f'{sk}:')
    if not STAMPS: return
    lst=stamp_regs.setdefault(role,[])
    i=len(lst); lst.append(k)
    assert i<8
    A(f's_memrealtime s[{84+2*i}:{85+2*i}]')
def flush_stamps(role, cond=None):
    if not STAMPS: return
    lst=stamp_regs.get(role,[])
    skip=newlab('nost')
    if cond is not None:
        A(f's_cmp_lg_u32 s3, {cond}'); A(f's_cbranch_scc1 {skip}')
    A('s_waitcnt lgkmcnt(0)')
    A(f's_lshl_b32 s8, s2, 7'); A(f's_add_u32 s8, s8, {hex(STAMP_OFF)}')
    A('v_mov_b32 v3, 0')
    if DBG:
        srd(44,36,256); A('s_mov_b64 exec, 1')
    for i,k in enumerate(lst):
        A(f'v_mov_b32 v4, s{84+2*i}'); A(f'v_mov_b32 v5, s{85+2*i}')
        if DBG:
            if k==0: A('v_not_b32 v4, v4')
            A(f'buffer_atomic_umax v4, v3, s[44:47], 0 offen offset:{k*4}')
        else:
            A(f'buffer_store_dwordx2 v[4:5], v3, s[52:55], s8 offen offset:{k*8}')
        A('s_waitcnt vmcnt(0)')
    A(f'{skip}:')
def kernargs_wait():
    A('s_waitcnt lgkmcnt(0)')
    A(f's_load_dword s40, s[38:39], {EPOCH}')
    srd(52,38,WS_SIZE)
    A('s_mov_b32 s41, 0xfff')
def tag_ready(vt):
    A('s_waitcnt lgkmcnt(0)')
    A('s_add_u32 s42, s40, 1')
    A('s_and_b32 s40, s42, s41')
    A(f'v_mov_b32 v{vt}, s40')
def selectors(base, tmp):
    A(f'v_mov_b32 v{tmp}, 0x0c0c0100'); A(f'v_mov_b32 v{tmp+1}, 0x01000c0c')
    A('s_mov_b32 s60, 0xaaaaaaaa'); A('s_mov_b32 s61, 0xaaaaaaaa')
    A(f'v_cndmask_b32 v{tmp}, v{tmp}, v{tmp+1}, s[60:61]')
    A(f'v_mov_b32 v{tmp+1}, 0x0c0c0302'); A(f'v_mov_b32 v{tmp+2}, 0x03020c0c')
    A(f'v_cndmask_b32 v{tmp+1}, v{tmp+1}, v{tmp+2}, s[60:61]')
    A(f'v_mov_b32 v{tmp+2}, 0x0c0c0c0c')
    for d in range(4):
        m=(0x03030303<<(2*d))&0xffffffff
        A(f's_mov_b32 s60, {hex(m)}'); A(f's_mov_b32 s61, {hex(m)}')
        A(f'v_cndmask_b32 v{base+d}, v{tmp+2}, v{tmp}, s[60:61]')
        A(f'v_cndmask_b32 v{base+4+d}, v{tmp+2}, v{tmp+1}, s[60:61]')
def buildA(dst, src, odd, sel):
    for d in range(4):
        A(f'v_perm_b32 v{dst+d}, v{src}, v{src}, v{sel+(4 if odd else 0)+d}')
def lds_spin(addr, val, vt, name):
    l=newlab(name); d=newlab(name+'d')
    A(f'v_mov_b32 v{vt}, {addr}')
    A(f's_mov_b32 s62, {SPIN}')
    A(f'{l}:')
    A(f'ds_read_b32 v{vt+1}, v{vt}')
    A('s_sub_u32 s62, s62, 1')
    A('s_waitcnt lgkmcnt(0)')
    A(f'v_readfirstlane_b32 s63, v{vt+1}')
    A(f's_cbranch_scc1 {d}')
    A(f's_cmp_ge_u32 s63, {val}')
    A(f's_cbranch_scc1 {d}')
    A('s_sleep 1')
    A(f's_branch {l}')
    A(f'{d}:')
DPP=' row_mask:0xf bank_mask:0xf'
def allreduce(op, regs, steps, tmp=None):
    n=len(regs)
    pad=max(0,2-(n-1))
    ctl={'x1':'quad_perm:[1,0,3,2]','x2':'quad_perm:[2,3,0,1]','hm':'row_half_mirror','m':'row_mirror','ror4':'row_ror:4','ror8':'row_ror:8'}
    for s in steps:
        if s in ctl:
            if pad: A(f's_nop {pad-1}')
            for r in regs: A(f'{op}_dpp v{r}, v{r}, v{r} {ctl[s]}{DPP}')
        else:
            ins='v_permlane16_swap_b32' if s=='r16' else 'v_permlane32_swap_b32'
            for i,r in enumerate(regs): A(f'v_mov_b32 v{tmp+i}, v{r}')
            A('s_nop 1')
            for i,r in enumerate(regs): A(f'{ins} v{r}, v{tmp+i}')
            A('s_nop 0')
            for i,r in enumerate(regs): A(f'{op} v{r}, v{r}, v{tmp+i}')

A(f'; @launch grid=(256,1,1) block=(1024,1,1) lds={LDS}')
A('.amdgcn_target "amdgcn-amd-amdhsa--gfx950"')
A('.text')
A(f'.globl {KNAME}')
A('.p2align 8')
A(f'.type {KNAME},@function')
A(f'{KNAME}:')
if STAMPS or PROBE>=0: A('s_memrealtime s[82:83]')
A('s_cmp_ge_u32 s2, 256')
A('s_cbranch_scc1 L_end')
A('s_load_dwordx16 s[16:31], s[0:1], 0')
A('s_load_dwordx8 s[32:39], s[0:1], 64')
A('v_lshrrev_b32 v1, 6, v0')
A('v_and_b32 v0, 63, v0')
A('s_and_b32 s4, s2, 7')
A('v_readfirstlane_b32 s3, v1')
A('s_lshl_b32 s4, s4, 1'); A('s_bfe_u32 s5, s2, 0x10003'); A('s_add_u32 s4, s4, s5')
A('s_bfe_u32 s5, s2, 0x10004')
A('s_lshr_b32 s6, s2, 5')
A('s_lshr_b32 s7, s2, 4')
A('v_and_b32 v1, 15, v0')
A('v_lshrrev_b32 v2, 4, v0')
A('s_cmp_eq_u32 s3, 12'); A('s_cbranch_scc1 L_Q')
A('s_cmp_lt_u32 s3, 4');  A('s_cbranch_scc1 L_K')
A('s_cmp_lt_u32 s3, 8');  A('s_cbranch_scc1 L_V')
A('s_cmp_eq_u32 s3, 13'); A('s_cbranch_scc1 L_H')
A('s_cmp_eq_u32 s3, 14'); A('s_cbranch_scc1 L_H')
A('s_branch L_W')

def stage1(role):
    isq = role=='Q'
    pitch = 8192 if isq else 9216
    A('.p2align 6')
    A(f'L_{role}:')
    A('s_setprio 3')
    if isq:
        A('s_and_b32 s9, s7, 1')
        A('s_lshr_b32 s10, s7, 1')
    else:
        A('s_mov_b32 s11, s2')
        A('s_cmp_eq_u32 s3, 13'); A('s_cbranch_scc1 L_Hgo')
        A('s_add_u32 s11, s2, 32')
        A('s_cmp_ge_u32 s2, 224'); A('s_cbranch_scc1 L_Hgo')
        A('s_endpgm')
        A('L_Hgo:')
        A('s_lshr_b32 s9, s11, 3')
        A('s_and_b32 s10, s11, 7')
    A(f'v_mul_u32_u24 v3, {18*pitch}, v2')
    A('v_lshl_add_u32 v3, v1, 4, v3')
    A('v_bfe_u32 v4, v0, 3, 1'); A('v_mul_u32_u24 v4, 1152, v4')
    A('v_mul_u32_u24 v5, 36, v2'); A('v_add_u32 v4, v4, v5')
    A('s_mul_i32 s8, s10, 144')
    A(f's_mul_i32 s12, s10, {72*pitch}')
    if isq:
        A('s_lshl_b32 s13, s4, 9'); A('s_add_u32 s12, s12, s13'); A('s_lshl_b32 s13, s9, 8'); A('s_add_u32 s12, s12, s13')
    else:
        A('s_lshl_b32 s13, s9, 8'); A('s_add_u32 s12, s12, s13')
    kernargs_wait()
    srd(44,16,2304)
    if isq: srd(48,22,576*8192)
    else: srd(48,28,576*9216)
    if not isq: A('s_barrier')
    A('buffer_load_dwordx4 v[16:19], v4, s[44:47], s8 offen')
    A('buffer_load_dwordx4 v[20:23], v4, s[44:47], s8 offen offset:16')
    A('buffer_load_dword v24, v4, s[44:47], s8 offen offset:32')
    for t in range(18):
        A(f'buffer_load_dwordx4 v[{32+4*t}:{35+4*t}], v3, s[48:51], s12 offen{PW}')
        if t<17: A(f's_add_u32 s12, s12, {pitch}')
    if isq: A('s_barrier')
    A('s_barrier')
    selectors(8, 104)
    if isq:
        A('v_lshrrev_b32 v5, 1, v2'); A('v_lshlrev_b32 v5, 13, v5')
        A('s_lshl_b32 s13, s4, 14'); A('s_lshl_b32 s14, s10, 10'); A('s_add_u32 s13, s13, s14'); A('s_lshl_b32 s14, s9, 9'); A('s_add_u32 s13, s13, s14'); A(f's_add_u32 s13, s13, {hex(QP)}')
    else:
        A('v_lshrrev_b32 v5, 1, v2'); A(f'v_mul_u32_u24 v5, {4608*4}, v5')
        A(f's_mul_i32 s13, s10, {2*4608*4}'); A('s_lshl_b32 s14, s9, 9'); A('s_add_u32 s13, s13, s14'); A(f's_add_u32 s13, s13, {hex(HP)}')
    A('v_lshl_add_u32 v5, v1, 5, v5'); A('v_and_b32 v6, 1, v2'); A('v_lshl_add_u32 v5, v6, 4, v5')
    tag_ready(7)
    A('s_waitcnt vmcnt(18)')
    for t in range(18):
        a=104+4*(t&1)
        buildA(a, 16+t//2, t&1, 8)
        A(f's_waitcnt vmcnt({17-t})')
        A('s_nop 0')
        c='0' if t==0 else 'v[112:115]'
        A(f'v_mfma_f32_16x16x32_bf16 v[112:115], v[{a}:{a+3}], v[{32+4*t}:{35+4*t}], {c}')
    A('s_nop 7')
    for r in range(4): A(f'v_bfi_b32 v{112+r}, s41, v7, v{112+r}')
    A('buffer_store_dwordx4 v[112:115], v5, s[52:55], s13 offen sc1')
    stamp(1 if isq else 12, role)
    if isq:
        A('v_lshlrev_b32 v5, 4, v0')
        A('s_lshl_b32 s13, s4, 1'); A('s_add_u32 s13, s13, s5'); A('s_lshl_b32 s13, s13, 13'); A(f's_add_u32 s13, s13, {hex(QP)}'); A('s_add_u32 s14, s13, 4096')
        A(f's_mov_b32 s62, {SPIN}')
        A('L_qpoll:')
        for r in range(8):
            A(f'buffer_load_dwordx4 v[{32+4*r}:{35+4*r}], v5, s[52:55], s{13 if r<4 else 14} offen offset:{(r&3)*1024} sc1')
        A('s_sub_u32 s62, s62, 1')
        A('s_cbranch_scc1 L_qgo')
        A('v_mov_b32 v6, 0')
        for r in range(8):
            A(f's_waitcnt vmcnt({7-r})')
            for k in range(4): A(f'v_xor_b32 v{32+4*r+k}, v7, v{32+4*r+k}')
            A(f'v_or3_b32 v6, v6, v{32+4*r}, v{33+4*r}'); A(f'v_or3_b32 v6, v6, v{34+4*r}, v{35+4*r}')
        A('v_and_b32 v6, s41, v6')
        A('v_cmp_ne_u32 vcc, 0, v6')
        A('s_cbranch_vccnz L_qpoll')
        A('L_qgo:')
        A('s_waitcnt vmcnt(0)')
        for r in (1,3,5,7):
            for k in (0,2): A(f'v_pk_add_f32 v[{32+4*(r-1)+k}:{33+4*(r-1)+k}], v[{32+4*(r-1)+k}:{33+4*(r-1)+k}], v[{32+4*r+k}:{33+4*r+k}]')
        for r in (2,6):
            for k in (0,2): A(f'v_pk_add_f32 v[{32+4*(r-2)+k}:{33+4*(r-2)+k}], v[{32+4*(r-2)+k}:{33+4*(r-2)+k}], v[{32+4*r+k}:{33+4*r+k}]')
        for k in (0,2): A(f'v_pk_add_f32 v[{32+k}:{33+k}], v[{32+k}:{33+k}], v[{48+k}:{49+k}]')
        A('v_cvt_pk_bf16_f32 v32, v32, v33'); A('v_cvt_pk_bf16_f32 v33, v34, v35')
        A('v_lshlrev_b32 v5, 3, v0')
        A(f'ds_write_b64 v5, v[32:33] offset:{QL}')
        A('v_mov_b32 v6, 1'); A(f'v_mov_b32 v5, {QF}')
        A('s_waitcnt lgkmcnt(0)')
        A('ds_write_b32 v5, v6')
        stamp(2, role)
        flush_stamps(role)
    else:
        flush_stamps(role, 13)
    A('s_endpgm')
stage1('Q'); stage1('H')

def kv_tail(role):
    A('s_lshl_b32 s8, s4, 15'); A('s_lshl_b32 s9, s7, 7'); A('s_add_u32 s8, s8, s9'); A('s_lshl_b32 s9, s3, 12'); A('s_add_u32 s8, s8, s9'); A(f's_add_u32 s8, s8, {hex(OP)}')
    A('s_add_u32 s44, s38, s8'); A('s_addc_u32 s45, s39, 0')
    A('s_lshl_b32 s8, s3, 7'); A(f's_add_u32 s8, s8, {OL}'); A('s_lshl_b32 s9, s3, 5'); A(f's_add_u32 s9, s9, {SL-128}')
    A('v_mov_b32 v10, s8'); A('v_mov_b32 v11, s9')
    A('s_mov_b32 s60, 0'); A('s_mov_b32 s61, -1')
    A('v_cndmask_b32 v10, v10, v11, s[60:61]')
    A('v_lshl_add_u32 v10, v0, 2, v10')
    A('v_mov_b32 v12, v7')
    lp=newlab('opoll'); go=newlab('ogo')
    A(f's_mov_b32 s62, {SPIN}')
    A(f'{lp}:')
    A('s_load_dwordx16 s[64:79], s[44:45], 0 glc')
    A('s_load_dwordx16 s[16:31], s[44:45], 2048 glc')
    A('s_load_dwordx4 s[56:59], s[44:45], 64 glc')
    A('s_load_dwordx4 s[48:51], s[44:45], 2112 glc')
    A('s_sub_u32 s62, s62, 1')
    A(f's_cbranch_scc1 {go}')
    A('s_waitcnt lgkmcnt(0)')
    A('s_xor_b32 s8, s79, s40'); A('s_xor_b32 s9, s31, s40'); A('s_or_b32 s8, s8, s9')
    A('s_xor_b32 s9, s59, s40'); A('s_or_b32 s8, s8, s9'); A('s_xor_b32 s9, s51, s40'); A('s_or_b32 s8, s8, s9')
    A('s_and_b32 s8, s8, s41')
    A(f's_cbranch_scc1 {lp}')
    for i in range(16): A(f'v_writelane_b32 v12, s{64+i}, {i}')
    for i in range(16): A(f'v_writelane_b32 v12, s{16+i}, {16+i}')
    for i in range(4): A(f'v_writelane_b32 v12, s{56+i}, {32+i}')
    for i in range(4): A(f'v_writelane_b32 v12, s{48+i}, {36+i}')
    A('v_xor_b32 v13, v7, v12')
    A('v_and_b32 v14, s41, v13')
    A('v_cmp_ne_u32 vcc, 0, v14')
    A(f's_cbranch_vccnz {lp}')
    A(f'{go}:')
    A('s_waitcnt lgkmcnt(0)')
    A('s_mov_b32 exec_lo, -1'); A('s_mov_b32 exec_hi, 0xff')
    A('ds_write_b32 v10, v13')
    A('s_mov_b64 exec, -1')
    if role=='K': stamp(7, role)
    A('s_waitcnt lgkmcnt(0)')
    A('s_barrier')
    fin=newlab('fin')
    A('s_cmp_ge_u32 s2, 72'); A(f's_cbranch_scc1 {fin}')
    A('v_lshrrev_b32 v5, 2, v0'); A('v_mul_u32_u24 v5, 4608, v5'); A('v_and_b32 v6, 3, v0'); A('v_lshl_add_u32 v5, v6, 4, v5')
    A(f's_mul_i32 s8, s3, {32*4608}'); A('s_lshl_b32 s9, s2, 6'); A('s_add_u32 s8, s8, s9'); A(f's_add_u32 s8, s8, {hex(FP)}'); A(f's_add_u32 s9, s8, {16*4608}')
    A('v_bfe_u32 v8, v0, 2, 2'); A('v_lshl_add_u32 v8, v6, 2, v8'); A('v_lshlrev_b32 v8, 2, v8')
    lp=newlab('fpoll'); go=newlab('fgo')
    A(f's_mov_b32 s62, {SPIN}')
    A(f'{lp}:')
    A('buffer_load_dwordx4 v[16:19], v5, s[52:55], s8 offen sc1')
    A('buffer_load_dwordx4 v[20:23], v5, s[52:55], s9 offen sc1')
    A('s_sub_u32 s62, s62, 1')
    A(f's_cbranch_scc1 {go}')
    A('s_waitcnt vmcnt(0)')
    for k in range(8): A(f'v_xor_b32 v{16+k}, v7, v{16+k}')
    A('v_or3_b32 v9, v16, v17, v18'); A('v_or3_b32 v9, v9, v19, v20'); A('v_or3_b32 v9, v9, v21, v22'); A('v_or_b32 v9, v9, v23')
    A('v_and_b32 v9, s41, v9')
    A('v_cmp_ne_u32 vcc, 0, v9')
    A(f's_cbranch_vccnz {lp}')
    A(f'{go}:')
    A('s_waitcnt vmcnt(0)')
    if role=='K': stamp(10, role)
    for k in range(4): A(f'v_add_f32 v{16+k}, v{16+k}, v{20+k}')
    allreduce('v_add_f32',[16,17,18,19],['ror4','ror8'])
    A('s_mov_b32 s60, 0x00f000f0'); A('s_mov_b32 s61, 0x00f000f0'); A('v_cndmask_b32 v16, v16, v17, s[60:61]')
    A('s_mov_b32 s60, 0x0f000f00'); A('s_mov_b32 s61, 0x0f000f00'); A('v_cndmask_b32 v16, v16, v18, s[60:61]')
    A('s_mov_b32 s60, 0xf000f000'); A('s_mov_b32 s61, 0xf000f000'); A('v_cndmask_b32 v16, v16, v19, s[60:61]')
    A(f'ds_add_f32 v8, v16 offset:{FACC}')
    A('v_mov_b32 v9, 1'); A(f'v_mov_b32 v10, {FC}')
    A('s_mov_b64 exec, 1')
    A('ds_add_rtn_u32 v9, v10, v9')
    A('s_mov_b64 exec, -1')
    A('s_waitcnt lgkmcnt(0)')
    A('v_readfirstlane_b32 s8, v9')
    A('s_cmp_lg_u32 s8, 7'); A(f's_cbranch_scc1 {fin}')
    A('v_lshlrev_b32 v8, 3, v0')
    A('s_mov_b64 exec, 0xff')
    A(f'ds_read_b64 v[16:17], v8 offset:{FACC}')
    srd(44,34,2304)
    A('s_lshl_b32 s8, s2, 5')
    A('v_lshlrev_b32 v8, 2, v0')
    A('s_waitcnt lgkmcnt(0)')
    A('v_cvt_pk_bf16_f32 v16, v16, v17')
    A('buffer_store_dword v16, v8, s[44:47], s8 offen')
    if STAMPS:
        A('s_memrealtime s[80:81]'); A('s_waitcnt lgkmcnt(0)'); A('v_mov_b32 v20, s80'); A('v_mov_b32 v21, s81'); A('v_mov_b32 v22, 0')
        A(f's_lshl_b32 s8, s2, 7'); A(f's_add_u32 s8, s8, {hex(STAMP_OFF)}')
        if DBG:
            srd(44,36,256); A('s_mov_b64 exec, 1'); A('buffer_atomic_umax v20, v22, s[44:47], 0 offen offset:44')
        else: A('buffer_store_dwordx2 v[20:21], v22, s[52:55], s8 offen offset:88')
    A('s_mov_b64 exec, 1')
    A('s_cmp_lg_u32 s2, 0'); A(f's_cbranch_scc1 {fin}')
    if PROBE>=0:
        pl=newlab('pl')
        A('s_memrealtime s[80:81]'); A(f'v_mov_b32 v127, {STL}'); A('ds_read_b32 v126, v127'); A('s_waitcnt lgkmcnt(0)')
        A('v_readfirstlane_b32 s84, v126')
        if PROBE==11: A('s_mov_b32 s84, s80')
        A('s_sub_u32 s84, s84, s82'); A('s_min_u32 s84, s84, 10000'); A(f's_mul_i32 s84, s84, {PMUL}')
        A(f'{pl}:'); A('s_memrealtime s[86:87]'); A('s_waitcnt lgkmcnt(0)'); A('s_sub_u32 s86, s86, s80'); A('s_cmp_lt_u32 s86, s84'); A(f's_cbranch_scc1 {pl}')
    A('v_mov_b32 v9, s42'); A('v_mov_b32 v8, 0')
    A(f'buffer_store_dword v9, v8, s[52:55], 0 offen offset:{EPOCH} sc1')
    A(f'{fin}:')
    A('s_mov_b64 exec, -1')

def kvbase():
    A('s_lshl_b32 s12, s5, 4'); A('s_add_u32 s12, s12, s4'); A('s_lshl_b32 s12, s12, 21')
    A('s_lshl_b32 s13, s6, 16'); A('s_add_u32 s12, s12, s13'); A('s_add_u32 s12, s12, 0x180000')
    A('s_lshr_b32 s13, s2, 3'); A('s_add_u32 s13, s13, s2'); A('s_add_u32 s13, s13, s15')
    for t in range(4):
        A(f's_add_u32 s14, s13, {4*t}'); A('s_and_b32 s14, s14, 15'); A('s_lshl_b32 s14, s14, 12'); A(f's_add_u32 s{8+t}, s12, s14')

A('.p2align 6')
A('L_K:')
A('s_setprio 2')
A('s_mov_b32 s15, s3')
if STAMPS:
    stamp_regs['K']=[0]; A('s_mov_b64 s[84:85], s[82:83]') if False else None
A('v_mov_b32 v4, 0'); A('s_lshl_b32 s8, s3, 8'); A('v_lshl_add_u32 v5, v0, 2, s8')
A(f'ds_write_b32 v5, v4 offset:{OACC}')
A('v_lshlrev_b32 v5, 2, v0')
A(f'ds_write_b32 v5, v4 offset:{ML}')
A('v_lshlrev_b32 v3, 8, v1'); A('v_lshl_add_u32 v3, v2, 4, v3')
kvbase()
kernargs_wait()
srd(44,18,0x4000000)
A('s_barrier'); A('s_barrier')
for t in range(4):
    for ks in range(4):
        r=16+16*t+4*ks
        A(f'buffer_load_dwordx4 v[{r}:{r+3}], v3, s[44:47], s{8+t} offen offset:{ks*64}{PKV}')
tag_ready(7)
if STAMPS: A('s_mov_b64 s[84:85], s[82:83]')
A('v_and_b32 v5, 1, v0'); A('v_lshlrev_b32 v5, 8, v5'); A('v_lshl_add_u32 v5, v2, 4, v5')
A('v_and_b32 v6, 3, v0'); A('v_lshlrev_b32 v6, 5, v6'); A('v_lshrrev_b32 v8, 2, v0'); A('v_lshl_add_u32 v6, v8, 1, v6'); A('s_lshl_b32 s8, s3, 8'); A('v_add_u32 v6, s8, v6')
A(f's_mov_b32 s43, {hex(f2u(SC))}')
if STAMPS or PROBE==3:
    A('s_waitcnt vmcnt(0)'); stamp(3,'K')
lds_spin(QF,1,8,'qf')
for ks in range(4): A(f'ds_read_b128 v[{80+4*ks}:{83+4*ks}], v5 offset:{QL+ks*64}')
A('s_waitcnt vmcnt(0) lgkmcnt(0)')
for ks in range(4):
    for t in range(4):
        r=16+16*t+4*ks; d=96+4*t
        c='0' if ks==0 else f'v[{d}:{d+3}]'
        A(f'v_mfma_f32_16x16x32_bf16 v[{d}:{d+3}], v[{80+4*ks}:{83+4*ks}], v[{r}:{r+3}], {c}')
A('s_mov_b32 s60, 0xffff0000'); A('s_mov_b32 s61, 0'); A('s_mov_b32 s64, 0'); A('s_mov_b32 s65, 0xffff'); A('s_mov_b32 s66, 0'); A('s_mov_b32 s67, 0xffff0000')
A('s_nop 3')
for h in range(2):
    A(f'v_cndmask_b32 v{16+h}, v{96+h}, v{100+h}, s[60:61]')
for h in range(2):
    A(f'v_cndmask_b32 v{16+h}, v{16+h}, v{104+h}, s[64:65]')
for h in range(2):
    A(f'v_cndmask_b32 v{16+h}, v{16+h}, v{108+h}, s[66:67]')
A('v_mov_b32 v18, v16'); A('v_mov_b32 v19, v17')
allreduce('v_max_f32',[18,19],['x1','x2','hm','m','r16','r32'],tmp=20)
A('v_mul_f32 v18, s43, v18'); A('v_mul_f32 v19, s43, v19')
A('v_fma_f32 v16, v16, s43, -v18'); A('v_fma_f32 v17, v17, s43, -v19')
A('v_exp_f32 v16, v16'); A('v_exp_f32 v17, v17')
A('s_nop 0')
A('v_cvt_pk_bf16_f32 v22, v16, v17')
A(f'ds_write_b16 v6, v22 offset:{PL}')
A(f'ds_write_b16_d16_hi v6, v22 offset:{PL+128}')
allreduce('v_add_f32',[16,17],['x1','x2','hm','m','r16','r32'],tmp=20)
A('s_lshl_b32 s8, s3, 2'); A('v_mov_b32 v5, s8')
A('s_mov_b64 exec, 1')
A(f'ds_write2_b32 v5, v18, v19 offset0:{ML//4} offset1:{ML//4+4}') if ML//4+12<256 else None
if ML//4+12>=256:
    A(f'v_add_u32 v5, {ML}, v5')
    A('ds_write2_b32 v5, v18, v19 offset0:0 offset1:4')
    A('ds_write2_b32 v5, v16, v17 offset0:8 offset1:12')
else:
    A(f'ds_write2_b32 v5, v16, v17 offset0:{ML//4+8} offset1:{ML//4+12}')
A('v_mov_b32 v6, 1'); A(f'v_mov_b32 v5, {PF}')
A('ds_add_u32 v5, v6')
A('s_mov_b64 exec, -1')
stamp(4,'K')
lds_spin(OC,4,8,'oc')
kv_tail('K')
flush_stamps('K',0)
A('s_endpgm')

A('.p2align 6')
A('L_V:')
A('s_setprio 1')
A('s_sub_u32 s15, s3, 4')
A('v_lshlrev_b32 v3, 4, v0')
kvbase()
kernargs_wait()
srd(44,20,0x4000000)
A('s_barrier'); A('s_barrier')
for t in range(16):
    r=16+4*t
    A(f'buffer_load_dwordx4 v[{r}:{r+3}], v3, s[44:47], s{8+t//4} offen offset:{(t&3)*1024}{PKV}')
A('s_setprio 2')
stamp(14,'V')
tag_ready(7)
selectors(8,104)
A('v_bfe_u32 v4, v0, 3, 1'); A('v_lshl_add_u32 v4, v4, 2, v2'); A('v_lshlrev_b32 v4, 5, v4'); A('s_lshl_b32 s8, s15, 8'); A('v_add_u32 v4, s8, v4')
A('v_lshrrev_b32 v5, 5, v0'); A('v_lshlrev_b32 v5, 4, v5'); A('s_lshl_b32 s8, s15, 2'); A('v_add_u32 v6, s8, v5')
A('v_lshrrev_b32 v121, 5, v0'); A('v_lshlrev_b32 v121, 3, v121'); A('v_lshrrev_b32 v122, 1, v1'); A('v_add_u32 v121, v121, v122'); A('v_lshlrev_b32 v121, 7, v121')
A('v_and_b32 v122, 1, v1'); A('v_lshl_add_u32 v120, v122, 5, v121'); A('v_and_b32 v122, 1, v2'); A('v_lshl_add_u32 v120, v122, 4, v120')
A('s_lshl_b32 s12, s4, 1'); A('s_add_u32 s12, s12, s5'); A('s_lshl_b32 s12, s12, 3'); A('s_add_u32 s12, s12, s6')
A('s_lshl_b32 s12, s12, 11'); A(f's_add_u32 s12, s12, {hex(OP)}')
A('v_lshlrev_b32 v122, 2, v0')
lds_spin(PF,4,104,'pf')
A(f'ds_read_b128 v[80:83], v4 offset:{PL}'); A(f'ds_read_b128 v[84:87], v4 offset:{PL+16}')
A(f'ds_read_b128 v[88:91], v5 offset:{ML}'); A(f'ds_read_b128 v[92:95], v5 offset:{ML+32}'); A(f'ds_read_b32 v96, v6 offset:{ML}')
A('s_waitcnt lgkmcnt(0)')
A('v_max3_f32 v97, v88, v89, v90'); A('v_max_f32 v97, v97, v91'); A('v_and_b32 v97, 0xfffff000, v97')
for k in range(4): A(f'v_sub_f32 v{88+k}, v{88+k}, v97')
A('v_sub_f32 v96, v96, v97')
for k in range(4): A(f'v_exp_f32 v{88+k}, v{88+k}')
A('v_exp_f32 v96, v96')
A('v_mul_f32 v99, v88, v92')
for k in range(1,4): A(f'v_fmac_f32 v99, v{88+k}, v{92+k}')
A('v_or_b32 v100, v97, v7'); A('v_bfi_b32 v101, s41, v7, v99'); A('v_mov_b32 v102, v100'); A('v_mov_b32 v103, v101')
for t in range(16):
    a=104+4*(t&1)
    buildA(a, 80+t//2, t&1, 8)
    A(f's_waitcnt vmcnt({15-t})')
    A('s_nop 0')
    c='0' if t==0 else 'v[112:115]'
    A(f'v_mfma_f32_16x16x32_bf16 v[112:115], v[{a}:{a+3}], v[{16+4*t}:{19+4*t}], {c}')
A('v_mov_b32 v104, 1'); A(f'v_mov_b32 v105, {OC}')
A('s_nop 5')
for r in range(4): A(f'v_mul_f32 v{112+r}, v96, v{112+r}')
for r in range(4): A(f'ds_add_f32 v122, v{112+r} offset:{OACC+256*r}')
A('s_mov_b64 exec, 1')
A('ds_add_rtn_u32 v104, v105, v104')
A('s_mov_b64 exec, -1')
stamp(5,'V')
A('s_waitcnt lgkmcnt(0)')
A('v_readfirstlane_b32 s8, v104')
A('s_cmp_lg_u32 s8, 3'); A('s_cbranch_scc1 L_Vnopub')
A(f'ds_read2st64_b32 v[112:113], v122 offset0:{OACC//256} offset1:{OACC//256+1}')
A(f'ds_read2st64_b32 v[114:115], v122 offset0:{OACC//256+2} offset1:{OACC//256+3}')
A('s_setprio 3')
A('s_waitcnt lgkmcnt(0)')
for r in range(4): A(f'v_bfi_b32 v{112+r}, s41, v7, v{112+r}')
A('buffer_store_dwordx4 v[112:115], v120, s[52:55], s12 offen sc1')
A('s_mov_b32 exec_lo, 0x5555'); A('s_mov_b32 exec_hi, 0x5555')
A('buffer_store_dwordx4 v[100:103], v121, s[52:55], s12 offen offset:64 sc1')
A('s_mov_b64 exec, -1')
A('L_Vnopub:')
stamp(6,'V')
kv_tail('V')
flush_stamps('V',4)
A('s_endpgm')

A('.p2align 6')
A('L_W:')
A('s_sub_u32 s15, s3, 8'); A('s_min_u32 s15, s15, 4')
A('s_mul_i32 s10, s2, 20'); A('s_add_u32 s10, s10, 128'); A('s_mov_b32 s9, 5')
A('s_sub_u32 s11, s2, 224'); A('s_lshl_b32 s11, s11, 2')
A('s_cmp_ge_u32 s2, 224'); A('s_cselect_b32 s10, s11, s10'); A('s_cselect_b32 s9, 1, s9')
A('s_cselect_b32 s14, 0x7f000000, 0')
A('v_lshlrev_b32 v3, 4, v1')
A('v_mov_b32 v4, 0x7f000000'); A('s_cmp_eq_u32 s15, 4'); A('s_cselect_b32 s60, 0xff00ff00, 0'); A('s_mov_b32 s61, s60')
A('v_cndmask_b32 v3, v3, v4, s[60:61]')
A(f'v_mul_u32_u24 v4, {4*1152}, v2'); A('v_add_u32 v4, v4, v3')
A('s_mul_i32 s8, s9, 1152'); A('v_mul_u32_u24 v5, s8, v2'); A('v_add_u32 v5, v5, v3')
A('v_and_b32 v6, 7, v0'); A('v_lshlrev_b32 v6, 1, v6'); A('v_bfe_u32 v9, v0, 3, 1'); A('v_add_u32 v6, v6, v9'); A('v_mul_u32_u24 v6, 4608, v6')
A('v_mul_u32_u24 v9, s9, v2'); A('v_add_u32 v6, v6, v9'); A('v_lshlrev_b32 v6, 2, v6')
A('s_lshl_b32 s11, s10, 2'); A(f's_add_u32 s11, s11, {hex(HP)}')
A('s_lshl_b32 s8, s15, 8')
A('s_mul_i32 s10, s10, 1152'); A('s_add_u32 s10, s10, s8')
A('s_add_u32 s13, s10, 1152'); A('s_add_u32 s13, s13, s14')
A('s_lshl_b32 s12, s4, 4'); A('s_add_u32 s12, s12, s7'); A(f's_mul_i32 s12, s12, {16*1152}'); A('s_add_u32 s12, s12, s8')
kernargs_wait()
srd(44,24,4096*1152); srd(48,30,4608*1152)
A('s_cmp_lg_u32 s3, 15'); A('s_cbranch_scc1 L_Wnogate')
srd(56,16,2304)
A('v_and_b32 v9, 31, v0'); A('v_mul_u32_u24 v9, 36, v9'); A('v_lshrrev_b32 v10, 5, v0'); A('v_mul_u32_u24 v10, 1152, v10'); A('v_add_u32 v10, v10, v9')
for k in range(3): A(f'buffer_load_dwordx3 v[{64+4*k}:{66+4*k}], v10, s[56:59], 0 offen offset:{12*k}')
srd(56,32,1152)
for k in range(3): A(f'buffer_load_dwordx3 v[{80+4*k}:{82+4*k}], v9, s[56:59], 0 offen offset:{12*k}')
A('L_Wnogate:')
A('s_barrier'); A('s_barrier')
A('s_cmp_lg_u32 s3, 15'); A('s_cbranch_scc1 L_Wnogate2')
A('s_waitcnt vmcnt(0)')
A('v_mov_b32 v100, 0')
for k in range(3):
    for i in range(3):
        x=64+4*k+i; w=80+4*k+i
        A(f'v_lshlrev_b32 v96, 16, v{x}'); A(f'v_lshlrev_b32 v97, 16, v{w}'); A(f'v_and_b32 v98, 0xffff0000, v{x}'); A(f'v_and_b32 v99, 0xffff0000, v{w}')
        A('v_mul_f32 v96, v96, v97'); A('v_mul_f32 v98, v98, v99')
        A('v_cvt_pk_bf16_f32 v96, v96, v98')
        A('v_lshlrev_b32 v97, 16, v96'); A('v_and_b32 v98, 0xffff0000, v96')
        A('v_add_f32 v100, v100, v97'); A('v_add_f32 v100, v100, v98')
A('s_nop 1')
allreduce('v_add_f32',[100],['x1','x2','hm','m','r16'],tmp=101)
A('v_cvt_pk_bf16_f32 v100, v100, v100'); A('v_and_b32 v100, 0xffff0000, v100')
A(f'v_mul_f32 v100, {hex(f2u(-1.4426950408889634))}, v100')
A('v_exp_f32 v100, v100'); A('s_nop 0'); A('v_add_f32 v100, 1.0, v100'); A('v_rcp_f32 v100, v100'); A('s_nop 0')
A('v_cvt_pk_bf16_f32 v100, v100, v100'); A('v_and_b32 v100, 0xffff0000, v100')
A('v_sub_f32 v101, 1.0, v100'); A('v_cvt_pk_bf16_f32 v101, v101, v101'); A('v_and_b32 v101, 0xffff0000, v101')
A('v_lshrrev_b32 v9, 5, v0'); A('v_lshlrev_b32 v9, 3, v9')
A(f'ds_write_b64 v9, v[100:101] offset:{GL}')
A('L_Wnogate2:')
A('buffer_load_dwordx4 v[64:67], v6, s[52:55], s11 offen sc1')
A('buffer_load_dword v68, v6, s[52:55], s11 offen offset:16 sc1')
A(f'buffer_load_dwordx4 v[16:19], v5, s[48:51], s10 offen{PW}')
for t in range(1,5): A(f'buffer_load_dwordx4 v[{16+4*t}:{19+4*t}], v5, s[48:51], s13 offen offset:{(t-1)*1152}{PW}')
for t in range(4): A(f'buffer_load_dwordx4 v[{36+4*t}:{39+4*t}], v4, s[44:47], s12 offen offset:{t*1152}{PW}')
A('s_setprio 2')
stamp(15,'W')
tag_ready(7)
selectors(8,104)
A('v_lshrrev_b32 v120, 5, v0'); A('v_lshlrev_b32 v121, 3, v120'); A('v_mul_u32_u24 v120, 2304, v120'); A('v_lshl_add_u32 v120, v3, 1, v120'); A('v_and_b32 v122, 1, v2'); A('v_lshl_add_u32 v120, v122, 4, v120')
A('s_mul_i32 s14, s2, 4608'); A('s_lshl_b32 s8, s15, 9'); A('s_add_u32 s14, s14, s8'); A(f's_add_u32 s14, s14, {hex(FP)}')
A('v_lshlrev_b32 v122, 6, v1'); A('v_lshl_add_u32 v122, v2, 4, v122')
A('v_lshlrev_b32 v123, 4, v1')
A('s_waitcnt vmcnt(9)')
A(f's_mov_b32 s62, {SPIN}')
A('L_hchk:')
for k in range(5): A(f'v_xor_b32 v{64+k}, v7, v{64+k}')
A('v_or3_b32 v69, v64, v65, v66'); A('v_or3_b32 v69, v69, v67, v68'); A('v_and_b32 v69, s41, v69')
A('v_cmp_ne_u32 vcc, 0, v69')
A('s_cbranch_vccz L_hgo')
A('s_sub_u32 s62, s62, 1'); A('s_cbranch_scc1 L_hgo')
A('buffer_load_dwordx4 v[64:67], v6, s[52:55], s11 offen sc1')
A('buffer_load_dword v68, v6, s[52:55], s11 offen offset:16 sc1')
A('s_waitcnt vmcnt(0)')
A('s_branch L_hchk')
A('L_hgo:')
stamp(13,'W')
allreduce('v_add_f32',[64,65,66,67,68],['x1','x2','hm'])
for k in range(5): A(f'v_max_f32 v{64+k}, 0, v{64+k}')
A('v_cvt_pk_bf16_f32 v64, v64, v65'); A('v_cvt_pk_bf16_f32 v65, v66, v67'); A('v_cvt_pk_bf16_f32 v66, v68, v68')
for t in range(5):
    a=104+4*(t&1)
    buildA(a, 64+t//2, t&1, 8)
    A(f's_waitcnt vmcnt({8-t})')
    A('s_nop 0')
    c='0' if t==0 else 'v[116:119]'
    A(f'v_mfma_f32_16x16x32_bf16 v[116:119], v[{a}:{a+3}], v[{16+4*t}:{19+4*t}], {c}')
A('s_barrier')
A(f'ds_read_b128 v[64:67], v122 offset:{OL}')
A(f'ds_read_b64 v[68:69], v123 offset:{SL}')
A(f'ds_read_b64 v[72:73], v121 offset:{GL}')
A('s_waitcnt lgkmcnt(1)')
A('v_mov_b32 v70, v68')
allreduce('v_max_f32',[70],['x1','x2','hm'])
A('v_sub_f32 v68, v68, v70'); A('v_exp_f32 v68, v68'); A('s_nop 0')
A('v_mul_f32 v69, v68, v69')
for k in range(4): A(f'v_mul_f32 v{64+k}, v68, v{64+k}')
allreduce('v_add_f32',[69,64,65,66,67],['x1','x2','hm'])
A('v_rcp_f32 v69, v69'); A('s_nop 0')
for k in range(4): A(f'v_mul_f32 v{64+k}, v69, v{64+k}')
A('v_cvt_pk_bf16_f32 v64, v64, v65'); A('v_cvt_pk_bf16_f32 v65, v66, v67')
for t in range(4): buildA(80+4*t, 64+t//2, t&1, 8)
A('s_waitcnt vmcnt(0) lgkmcnt(0)')
stamp(8,'W')
for t in range(4):
    c='0' if t==0 else 'v[112:115]'
    A(f'v_mfma_f32_16x16x32_bf16 v[112:115], v[{80+4*t}:{83+4*t}], v[{36+4*t}:{39+4*t}], {c}')
for r in range(4): A(f'v_mul_f32 v{116+r}, v73, v{116+r}')
A('s_nop 3')
for r in range(4): A(f'v_fma_f32 v{112+r}, v72, v{112+r}, v{116+r}')
for r in range(4): A(f'v_bfi_b32 v{112+r}, s41, v7, v{112+r}')
A('buffer_store_dwordx4 v[112:115], v120, s[52:55], s14 offen sc1')
stamp(9,'W')
flush_stamps('W',8)
A('L_end:')
A('s_endpgm')
A('.section .rodata,"a"'); A('.p2align 6'); A(f'.amdhsa_kernel {KNAME}')
A('  .amdhsa_next_free_vgpr 128'); A('  .amdhsa_next_free_sgpr 102'); A('  .amdhsa_accum_offset 128')
A('  .amdhsa_group_segment_fixed_size 0'); A('  .amdhsa_kernarg_size 96'); A('  .amdhsa_user_sgpr_count 2'); A('  .amdhsa_user_sgpr_kernarg_segment_ptr 1'); A('  .amdhsa_system_sgpr_workgroup_id_x 1')
A('  .amdhsa_float_denorm_mode_32 3')
A('.end_amdhsa_kernel')
open(out,'w').write('\n'.join(x for x in L if x is not None)+'\n')
print('lines',len(L),'ws end',hex(WS_END))
```

```python
import sys, struct
KNAME='gated_mix__sliding_block_cached__dense_activation_relu__decode_kernel'
opts=dict(a.split('=') for a in sys.argv[2:])
out=sys.argv[1]
def I(n,d): return int(opts.get(n,d))
STAMPS=I('stamps',0); PROBE=I('probe',-1); PMUL=I('pmul',2); FINE=I('fine',0)
SPIN=I('spin',1<<17); GSPIN=I('gspin',1<<17); WIN=I('win',32)
THR=[int(x) for x in opts.get('thr','26,28,31,32,32').split(',')]
RAMP=[int(x) for x in opts.get('ramp','0,8,16,27').split(',')]
SLP=I('slp',1); WIN2=I('win2',0); N2=I('n2',64); FAST=I('fast',1); NOQ=I('noq',0); NOH=I('noh',0); QFAST=I('qfast',0); WDK=I('wdk',0); HTH=I('hth',20); PSW=I('psw',1); QSL=I('qsl',4); PT=I('pt',0); NOST=I('nostore',0); NOPOLL=I('nopoll',0)
NRED=72
def pol(n):
    p=opts.get(n,'nt').replace('+',' ')
    return '' if p=='none' else ' '+p
PKV=pol('pkv'); PW=pol('pw')
def f2u(f): return struct.unpack('<I',struct.pack('<f',f))[0]
EPOCH=0x0
QP=0x1000
OP=QP+0x40000
HP=OP+0x80000
FP=HP+7*2*4608*4
QA=FP+256*4608
FL=QA+0x40000
WS_END=FL+256*128
WS_SIZE=0x10000000 if STAMPS else WS_END
STAMP_OFF=0x8000000
OOB=0x7f000000
VL=0x10000; SB=0x20000
QL=SB+0x000; PL=SB+0x200; ML=SB+0x600; QF=SB+0x640; PF=SB+0x644; OC=SB+0x648; FC=SB+0x64c; LD=SB+0x650; CR=SB+0x654; YHF=SB+0x658; YOF=SB+0x65c; WD=SB+0x660
GL=SB+0x680; GF=SB+0x690; OACC=SB+0x800; FSL=SB+0x1800; STL=SB+0x1A00; YH=SB+0x1C00; YO=SB+0x2000
LDS=SB+0x2200
SC=0.08838834764831845*1.4426950408889634
L=[]
def A(*ss):
    for s in ss:
        if NOST and s.startswith('buffer_store') and s.endswith(' sc1'): s='s_nop 0'
        if NOPOLL and s.startswith('buffer_load') and s.endswith(' sc1'): s='s_nop 0'
        L.append(s)
lab=[0]
def newlab(p):
    lab[0]+=1; return f'L_{p}{lab[0]}'
FIRST={'C':3 if FINE else 0,'L':4,'Q':5,'H':6,'X':7,'W':11 if FINE==2 else 8}
def srd(d,p,n):
    A(f's_mov_b32 s{d}, s{p}', f's_mov_b32 s{d+1}, s{p+1}', f's_mov_b32 s{d+2}, {hex(n)}', f's_mov_b32 s{d+3}, 0x20000')
stamp_regs={}
def stamp(k, role):
    if PROBE==k:
        sk=newlab('pk')
        A(f's_cmp_lg_u32 s3, {FIRST[role]}', f's_cbranch_scc1 {sk}')
        A('s_memrealtime s[84:85]','s_waitcnt lgkmcnt(0)','v_mov_b32 v30, s84',f'v_mov_b32 v31, {STL}','ds_write_b32 v31, v30','s_waitcnt lgkmcnt(0)')
        A(f'{sk}:')
    if not STAMPS: return
    lst=stamp_regs.setdefault(role,[])
    i=len(lst); lst.append(k); assert i<8
    A(f's_memrealtime s[{84+2*i}:{85+2*i}]')
def stamp_now(k):
    if not STAMPS: return
    A('s_memrealtime s[80:81]','s_waitcnt lgkmcnt(0)','v_mov_b32 v20, s80','v_mov_b32 v21, s81','v_mov_b32 v22, 0')
    A('s_lshl_b32 s8, s2, 7', f's_add_u32 s8, s8, {hex(STAMP_OFF)}')
    A(f'buffer_store_dwordx2 v[20:21], v22, s[52:55], s8 offen offset:{8*k}')
def flush_stamps(role):
    if not STAMPS: return
    lst=stamp_regs.get(role,[])
    skip=newlab('nost')
    A('s_mov_b64 exec, -1', f's_cmp_lg_u32 s3, {FIRST[role]}', f's_cbranch_scc1 {skip}', 's_waitcnt lgkmcnt(0)')
    A('s_lshl_b32 s8, s2, 7', f's_add_u32 s8, s8, {hex(STAMP_OFF)}', 'v_mov_b32 v3, 0')
    for i,k in enumerate(lst):
        A(f'v_mov_b32 v4, s{84+2*i}', f'v_mov_b32 v5, s{85+2*i}', f'buffer_store_dwordx2 v[4:5], v3, s[52:55], s8 offen offset:{k*8}', 's_waitcnt vmcnt(0)')
    A(f'{skip}:')
def epoch_load():
    A(f's_load_dword s40, s[38:39], {EPOCH}')
    srd(52,38,WS_SIZE)
    A('s_mov_b32 s41, 0xfff')
def tag_ready():
    A('s_waitcnt lgkmcnt(0)','s_add_u32 s42, s40, 1','s_and_b32 s40, s42, s41','v_mov_b32 v7, s40')
def selectors(base, tmp):
    A(f'v_mov_b32 v{tmp}, 0x0c0c0100', f'v_mov_b32 v{tmp+1}, 0x01000c0c', 's_mov_b32 s60, 0xaaaaaaaa', 's_mov_b32 s61, 0xaaaaaaaa')
    A(f'v_cndmask_b32 v{tmp}, v{tmp}, v{tmp+1}, s[60:61]')
    A(f'v_mov_b32 v{tmp+1}, 0x0c0c0302', f'v_mov_b32 v{tmp+2}, 0x03020c0c')
    A(f'v_cndmask_b32 v{tmp+1}, v{tmp+1}, v{tmp+2}, s[60:61]')
    A(f'v_mov_b32 v{tmp+2}, 0x0c0c0c0c')
    for d in range(4):
        m=(0x03030303<<(2*d))&0xffffffff
        A(f's_mov_b32 s60, {hex(m)}', f's_mov_b32 s61, {hex(m)}')
        A(f'v_cndmask_b32 v{base+d}, v{tmp+2}, v{tmp}, s[60:61]', f'v_cndmask_b32 v{base+4+d}, v{tmp+2}, v{tmp+1}, s[60:61]')
def buildA(dst, src, odd, sel=8):
    for d in range(4): A(f'v_perm_b32 v{dst+d}, v{src}, v{src}, v{sel+(4 if odd else 0)+d}')
def mfma(d,a,b,first):
    c='0' if first else f'v[{d}:{d+3}]'
    A(f'v_mfma_f32_16x16x32_bf16 v[{d}:{d+3}], v[{a}:{a+3}], v[{b}:{b+3}], {c}')
def lds_spin(addr, val, vt, name, sleep=1):
    l=newlab(name); d=newlab(name+'d')
    A(f'v_mov_b32 v{vt}, {hex(addr)}', f's_mov_b32 s62, {SPIN}', f'{l}:', f'ds_read_b32 v{vt+1}, v{vt}', 's_sub_u32 s62, s62, 1', 's_waitcnt lgkmcnt(0)')
    A(f'v_readfirstlane_b32 s63, v{vt+1}', f's_cbranch_scc1 {d}', f's_cmp_ge_u32 s63, {val}')
    if sleep: A(f's_cbranch_scc1 {d}', f's_sleep {sleep*SLP}', f's_branch {l}')
    else: A(f's_cbranch_scc0 {l}')
    A(f'{d}:')
def mpoll(loads, name, chk, init='-1'):
    lp=newlab(name); go=newlab(name+'go')
    for i,_ in enumerate(loads): A(f's_mov_b64 s[{72+2*i}:{73+2*i}], {init}')
    A(f's_mov_b32 s62, {GSPIN}', f'{lp}:')
    for i,(d,n,t) in enumerate(loads):
        sk=newlab('sk')
        A(f's_mov_b64 exec, s[{72+2*i}:{73+2*i}]', f's_cbranch_execz {sk}', t, f'{sk}:')
    A('s_sub_u32 s62, s62, 1', f's_cbranch_scc1 {go}', 's_waitcnt vmcnt(0)')
    for i,(d,n,t) in enumerate(loads):
        A(f's_mov_b64 exec, s[{72+2*i}:{73+2*i}]')
        for k in range(n): A(f'v_xor_b32 v{d+k}, v7, v{d+k}')
        if n==4: A(f'v_or3_b32 v{chk}, v{d}, v{d+1}, v{d+2}', f'v_or_b32 v{chk}, v{chk}, v{d+3}', f'v_and_b32 v{chk}, s41, v{chk}')
        else: A(f'v_and_b32 v{chk}, s41, v{d}')
        A(f'v_cmp_ne_u32 s[{72+2*i}:{73+2*i}], 0, v{chk}')
    A('s_nop 0', 's_or_b64 s[76:77], s[72:73], s[74:75]', f's_cbranch_scc1 {lp}', f'{go}:', 's_mov_b64 exec, -1', 's_waitcnt vmcnt(0)')
DPP=' row_mask:0xf bank_mask:0xf'
def allreduce(op, regs, steps, tmp=None):
    n=len(regs); pad=max(0,2-(n-1))
    ctl={'x1':'quad_perm:[1,0,3,2]','x2':'quad_perm:[2,3,0,1]','hm':'row_half_mirror','m':'row_mirror','ror4':'row_ror:4','ror8':'row_ror:8'}
    for s in steps:
        if s in ctl:
            if pad: A(f's_nop {pad-1}')
            for r in regs: A(f'{op}_dpp v{r}, v{r}, v{r} {ctl[s]}{DPP}')
        else:
            ins='v_permlane16_swap_b32' if s=='r16' else 'v_permlane32_swap_b32'
            for i,r in enumerate(regs): A(f'v_mov_b32 v{tmp+i}, v{r}')
            A('s_nop 1')
            for i,r in enumerate(regs): A(f'{ins} v{r}, v{tmp+i}')
            A('s_nop 0')
            for i,r in enumerate(regs): A(f'{op} v{r}, v{r}, v{tmp+i}')
def pkadd(d,a,b):
    for k in (0,2): A(f'v_pk_add_f32 v[{d+k}:{d+k+1}], v[{a+k}:{a+k+1}], v[{b+k}:{b+k+1}]')
BB=('s_barrier','s_barrier')

A(f'; @launch grid=(256,1,1) block=(832,1,1) lds={LDS}')
A('.amdgcn_target "amdgcn-amd-amdhsa--gfx950"','.text',f'.globl {KNAME}','.p2align 8',f'.type {KNAME},@function',f'{KNAME}:')
if STAMPS or PROBE>=0: A('s_memrealtime s[82:83]')
A('s_cmp_ge_u32 s2, 256','s_cbranch_scc1 L_end')
A('s_load_dwordx16 s[16:31], s[0:1], 0','s_load_dwordx8 s[32:39], s[0:1], 64')
A('v_lshrrev_b32 v1, 6, v0','v_and_b32 v0, 63, v0','s_and_b32 s4, s2, 7','v_readfirstlane_b32 s3, v1')
A('s_lshl_b32 s4, s4, 1','s_bfe_u32 s5, s2, 0x10003','s_add_u32 s4, s4, s5')
A('s_bfe_u32 s5, s2, 0x10004','s_lshr_b32 s6, s2, 5','s_lshr_b32 s7, s2, 4')
A('v_and_b32 v1, 15, v0','v_lshrrev_b32 v2, 4, v0')
A('s_cmp_eq_u32 s3, 5','s_cbranch_scc1 L_Q','s_cmp_eq_u32 s3, 6','s_cbranch_scc1 L_H','s_cmp_eq_u32 s3, 4','s_cbranch_scc1 L_L')
A('s_cmp_lt_u32 s3, 4','s_cbranch_scc1 L_C','s_cmp_eq_u32 s3, 7','s_cbranch_scc1 L_X','s_branch L_W')

def reducer(role):
    fin=newlab('fin')
    A(f's_cmp_ge_u32 s2, {NRED}', f's_cbranch_scc1 {fin}', 's_setprio 0')
    A('v_lshlrev_b32 v5, 4, v0','v_and_b32 v6, 3, v0')
    A('s_lshl_b32 s8, s2, 14','s_lshl_b32 s9, s3, 11','s_add_u32 s8, s8, s9',f's_add_u32 s8, s8, {hex(FP)}')
    A('v_bfe_u32 v8, v0, 2, 2','v_lshl_add_u32 v8, v6, 2, v8','v_lshlrev_b32 v8, 5, v8','s_lshl_b32 s10, s3, 2',f's_add_u32 s10, s10, {hex(FSL)}','v_add_u32 v8, s10, v8')
    A('v_mov_b32 v11, 1',f'v_mov_b32 v10, {hex(FC)}','v_lshlrev_b32 v12, 5, v0',f'v_add_u32 v12, {hex(FSL)}, v12','v_lshlrev_b32 v13, 1, v0')
    srd(44,34,2304)
    A('s_lshl_b32 s10, s2, 5')
    A('s_mov_b32 s64, 0x00f000f0','s_mov_b32 s65, 0x00f000f0','s_mov_b32 s66, 0x0f000f00','s_mov_b32 s67, 0x0f000f00','s_mov_b32 s68, 0xf000f000','s_mov_b32 s69, 0xf000f000')
    A('s_barrier')
    mpoll([(16,4,'buffer_load_dwordx4 v[16:19], v5, s[52:55], s8 offen sc1'),(20,4,'buffer_load_dwordx4 v[20:23], v5, s[52:55], s8 offen offset:1024 sc1')],'fp',9)
    if role=='C': stamp(10, role)
    for k in range(4): A(f'v_add_f32 v{16+k}, v{16+k}, v{20+k}')
    allreduce('v_add_f32',[16,17,18,19],['ror4','ror8'])
    A('v_cndmask_b32 v16, v16, v17, s[64:65]','v_cndmask_b32 v16, v16, v18, s[66:67]','v_cndmask_b32 v16, v16, v19, s[68:69]')
    allreduce('v_add_f32',[16],['r16','r32'],tmp=17)
    A('s_mov_b64 exec, 0xffff','ds_write_b32 v8, v16','s_mov_b64 exec, 1','ds_add_rtn_u32 v9, v10, v11','s_mov_b64 exec, 0xffff','s_waitcnt lgkmcnt(0)')
    A('v_readfirstlane_b32 s8, v9','s_cmp_lg_u32 s8, 7',f's_cbranch_scc1 {fin}')
    A('ds_read_b128 v[16:19], v12','ds_read_b128 v[20:23], v12 offset:16','s_waitcnt lgkmcnt(0)')
    pkadd(16,16,20)
    A('v_pk_add_f32 v[16:17], v[16:17], v[18:19]','v_add_f32 v16, v16, v17','v_cvt_pk_bf16_f32 v16, v16, v16')
    A('buffer_store_short v16, v13, s[44:47], s10 offen')
    stamp_now(11)
    A('s_mov_b64 exec, 1','s_cmp_lg_u32 s2, 0',f's_cbranch_scc1 {fin}')
    if PROBE>=0:
        pl=newlab('pl')
        A('s_memrealtime s[80:81]',f'v_mov_b32 v31, {STL}','ds_read_b32 v30, v31','s_waitcnt lgkmcnt(0)','v_readfirstlane_b32 s84, v30')
        if PROBE==11: A('s_mov_b32 s84, s80')
        A('s_sub_u32 s84, s84, s82','s_min_u32 s84, s84, 10000',f's_mul_i32 s84, s84, {PMUL}')
        A(f'{pl}:','s_memrealtime s[86:87]','s_waitcnt lgkmcnt(0)','s_sub_u32 s86, s86, s80','s_cmp_lt_u32 s86, s84',f's_cbranch_scc1 {pl}')
    A('v_mov_b32 v9, s42','v_mov_b32 v8, 0',f'buffer_store_dword v9, v8, s[52:55], 0 offen offset:{EPOCH} sc1')
    A(f'{fin}:')
    flush_stamps(role)
    A('s_endpgm')

def gemv_loop(n, credits):
    A(f's_waitcnt vmcnt({n})')
    for t in range(n):
        a=(28,120)[t&1]
        buildA(a, 16+t//2, t&1)
        A(f's_waitcnt vmcnt({n-1-t})')
        A('s_nop 0')
        mfma(124,a,32+4*t,t==0)
        if t in credits: A('s_mov_b64 exec, 1','ds_add_u32 v6, v3','s_mov_b64 exec, -1')
    A('s_nop 7')
    for r in range(4): A(f'v_bfi_b32 v{124+r}, s41, v7, v{124+r}')
    A('buffer_store_dwordx4 v[124:127], v5, s[52:55], s13 offen sc1')

A('.p2align 6','L_Q:','s_setprio 3')
A('s_and_b32 s9, s7, 1','s_lshr_b32 s10, s7, 1')
A(f'v_mul_u32_u24 v3, {18*8192}, v2','v_lshl_add_u32 v3, v1, 4, v3')
A('v_bfe_u32 v4, v0, 3, 1','v_mul_u32_u24 v4, 1152, v4','v_mul_u32_u24 v5, 36, v2','v_add_u32 v4, v4, v5')
A('s_mul_i32 s8, s10, 144',f's_mul_i32 s12, s10, {72*8192}','s_lshl_b32 s13, s4, 9','s_add_u32 s12, s12, s13','s_lshl_b32 s13, s9, 8','s_add_u32 s12, s12, s13')
A('v_lshrrev_b32 v5, 1, v2','v_lshlrev_b32 v5, 13, v5','v_lshl_add_u32 v5, v1, 5, v5','v_and_b32 v6, 1, v2','v_lshl_add_u32 v5, v6, 4, v5')
A('s_lshl_b32 s13, s4, 14','s_lshl_b32 s14, s10, 10','s_add_u32 s13, s13, s14','s_lshl_b32 s14, s9, 9','s_add_u32 s13, s13, s14',f's_add_u32 s13, s13, {hex(QP)}')
A('s_waitcnt lgkmcnt(0)')
srd(44,16,2304); srd(48,22,576*8192)
A('buffer_load_dwordx4 v[16:19], v4, s[44:47], s8 offen','buffer_load_dwordx4 v[20:23], v4, s[44:47], s8 offen offset:16','buffer_load_dword v24, v4, s[44:47], s8 offen offset:32')
for t in range(18):
    A(f'buffer_load_dwordx4 v[{32+4*t}:{35+4*t}], v3, s[48:51], s12 offen{PW}')
    if t<17: A('s_add_u32 s12, s12, 8192')
A(*BB)
epoch_load()
selectors(8, 104)
tag_ready()
A('s_getreg_b32 s15, hwreg(HW_REG_XCC_ID, 0, 3)','s_lshl_b32 s8, s42, 3','s_or_b32 s15, s15, s8')
A('v_lshlrev_b32 v26, 7, v0','v_mov_b32 v27, s15','s_lshl_b32 s14, s4, 11','s_lshl_b32 s8, s7, 2','s_add_u32 s14, s14, s8',f's_add_u32 s14, s14, {hex(FL)}')
A(f'v_mov_b32 v6, {hex(CR)}','v_mov_b32 v3, 1')
gemv_loop(18,(8,17))
if QFAST: A(f's_add_u32 s13, s13, {QA-QP}','buffer_store_dwordx4 v[124:127], v5, s[52:55], s13 offen')
A('s_mov_b64 exec, 0xffff','buffer_store_dword v27, v26, s[52:55], s14 offen sc1','s_mov_b64 exec, -1')
stamp(1,'Q')
A('v_lshlrev_b32 v5, 4, v0')
A('s_lshl_b32 s13, s4, 1','s_add_u32 s13, s13, s5','s_lshl_b32 s13, s13, 13',f's_add_u32 s13, s13, {hex(QP)}','s_add_u32 s14, s13, 4096')
A('s_lshl_b32 s8, s4, 4','s_add_u32 s8, s8, s7','s_lshl_b32 s8, s8, 7',f's_add_u32 s8, s8, {hex(FL)}','s_add_u32 s46, s38, s8','s_addc_u32 s47, s39, 0')
A('s_mov_b32 s8, 1',f's_mov_b32 s62, {GSPIN}','L_qprobe:',f's_sleep {QSL}','s_load_dwordx16 s[64:79], s[46:47], 0 glc','s_sub_u32 s62, s62, 1','s_cbranch_scc1 L_qfetch0','s_waitcnt lgkmcnt(0)')
A('s_xor_b32 s8, s64, s15')
for p in range(1,16): A(f's_xor_b32 s9, s{64+p}, s15','s_or_b32 s8, s8, s9')
A('s_lshr_b32 s9, s8, 3')
A('s_cbranch_scc1 L_qprobe','L_qfetch0:',f's_mov_b32 s62, {GSPIN}','s_waitcnt lgkmcnt(0)')
if QFAST: A('s_cmp_eq_u32 s8, 0',f's_cselect_b32 s9, {QA-QP}, 0','s_add_u32 s13, s13, s9','s_add_u32 s14, s14, s9')
if FINE==1: stamp(8,'Q')
A('L_qfetch:')
if NOQ: A('s_branch L_qgo')
for r in range(8): A(f'buffer_load_dwordx4 v[{32+4*r}:{35+4*r}], v5, s[52:55], s{13 if r<4 else 14} offen offset:{(r&3)*1024} sc1')
A('s_sub_u32 s62, s62, 1','s_cbranch_scc1 L_qgo','v_mov_b32 v6, 0')
for r in range(8):
    A(f's_waitcnt vmcnt({7-r})')
    for k in range(4): A(f'v_xor_b32 v{32+4*r+k}, v7, v{32+4*r+k}')
    A(f'v_or3_b32 v6, v6, v{32+4*r}, v{33+4*r}',f'v_or3_b32 v6, v6, v{34+4*r}, v{35+4*r}')
A('v_and_b32 v6, s41, v6','v_cmp_ne_u32 vcc, 0, v6','s_cbranch_vccnz L_qfetch','L_qgo:','s_waitcnt vmcnt(0)')
for r in (0,2,4,6): pkadd(32+4*r,32+4*r,36+4*r)
pkadd(32,32,40); pkadd(48,48,56); pkadd(32,32,48)
A('v_cvt_pk_bf16_f32 v32, v32, v33','v_cvt_pk_bf16_f32 v33, v34, v35','v_lshlrev_b32 v5, 3, v0',f'v_add_u32 v5, {hex(QL)}, v5','ds_write_b64 v5, v[32:33]')
A('s_cmp_eq_u32 s8, 0',f's_cselect_b32 s9, {1+FAST}, 1','v_mov_b32 v6, s9',f'v_mov_b32 v5, {hex(QF)}','ds_write_b32 v5, v6')
stamp(2,'Q')
A('v_lshlrev_b32 v123, 11, v1','v_lshl_add_u32 v122, v2, 4, v123')
A('s_lshl_b32 s43, s4, 15','s_lshl_b32 s8, s7, 7','s_add_u32 s43, s43, s8',f's_add_u32 s43, s43, {hex(OP)}')
A('v_lshlrev_b32 v121, 3, v0',f'v_add_u32 v121, {hex(YO)}, v121',f'v_mov_b32 v120, {hex(YOF)}','v_mov_b32 v119, 1')
lds_spin(OC,4,104,'oc',sleep=1)
if WDK: lds_spin(WD,WDK,104,'wd',sleep=0)
mpoll([(64,4,'buffer_load_dwordx4 v[64:67], v122, s[52:55], s43 offen sc1'),(68,4,'buffer_load_dwordx4 v[68:71], v123, s[52:55], s43 offen offset:64 sc1')],'op',74)
stamp(7,'Q')
allreduce('v_max_f32',[70],['x1','x2','hm'])
A('v_sub_f32 v68, v68, v70','v_exp_f32 v68, v68','s_nop 0','v_mul_f32 v69, v68, v69')
for k in range(4): A(f'v_mul_f32 v{64+k}, v68, v{64+k}')
allreduce('v_add_f32',[69,64,65,66,67],['x1','x2','hm'])
A('v_rcp_f32 v69, v69','s_nop 0')
for k in range(4): A(f'v_mul_f32 v{64+k}, v69, v{64+k}')
A('v_cvt_pk_bf16_f32 v64, v64, v65','v_cvt_pk_bf16_f32 v65, v66, v67','ds_write_b64 v121, v[64:65]','ds_write_b32 v120, v119')
reducer('Q')

A('.p2align 6','L_H:','s_setprio 3')
A('s_mul_i32 s9, s2, 293','s_lshr_b32 s9, s9, 11','s_mul_i32 s10, s9, 7','s_sub_u32 s10, s2, s10')
A('s_mul_i32 s11, s10, 88','s_mul_i32 s12, s10, 80','s_add_u32 s12, s12, 16','s_min_u32 s11, s11, s12')
A('s_cmp_lt_u32 s10, 2','s_cselect_b32 s14, 22, 20',f's_cselect_b32 s15, 0, {hex(OOB)}')
A('s_mul_i32 s8, s14, 9216','v_mul_u32_u24 v3, s8, v2','v_lshl_add_u32 v3, v1, 4, v3')
A('v_bfe_u32 v4, v0, 3, 1','v_mul_u32_u24 v4, 1152, v4','s_lshl_b32 s8, s14, 1','v_mul_u32_u24 v5, s8, v2','v_add_u32 v4, v4, v5')
A('s_lshl_b32 s8, s11, 1','s_mul_i32 s12, s11, 9216','s_lshl_b32 s13, s9, 8','s_add_u32 s12, s12, s13')
A('v_lshrrev_b32 v5, 1, v2',f'v_mul_u32_u24 v5, {4608*4}, v5','v_lshl_add_u32 v5, v1, 5, v5','v_and_b32 v6, 1, v2','v_lshl_add_u32 v5, v6, 4, v5')
A(f's_mul_i32 s13, s10, {2*4608*4}','s_lshl_b32 s14, s9, 9','s_add_u32 s13, s13, s14',f's_add_u32 s13, s13, {hex(HP)}')
A('s_cmp_ge_u32 s2, 252',f's_cselect_b32 s12, {hex(OOB)}, s12',f's_cselect_b32 s13, {hex(OOB)}, s13')
A('s_waitcnt lgkmcnt(0)')
srd(44,16,2304); srd(48,28,576*9216)
A('s_barrier')
A('buffer_load_dwordx4 v[16:19], v4, s[44:47], s8 offen','buffer_load_dwordx4 v[20:23], v4, s[44:47], s8 offen offset:16','buffer_load_dwordx3 v[24:26], v4, s[44:47], s8 offen offset:32')
for t in range(22):
    A(f'buffer_load_dwordx4 v[{32+4*t}:{35+4*t}], v3, s[48:51], s12 offen{PW}')
    if t<21: A('s_add_u32 s12, s12, 9216')
    if t==19: A('s_add_u32 s12, s12, s15')
A('s_barrier')
epoch_load()
selectors(8, 120)
tag_ready()
A(f'v_mov_b32 v6, {hex(CR)}','v_mov_b32 v3, 1')
gemv_loop(22,(10,))
stamp(12,'H')
A('v_and_b32 v6, 7, v0','v_lshlrev_b32 v6, 1, v6','v_bfe_u32 v9, v0, 3, 1','v_add_u32 v6, v6, v9',f'v_mul_u32_u24 v6, {4608*4}, v6')
A('v_and_b32 v9, 1, v2','v_lshl_add_u32 v9, v9, 2, v6','v_lshl_add_u32 v6, v2, 4, v6')
A('s_mul_i32 s11, s2, 72',f's_add_u32 s11, s11, {hex(HP)}')
A('v_lshlrev_b32 v121, 4, v0',f'v_add_u32 v121, {hex(YH)}, v121',f'v_mov_b32 v120, {hex(YHF)}','v_mov_b32 v119, 1')
for k in range(5): A(f'v_mov_b32 v{64+k}, 0')
A('s_mov_b32 s78, 0x7f7f7f7f','s_mov_b32 s79, 0x7f7f7f7f')
lds_spin(LD,HTH,104,'hl',sleep=4)
if not NOH: mpoll([(64,4,'buffer_load_dwordx4 v[64:67], v6, s[52:55], s11 offen sc1'),(68,1,'buffer_load_dword v68, v9, s[52:55], s11 offen offset:64 sc1')],'hp',69,init='s[78:79]')
stamp(13,'H')
allreduce('v_add_f32',[64,65,66,67,68],['x1','x2','hm'])
for k in range(5): A(f'v_max_f32 v{64+k}, 0, v{64+k}')
A('v_cvt_pk_bf16_f32 v64, v64, v65','v_cvt_pk_bf16_f32 v65, v66, v67','v_cvt_pk_bf16_f32 v66, v68, v68','ds_write_b128 v121, v[64:67]','ds_write_b32 v120, v119')
reducer('H')

A('.p2align 6','L_L:','s_setprio 3')
for u in range(4): A(f'v_add_u32 v8, {4*u}, v2','v_xor_b32 v8, v8, v1','v_lshlrev_b32 v8, 4, v8',f'v_lshl_add_u32 v{12+u}, v2, 8, v8')
A('v_lshlrev_b32 v3, 4, v0')
A('s_lshl_b32 s12, s5, 4','s_add_u32 s12, s12, s4','s_lshl_b32 s12, s12, 21','s_lshl_b32 s13, s6, 16','s_add_u32 s12, s12, s13','s_add_u32 s12, s12, 0x180000')
A('s_lshr_b32 s13, s2, 3','s_add_u32 s13, s13, s2')
for i in range(16): A(f's_add_u32 s14, s13, {i}','s_and_b32 s14, s14, 15','s_lshl_b32 s14, s14, 12',f's_add_u32 s{64+i}, s12, s14')
A(f'v_mov_b32 v9, {hex(LD)}','s_waitcnt lgkmcnt(0)')
epoch_load()
srd(44,18,0x4000000); srd(48,20,0x4000000)
A(*BB)
n=0; sig=0
def signal(upto):
    global sig
    if upto>sig:
        sig=upto
        A(f'v_mov_b32 v10, {upto}','ds_write_b32 v9, v10')
for i in range(32):
    for u in range(4):
        for c in range(3):
            if n==RAMP[c]: lds_spin(CR,c+1,16,'cr',sleep=0)
        if u==0: A(f's_mov_b32 m0, {hex(i*4096)}')
        w = RAMP[3] if n==RAMP[3] else (WIN2 if (WIN2 and n>=N2) else WIN)
        if n>=w:
            A(f's_waitcnt vmcnt({w-1})')
            signal((n-w+1)//4)
        elif u==0: A('s_nop 0')
        if i<16: A(f'buffer_load_dwordx4 v{12+u}, s[44:47], s{64+i} offen offset:{u*1024}{PKV} lds')
        else: A(f'buffer_load_dwordx4 v3, s[48:51], s{64+i-16} offen offset:{u*1024}{PKV} lds')
        n+=1
stamp(14,'L')
while sig<32:
    A(f's_waitcnt vmcnt({128-4*(sig+1)})')
    signal(sig+1)
stamp(3,'L')
tag_ready()
reducer('L')

A('.p2align 6','L_C:','s_setprio 2')
A('v_mov_b32 v4, 0','v_lshlrev_b32 v5, 2, v0',f'v_add_u32 v5, {hex(ML)}, v5','ds_write_b32 v5, v4')
A('v_lshlrev_b32 v122, 4, v0',f'v_add_u32 v122, {hex(OACC)}, v122','s_lshl_b32 s8, s3, 10','v_add_u32 v125, s8, v122')
A('s_waitcnt lgkmcnt(0)')
epoch_load()
A(*BB)
selectors(8,104)
A('s_lshl_b32 s8, s3, 12')
for ks in range(4): A(f'v_add_u32 v4, {4*ks}, v2','v_xor_b32 v4, v4, v1','v_lshlrev_b32 v4, 4, v4','v_lshl_add_u32 v4, v1, 8, v4',f'v_add_u32 v{116+ks}, s8, v4')
A('v_lshlrev_b32 v3, 4, v0',f's_add_u32 s9, s8, {hex(VL)}','v_add_u32 v3, s9, v3')
A('v_and_b32 v5, 1, v0','v_lshlrev_b32 v5, 8, v5','v_lshl_add_u32 v5, v2, 4, v5',f'v_add_u32 v5, {hex(QL)}, v5')
A('s_lshl_b32 s8, s3, 8',f's_add_u32 s8, s8, {hex(PL)}')
A('v_and_b32 v6, 3, v0','v_lshlrev_b32 v6, 5, v6','v_lshrrev_b32 v4, 2, v0','v_lshl_add_u32 v6, v4, 1, v6','v_add_u32 v6, s8, v6')
A('v_bfe_u32 v4, v0, 3, 1','v_lshl_add_u32 v4, v4, 2, v2','v_lshlrev_b32 v4, 5, v4','v_add_u32 v123, s8, v4')
A('v_lshrrev_b32 v124, 5, v0','v_lshlrev_b32 v124, 4, v124',f'v_add_u32 v124, {hex(ML)}, v124')
A('v_lshrrev_b32 v121, 5, v0','v_lshlrev_b32 v121, 3, v121','v_lshrrev_b32 v4, 1, v1','v_add_u32 v121, v121, v4','v_lshlrev_b32 v121, 7, v121')
A('v_and_b32 v4, 1, v1','v_lshl_add_u32 v120, v4, 5, v121','v_and_b32 v4, 1, v2','v_lshl_add_u32 v120, v4, 4, v120')
A('s_lshl_b32 s12, s4, 1','s_add_u32 s12, s12, s5','s_lshl_b32 s12, s12, 3','s_add_u32 s12, s12, s6','s_lshl_b32 s12, s12, 11',f's_add_u32 s12, s12, {hex(OP)}')
A(f's_mov_b32 s43, {hex(f2u(SC))}')
A('s_mov_b32 s64, 0xffff0000','s_mov_b32 s65, 0','s_mov_b32 s66, 0','s_mov_b32 s67, 0xffff','s_mov_b32 s68, 0','s_mov_b32 s69, 0xffff0000')
tag_ready()
if STAMPS:
    stamp_regs['C']=[0]; A('s_mov_b64 s[84:85], s[82:83]')
if PT:
    lds_spin(LD,4,16,'pt',sleep=4)
    A('s_cmp_lg_u32 s3, 0','s_cbranch_scc1 L_Cnopt','buffer_load_dwordx4 v[76:79], v120, s[52:55], s12 offen','L_Cnopt:')
lds_spin(QF,1,16,'qf',sleep=2)
A('s_mov_b32 s73, s63')
for ks in range(4): A(f'ds_read_b128 v[{80+4*ks}:{83+4*ks}], v5 offset:{ks*64}')
A('s_add_u32 s13, s3, 13')
lds_spin(LD,'s13',16,'kl')
A('s_mov_b32 s72, s63','s_waitcnt vmcnt(0)')
for t in range(4):
    for ks in range(4): A(f'ds_read_b128 v[{16+16*t+4*ks}:{19+16*t+4*ks}], v{116+ks} offset:{t*16384}')
for t in range(4):
    A(f's_waitcnt lgkmcnt({12-4*t})')
    for ks in range(4): mfma(96+4*t, 80+4*ks, 16+16*t+4*ks, ks==0)
A('s_nop 7')
for h in range(2): A(f'v_cndmask_b32 v{16+h}, v{96+h}, v{100+h}, s[64:65]')
for h in range(2): A(f'v_cndmask_b32 v{16+h}, v{16+h}, v{104+h}, s[66:67]')
for h in range(2): A(f'v_cndmask_b32 v{16+h}, v{16+h}, v{108+h}, s[68:69]')
A('v_mov_b32 v18, v16','v_mov_b32 v19, v17')
allreduce('v_max_f32',[18,19],['x1','x2','hm','m','r16','r32'],tmp=20)
A('v_mul_f32 v18, s43, v18','v_mul_f32 v19, s43, v19','v_fma_f32 v16, v16, s43, -v18','v_fma_f32 v17, v17, s43, -v19')
A('v_exp_f32 v16, v16','v_exp_f32 v17, v17','s_nop 0','v_cvt_pk_bf16_f32 v22, v16, v17')
A('ds_write_b16 v6, v22','ds_write_b16_d16_hi v6, v22 offset:128','ds_read_b128 v[80:83], v123','ds_read_b128 v[84:87], v123 offset:16')
allreduce('v_add_f32',[16,17],['x1','x2','hm','m','r16','r32'],tmp=20)
A('s_lshl_b32 s8, s3, 2',f's_add_u32 s8, s8, {hex(ML)}','v_mov_b32 v5, s8','s_mov_b32 s70, -1','s_mov_b32 s71, 0')
A('v_cndmask_b32 v96, v19, v18, s[70:71]')
A('s_mov_b64 exec, 1','ds_write2_b32 v5, v18, v19 offset0:0 offset1:4','ds_write2_b32 v5, v16, v17 offset0:8 offset1:12')
A('v_mov_b32 v6, 1',f'v_mov_b32 v5, {hex(PF)}','ds_add_u32 v5, v6','s_mov_b64 exec, -1')
stamp(4,'C')
def factors():
    lds_spin(PF,4,104,'pf')
    A('ds_read_b128 v[88:91], v124','ds_read_b128 v[92:95], v124 offset:32','s_waitcnt lgkmcnt(0)')
    A('v_max3_f32 v97, v88, v89, v90','v_max_f32 v97, v97, v91','v_and_b32 v97, 0xfffff000, v97')
    for k in range(4): A(f'v_sub_f32 v{88+k}, v{88+k}, v97')
    A('v_sub_f32 v96, v96, v97')
    for k in range(4): A(f'v_exp_f32 v{88+k}, v{88+k}')
    A('v_exp_f32 v96, v96','v_mul_f32 v99, v88, v92')
    for k in range(1,4): A(f'v_fmac_f32 v99, v{88+k}, v{92+k}')
    A('v_or_b32 v100, v97, v7','v_bfi_b32 v101, s41, v7, v99','v_mov_b32 v102, v100','v_mov_b32 v103, v101')
    A('v_mov_b32 v106, 1',f'v_mov_b32 v107, {hex(OC)}')
A('s_waitcnt lgkmcnt(0)')
for tau in range(4):
    for u in range(4): buildA(32+4*u, 80+(4*tau+u)//2, u&1)
    if tau==3: factors()
    sk=newlab('vsk')
    A(f's_add_u32 s13, s3, {17+4*tau}','s_cmp_ge_u32 s72, s13',f's_cbranch_scc1 {sk}')
    lds_spin(LD,'s13',104,'vl',sleep=0)
    A('s_mov_b32 s72, s63',f'{sk}:')
    for u in range(4): A(f'ds_read_b128 v[{16+4*u}:{19+4*u}], v3 offset:{tau*16384+u*1024}')
    for u in range(4):
        A(f's_waitcnt lgkmcnt({3-u})')
        mfma(112,32+4*u,16+4*u,tau==0 and u==0)
A('s_nop 7')
for r in range(4): A(f'v_mul_f32 v{112+r}, v96, v{112+r}')
A('ds_write_b128 v125, v[112:115]','s_mov_b64 exec, 1','ds_add_rtn_u32 v106, v107, v106','s_mov_b64 exec, -1','s_waitcnt lgkmcnt(0)')
A('v_readfirstlane_b32 s8, v106','s_cmp_lg_u32 s8, 3','s_cbranch_scc1 L_Cnopub')
for w in range(4): A(f'ds_read_b128 v[{16+4*w}:{19+4*w}], v122 offset:{1024*w}')
A('s_setprio 3','s_waitcnt lgkmcnt(2)')
pkadd(16,16,20)
A('s_waitcnt lgkmcnt(0)')
pkadd(24,24,28); pkadd(112,16,24)
for r in range(4): A(f'v_bfi_b32 v{112+r}, s41, v7, v{112+r}')
A('s_cmp_eq_u32 s73, 2','s_cbranch_scc1 L_Cfast')
A('buffer_store_dwordx4 v[112:115], v120, s[52:55], s12 offen sc1')
A('s_mov_b32 exec_lo, 0x5555','s_mov_b32 exec_hi, 0x5555','buffer_store_dwordx4 v[100:103], v121, s[52:55], s12 offen offset:64 sc1','s_branch L_Cpubd')
A('L_Cfast:','buffer_store_dwordx4 v[112:115], v120, s[52:55], s12 offen')
A('s_mov_b32 exec_lo, 0x5555','s_mov_b32 exec_hi, 0x5555','buffer_store_dwordx4 v[100:103], v121, s[52:55], s12 offen offset:64')
A('L_Cpubd:','s_mov_b64 exec, -1')
stamp_now(6)
A('L_Cnopub:')
stamp(5,'C')
reducer('C')

A('.p2align 6','L_X:')
A('v_and_b32 v9, 31, v0','v_mul_u32_u24 v9, 36, v9','v_lshrrev_b32 v10, 5, v0','v_mul_u32_u24 v10, 1152, v10','v_add_u32 v10, v10, v9')
A('s_waitcnt lgkmcnt(0)')
epoch_load()
srd(44,16,2304); srd(48,32,1152)
A(*BB)
for k in range(3): A(f'buffer_load_dwordx3 v[{64+4*k}:{66+4*k}], v10, s[44:47], 0 offen offset:{12*k}')
for k in range(3): A(f'buffer_load_dwordx3 v[{80+4*k}:{82+4*k}], v9, s[48:51], 0 offen offset:{12*k}')
tag_ready()
A('v_mov_b32 v100, 0','s_waitcnt vmcnt(0)')
for k in range(3):
    for i in range(3):
        x=64+4*k+i; w=80+4*k+i
        A(f'v_lshlrev_b32 v96, 16, v{x}',f'v_lshlrev_b32 v97, 16, v{w}',f'v_and_b32 v98, 0xffff0000, v{x}',f'v_and_b32 v99, 0xffff0000, v{w}')
        A('v_mul_f32 v96, v96, v97','v_mul_f32 v98, v98, v99','v_cvt_pk_bf16_f32 v96, v96, v98','v_lshlrev_b32 v97, 16, v96','v_and_b32 v98, 0xffff0000, v96')
        A('v_add_f32 v100, v100, v97','v_add_f32 v100, v100, v98')
allreduce('v_add_f32',[100],['x1','x2','hm','m','r16'],tmp=101)
A('v_cvt_pk_bf16_f32 v100, v100, v100','v_and_b32 v100, 0xffff0000, v100',f'v_mul_f32 v100, {hex(f2u(-1.4426950408889634))}, v100')
A('v_exp_f32 v100, v100','s_nop 0','v_add_f32 v100, 1.0, v100','v_rcp_f32 v100, v100','s_nop 0')
A('v_cvt_pk_bf16_f32 v100, v100, v100','v_and_b32 v100, 0xffff0000, v100')
A('v_sub_f32 v101, 1.0, v100','v_cvt_pk_bf16_f32 v101, v101, v101','v_and_b32 v101, 0xffff0000, v101')
A('v_lshrrev_b32 v9, 5, v0','v_lshlrev_b32 v9, 3, v9',f'v_add_u32 v9, {hex(GL)}, v9','ds_write_b64 v9, v[100:101]')
A('v_mov_b32 v9, 1',f'v_mov_b32 v10, {hex(GF)}','ds_write_b32 v10, v9')
reducer('X')

A('.p2align 6','L_W:')
A('s_sub_u32 s15, s3, 8')
A('v_lshlrev_b32 v3, 4, v1',f'v_mov_b32 v9, {hex(OOB)}','s_cmp_eq_u32 s15, 4','s_cselect_b32 s60, 0xff00ff00, 0','s_mov_b32 s61, s60')
A('v_cndmask_b32 v3, v3, v9, s[60:61]')
A(f'v_mul_u32_u24 v4, {4*1152}, v2','v_add_u32 v4, v4, v3')
A('v_mul_u32_u24 v5, 1152, v2','v_add_u32 v5, v5, v3','s_mov_b32 s62, 0','s_mov_b32 s63, -1','v_cndmask_b32 v5, v5, v9, s[62:63]')
A('s_lshl_b32 s8, s15, 8',f's_mul_i32 s10, s2, {18*1152}','s_add_u32 s10, s10, s8',f's_add_u32 s13, s10, {16*1152}')
A('s_lshl_b32 s12, s4, 4','s_add_u32 s12, s12, s7',f's_mul_i32 s12, s12, {16*1152}','s_add_u32 s12, s12, s8')
A('v_lshrrev_b32 v120, 5, v0','v_lshlrev_b32 v121, 3, v120',f'v_add_u32 v121, {hex(GL)}, v121')
A('v_mul_u32_u24 v120, 576, v120','v_lshl_add_u32 v120, v1, 3, v120','v_and_b32 v122, 1, v2','v_lshl_add_u32 v120, v122, 2, v120')
A('s_lshl_b32 s8, s15, 7','v_add_u32 v120, s8, v120')
A('v_and_b32 v122, 15, v120','v_lshrrev_b32 v120, 4, v120','v_lshlrev_b32 v120, 14, v120','v_lshl_add_u32 v120, v122, 2, v120')
A('v_cndmask_b32 v120, v120, v9, s[60:61]')
if PSW: A('s_and_b32 s14, s2, 7','s_lshl_b32 s14, s14, 5','s_lshr_b32 s8, s2, 3','s_add_u32 s14, s14, s8','s_lshl_b32 s14, s14, 6')
else: A('s_lshl_b32 s14, s2, 6')
A(f's_add_u32 s14, s14, {hex(FP)}')
A('v_lshlrev_b32 v122, 4, v0',f'v_add_u32 v122, {hex(YH)}, v122','v_lshlrev_b32 v123, 3, v0',f'v_add_u32 v123, {hex(YO)}, v123')
A('s_waitcnt lgkmcnt(0)')
epoch_load()
srd(44,24,4096*1152); srd(48,30,4608*1152)
A(*BB)
tag_ready()
selectors(8,104)
thr=sum(t<<(6*i) for i,t in enumerate(THR))
A(f's_mov_b32 s8, {hex(thr)}','s_mul_i32 s9, s15, 6','s_lshr_b32 s8, s8, s9','s_and_b32 s64, s8, 63')
if PT:
    lds_spin(LD,8,104,'pt',sleep=4)
    A('buffer_load_dwordx4 v[76:79], v120, s[52:55], s14 offen')
lds_spin(GF,1,104,'gl',sleep=4)
A('ds_read_b64 v[72:73], v121')
lds_spin(LD,'s64',104,'wg',sleep=2)
A('s_setprio 1')
for t in range(4): A(f'buffer_load_dwordx4 v[{16+4*t}:{19+4*t}], v4, s[48:51], s10 offen offset:{t*1152}{PW}')
A(f'buffer_load_dwordx4 v[32:35], v5, s[48:51], s13 offen{PW}')
for t in range(4): A(f'buffer_load_dwordx4 v[{36+4*t}:{39+4*t}], v4, s[44:47], s12 offen offset:{t*1152}{PW}')
stamp(15,'W')
lds_spin(YHF,1,104,'yh',sleep=1)
A('ds_read_b128 v[64:67], v122','s_waitcnt lgkmcnt(0)')
for t in range(5):
    a=104+4*(t&1)
    buildA(a, 64+t//2, t&1)
    A(f's_waitcnt vmcnt({8-t})','s_nop 0')
    mfma(116,a,16+4*t,t==0)
A('s_nop 7')
if WDK: A('v_mov_b32 v104, 1',f'v_mov_b32 v105, {hex(WD)}','s_mov_b64 exec, 1','ds_add_u32 v105, v104','s_mov_b64 exec, -1')
for r in range(4): A(f'v_mul_f32 v{116+r}, v73, v{116+r}')
A('s_setprio 3')
if FINE==2:
    A('s_waitcnt vmcnt(0)'); stamp(8,'W')
lds_spin(YOF,1,104,'yo',sleep=0)
A('ds_read_b64 v[64:65], v123','s_waitcnt vmcnt(0) lgkmcnt(0)')
if not FINE: stamp(8,'W')
for t in range(4):
    buildA(80+4*t, 64+t//2, t&1)
    if t>0: mfma(112,80+4*(t-1),36+4*(t-1),t==1)
A('s_nop 0')
mfma(112,92,48,False)
A('s_nop 7')
for r in range(4): A(f'v_fma_f32 v{112+r}, v72, v{112+r}, v{116+r}')
for r in range(4): A(f'v_bfi_b32 v{112+r}, s41, v7, v{112+r}')
A('buffer_store_dwordx4 v[112:115], v120, s[52:55], s14 offen sc1')
stamp(9,'W')
A(f's_cmp_ge_u32 s2, {NRED}','s_cbranch_scc1 L_Wend','s_barrier','L_Wend:')
flush_stamps('W')
A('L_end:','s_endpgm')
A('.section .rodata,"a"','.p2align 6',f'.amdhsa_kernel {KNAME}')
A('  .amdhsa_next_free_vgpr 128','  .amdhsa_next_free_sgpr 102','  .amdhsa_accum_offset 128')
A('  .amdhsa_group_segment_fixed_size 0','  .amdhsa_kernarg_size 96','  .amdhsa_user_sgpr_count 2','  .amdhsa_user_sgpr_kernarg_segment_ptr 1','  .amdhsa_system_sgpr_workgroup_id_x 1')
A('  .amdhsa_float_denorm_mode_32 3','.end_amdhsa_kernel')
open(out,'w').write('\n'.join(L)+'\n')
print('lines',len(L),'lds',LDS,'ws end',hex(WS_END))
```

```python
import sys, struct
KNAME='gated_mix__sliding_block_cached__dense_activation_relu__decode_kernel'
opts=dict(a.split('=') for a in sys.argv[2:])
out=sys.argv[1]
def I(n,d): return int(opts.get(n,d))
STAMPS=I('stamps',0); PROBE=I('probe',-1); PMUL=I('pmul',2); FINE=I('fine',0)
SPIN=I('spin',1<<17); GSPIN=I('gspin',1<<17); WIN=I('win',32)
THR=[int(x) for x in opts.get('thr','26,28,31,32,32').split(',')]
RP=opts.get('ramp','0:2,16:4,30').split(',')
RAMPC={int(x.split(':')[0]):int(x.split(':')[1]) for x in RP[:-1]}; RAMPN=int(RP[-1])
SLP=I('slp',1); WIN2=I('win2',0); N2=I('n2',64); FLD=opts.get('fld','sc1').replace('+',' '); FSLP=I('fslp',0); FLAY=opts.get('flay','c'); FDL=I('fdl',0); PR=I('pr',0); PSL=I('psl',6); ACK=I('ack',1); WPB=I('wpb',9); CPF=I('cpf',24); CSZ=I('csz',0); FAST=I('fast',1); NOQ=I('noq',0); NOH=I('noh',0); QFAST=I('qfast',0); WDK=I('wdk',0); HTH=I('hth',20); PSW=I('psw',1); QSL=I('qsl',4); PT=I('pt',0); NOST=I('nostore',0); NOPOLL=I('nopoll',0)
NRED=72
def pol(n):
    p=opts.get(n,'nt').replace('+',' ')
    return '' if p=='none' else ' '+p
PKV=pol('pkv'); PW=pol('pw')
def f2u(f): return struct.unpack('<I',struct.pack('<f',f))[0]
EPOCH=0x0
QP=0x1000
OP=QP+0x40000
HP=OP+0x80000
FP=HP+7*2*4608*4
QA=FP+256*4608
FL=QA+0x40000
WS_END=FL+256*128
WS_SIZE=0x10000000 if STAMPS else WS_END
STAMP_OFF=0x8000000
OOB=0x7f000000
VL=0x10000; SB=0x20000
QL=SB+0x000; PL=SB+0x200; ML=SB+0x600; QF=SB+0x640; PF=SB+0x644; OC=SB+0x648; FC=SB+0x64c; LD=SB+0x650; CR=SB+0x654; YHF=SB+0x658; YOF=SB+0x65c; WD=SB+0x660; PB=SB+0x664
GL=SB+0x680; GF=SB+0x690; OACC=SB+0x800; FSL=SB+0x1800; STL=SB+0x1A00; YH=SB+0x1C00; YO=SB+0x2000
LDS=SB+0x2200
SC=0.08838834764831845*1.4426950408889634
L=[]
def A(*ss):
    for s in ss:
        if NOST and s.startswith('buffer_store') and s.endswith(' sc1'): s='s_nop 0'
        if NOPOLL and s.startswith('buffer_load') and s.endswith(' sc1'): s='s_nop 0'
        L.append(s)
lab=[0]
def newlab(p):
    lab[0]+=1; return f'L_{p}{lab[0]}'
FIRST={'C':7 if FINE else 4,'L':2,'Q':0,'H':1,'X':3,'W':11 if FINE==2 else 8}
def srd(d,p,n):
    A(f's_mov_b32 s{d}, s{p}', f's_mov_b32 s{d+1}, s{p+1}', f's_mov_b32 s{d+2}, {hex(n)}', f's_mov_b32 s{d+3}, 0x20000')
stamp_regs={}
def stamp(k, role):
    if PROBE==k:
        sk=newlab('pk')
        A(f's_cmp_lg_u32 s3, {FIRST[role]}', f's_cbranch_scc1 {sk}')
        A('s_memrealtime s[84:85]','s_waitcnt lgkmcnt(0)','v_mov_b32 v30, s84',f'v_mov_b32 v31, {STL}','ds_write_b32 v31, v30','s_waitcnt lgkmcnt(0)')
        A(f'{sk}:')
    if not STAMPS: return
    lst=stamp_regs.setdefault(role,[])
    i=len(lst); lst.append(k); assert i<8
    A(f's_memrealtime s[{84+2*i}:{85+2*i}]')
def stamp_now(k):
    if not STAMPS: return
    A('s_memrealtime s[80:81]','s_waitcnt lgkmcnt(0)','v_mov_b32 v20, s80','v_mov_b32 v21, s81','v_mov_b32 v22, 0')
    A('s_lshl_b32 s8, s2, 7', f's_add_u32 s8, s8, {hex(STAMP_OFF)}')
    A(f'buffer_store_dwordx2 v[20:21], v22, s[52:55], s8 offen offset:{8*k}')
def flush_stamps(role):
    if not STAMPS: return
    lst=stamp_regs.get(role,[])
    skip=newlab('nost')
    A('s_mov_b64 exec, -1', f's_cmp_lg_u32 s3, {FIRST[role]}', f's_cbranch_scc1 {skip}', 's_waitcnt lgkmcnt(0)')
    A('s_lshl_b32 s8, s2, 7', f's_add_u32 s8, s8, {hex(STAMP_OFF)}', 'v_mov_b32 v3, 0')
    for i,k in enumerate(lst):
        A(f'v_mov_b32 v4, s{84+2*i}', f'v_mov_b32 v5, s{85+2*i}', f'buffer_store_dwordx2 v[4:5], v3, s[52:55], s8 offen offset:{k*8}', 's_waitcnt vmcnt(0)')
    A(f'{skip}:')
def epoch_load():
    A(f's_load_dword s40, s[38:39], {EPOCH}')
    srd(52,38,WS_SIZE)
    A('s_mov_b32 s41, 0xfff')
def tag_ready():
    A('s_waitcnt lgkmcnt(0)','s_add_u32 s42, s40, 1','s_and_b32 s40, s42, s41','v_mov_b32 v7, s40')
def selectors(base, tmp):
    A(f'v_mov_b32 v{tmp}, 0x0c0c0100', f'v_mov_b32 v{tmp+1}, 0x01000c0c', 's_mov_b32 s60, 0xaaaaaaaa', 's_mov_b32 s61, 0xaaaaaaaa')
    A(f'v_cndmask_b32 v{tmp}, v{tmp}, v{tmp+1}, s[60:61]')
    A(f'v_mov_b32 v{tmp+1}, 0x0c0c0302', f'v_mov_b32 v{tmp+2}, 0x03020c0c')
    A(f'v_cndmask_b32 v{tmp+1}, v{tmp+1}, v{tmp+2}, s[60:61]')
    A(f'v_mov_b32 v{tmp+2}, 0x0c0c0c0c')
    for d in range(4):
        m=(0x03030303<<(2*d))&0xffffffff
        A(f's_mov_b32 s60, {hex(m)}', f's_mov_b32 s61, {hex(m)}')
        A(f'v_cndmask_b32 v{base+d}, v{tmp+2}, v{tmp}, s[60:61]', f'v_cndmask_b32 v{base+4+d}, v{tmp+2}, v{tmp+1}, s[60:61]')
def buildA(dst, src, odd, sel=8):
    for d in range(4): A(f'v_perm_b32 v{dst+d}, v{src}, v{src}, v{sel+(4 if odd else 0)+d}')
def mfma(d,a,b,first):
    c='0' if first else f'v[{d}:{d+3}]'
    A(f'v_mfma_f32_16x16x32_bf16 v[{d}:{d+3}], v[{a}:{a+3}], v[{b}:{b+3}], {c}')
def lds_spin(addr, val, vt, name, sleep=1):
    l=newlab(name); d=newlab(name+'d')
    A(f'v_mov_b32 v{vt}, {hex(addr)}', f's_mov_b32 s62, {SPIN}', f'{l}:', f'ds_read_b32 v{vt+1}, v{vt}', 's_sub_u32 s62, s62, 1', 's_waitcnt lgkmcnt(0)')
    A(f'v_readfirstlane_b32 s63, v{vt+1}', f's_cbranch_scc1 {d}', f's_cmp_ge_u32 s63, {val}')
    if sleep: A(f's_cbranch_scc1 {d}', f's_sleep {sleep*SLP}', f's_branch {l}')
    else: A(f's_cbranch_scc0 {l}')
    A(f'{d}:')
def mpoll(loads, name, chk, init='-1', slp=0):
    lp=newlab(name); go=newlab(name+'go')
    for i,_ in enumerate(loads): A(f's_mov_b64 s[{72+2*i}:{73+2*i}], {init}')
    A(f's_mov_b32 s62, {GSPIN}', f'{lp}:')
    if slp: A(f's_sleep {slp}')
    for i,(d,n,t) in enumerate(loads):
        sk=newlab('sk')
        A(f's_mov_b64 exec, s[{72+2*i}:{73+2*i}]', f's_cbranch_execz {sk}', t, f'{sk}:')
    A('s_sub_u32 s62, s62, 1', f's_cbranch_scc1 {go}', 's_waitcnt vmcnt(0)')
    for i,(d,n,t) in enumerate(loads):
        A(f's_mov_b64 exec, s[{72+2*i}:{73+2*i}]')
        for k in range(n): A(f'v_xor_b32 v{d+k}, v7, v{d+k}')
        if n==4: A(f'v_or3_b32 v{chk}, v{d}, v{d+1}, v{d+2}', f'v_or_b32 v{chk}, v{chk}, v{d+3}', f'v_and_b32 v{chk}, s41, v{chk}')
        else: A(f'v_and_b32 v{chk}, s41, v{d}')
        A(f'v_cmp_ne_u32 s[{72+2*i}:{73+2*i}], 0, v{chk}')
    A('s_nop 0', 's_or_b64 s[76:77], s[72:73], s[74:75]', f's_cbranch_scc1 {lp}', f'{go}:', 's_mov_b64 exec, -1', 's_waitcnt vmcnt(0)')
DPP=' row_mask:0xf bank_mask:0xf'
def allreduce(op, regs, steps, tmp=None):
    n=len(regs); pad=max(0,2-(n-1))
    ctl={'x1':'quad_perm:[1,0,3,2]','x2':'quad_perm:[2,3,0,1]','hm':'row_half_mirror','m':'row_mirror','ror4':'row_ror:4','ror8':'row_ror:8'}
    for s in steps:
        if s in ctl:
            if pad: A(f's_nop {pad-1}')
            for r in regs: A(f'{op}_dpp v{r}, v{r}, v{r} {ctl[s]}{DPP}')
        else:
            ins='v_permlane16_swap_b32' if s=='r16' else 'v_permlane32_swap_b32'
            for i,r in enumerate(regs): A(f'v_mov_b32 v{tmp+i}, v{r}')
            A('s_nop 1')
            for i,r in enumerate(regs): A(f'{ins} v{r}, v{tmp+i}')
            A('s_nop 0')
            for i,r in enumerate(regs): A(f'{op} v{r}, v{r}, v{tmp+i}')
def pkadd(d,a,b):
    for k in (0,2): A(f'v_pk_add_f32 v[{d+k}:{d+k+1}], v[{a+k}:{a+k+1}], v[{b+k}:{b+k+1}]')
BB=('s_barrier',)

A(f'; @launch grid=(256,1,1) block=(832,1,1) lds={LDS}')
A('.amdgcn_target "amdgcn-amd-amdhsa--gfx950"','.text',f'.globl {KNAME}','.p2align 8',f'.type {KNAME},@function',f'{KNAME}:')
if STAMPS or PROBE>=0: A('s_memrealtime s[82:83]')
A('s_cmp_ge_u32 s2, 256','s_cbranch_scc1 L_end')
A('s_load_dwordx16 s[16:31], s[0:1], 0','s_load_dwordx8 s[32:39], s[0:1], 64')
A('v_lshrrev_b32 v1, 6, v0','v_and_b32 v0, 63, v0','s_and_b32 s4, s2, 7','v_readfirstlane_b32 s3, v1')
A('s_lshl_b32 s4, s4, 1','s_bfe_u32 s5, s2, 0x10003','s_add_u32 s4, s4, s5')
A('s_bfe_u32 s5, s2, 0x10004','s_lshr_b32 s6, s2, 5','s_lshr_b32 s7, s2, 4')
A('v_and_b32 v1, 15, v0','v_lshrrev_b32 v2, 4, v0')
if CPF:
    A('s_cmp_lg_u32 s3, 3','s_cbranch_scc1 L_nopf')
    A('s_getpc_b64 s[10:11]','s_and_b32 s10, s10, 0xffffff00','s_lshr_b32 s8, s2, 3','s_mul_i32 s8, s8, PFSTEP','v_add_u32 v3, s8, v0')
    A('v_subrev_u32 v4, NLINES, v3','v_min_u32 v3, v3, v4','v_lshlrev_b32 v3, 7, v3',f's_mov_b32 exec_lo, {hex(((1<<CPF)-1)&0xffffffff)}',f's_mov_b32 exec_hi, {hex(((1<<CPF)-1)>>32)}','global_load_dword v4, v3, s[10:11]','s_mov_b64 exec, -1','L_nopf:')
A('s_cmp_gt_u32 s3, 1','s_cbranch_scc1 L_disp')
QPOS=len(L)

RED_EMITTED=[0]
def reducer(role):
    if not STAMPS:
        if RED_EMITTED[0]:
            A('s_branch L_red'); return
        RED_EMITTED[0]=1; A('L_red:')
    fin=newlab('fin')
    A(f's_cmp_ge_u32 s2, {NRED}', f's_cbranch_scc1 {fin}', 's_setprio 0')
    A('v_lshlrev_b32 v5, 4, v0','v_and_b32 v6, 3, v0')
    if FLAY=='t': A('s_lshl_b32 s8, s2, 14','s_lshl_b32 s9, s3, 11','s_add_u32 s8, s8, s9',f's_add_u32 s8, s8, {hex(FP)}','s_add_u32 s11, s8, 1024')
    else: A('v_lshrrev_b32 v5, 2, v0','v_mul_u32_u24 v5, 4608, v5','v_lshl_add_u32 v5, v6, 4, v5',f's_mul_i32 s8, s3, {32*4608}','s_lshl_b32 s9, s2, 6','s_add_u32 s8, s8, s9',f's_add_u32 s8, s8, {hex(FP)}',f's_add_u32 s11, s8, {16*4608}')
    A('v_bfe_u32 v8, v0, 2, 2','v_lshl_add_u32 v8, v6, 2, v8','v_lshlrev_b32 v8, 5, v8','s_lshl_b32 s10, s3, 2',f's_add_u32 s10, s10, {hex(FSL)}','v_add_u32 v8, s10, v8')
    A('v_mov_b32 v11, 1',f'v_mov_b32 v10, {hex(FC)}','v_lshlrev_b32 v12, 5, v0',f'v_add_u32 v12, {hex(FSL)}, v12','v_lshlrev_b32 v13, 1, v0')
    srd(44,34,2304)
    A('s_lshl_b32 s10, s2, 5')
    A('s_mov_b32 s64, 0x00f000f0','s_mov_b32 s65, 0x00f000f0','s_mov_b32 s66, 0x0f000f00','s_mov_b32 s67, 0x0f000f00','s_mov_b32 s68, 0xf000f000','s_mov_b32 s69, 0xf000f000')
    A('s_barrier')
    if FDL: A(f's_sleep {FDL}')
    mpoll([(16,4,f'buffer_load_dwordx4 v[16:19], v5, s[52:55], s8 offen {FLD}'),(20,4,f'buffer_load_dwordx4 v[20:23], v5, s[52:55], s11 offen {FLD}')],'fp',9,slp=FSLP)
    if role=='C': stamp(10, role)
    for k in range(4): A(f'v_add_f32 v{16+k}, v{16+k}, v{20+k}')
    allreduce('v_add_f32',[16,17,18,19],['ror4','ror8'])
    A('v_cndmask_b32 v16, v16, v17, s[64:65]','v_cndmask_b32 v16, v16, v18, s[66:67]','v_cndmask_b32 v16, v16, v19, s[68:69]')
    allreduce('v_add_f32',[16],['r16','r32'],tmp=17)
    A('s_mov_b64 exec, 0xffff','ds_write_b32 v8, v16','s_mov_b64 exec, 1','ds_add_rtn_u32 v9, v10, v11','s_mov_b64 exec, 0xffff','s_waitcnt lgkmcnt(0)')
    A('v_readfirstlane_b32 s8, v9','s_cmp_lg_u32 s8, 7',f's_cbranch_scc1 {fin}')
    A('ds_read_b128 v[16:19], v12','ds_read_b128 v[20:23], v12 offset:16','s_waitcnt lgkmcnt(0)')
    pkadd(16,16,20)
    A('v_pk_add_f32 v[16:17], v[16:17], v[18:19]','v_add_f32 v16, v16, v17','v_cvt_pk_bf16_f32 v16, v16, v16')
    A('buffer_store_short v16, v13, s[44:47], s10 offen')
    stamp_now(11)
    A('s_mov_b64 exec, 1','s_cmp_lg_u32 s2, 0',f's_cbranch_scc1 {fin}')
    if PROBE>=0:
        pl=newlab('pl')
        A('s_memrealtime s[80:81]',f'v_mov_b32 v31, {STL}','ds_read_b32 v30, v31','s_waitcnt lgkmcnt(0)','v_readfirstlane_b32 s84, v30')
        if PROBE==11: A('s_mov_b32 s84, s80')
        A('s_sub_u32 s84, s84, s82','s_min_u32 s84, s84, 10000',f's_mul_i32 s84, s84, {PMUL}')
        A(f'{pl}:','s_memrealtime s[86:87]','s_waitcnt lgkmcnt(0)','s_sub_u32 s86, s86, s80','s_cmp_lt_u32 s86, s84',f's_cbranch_scc1 {pl}')
    A('v_mov_b32 v9, s42','v_mov_b32 v8, 0',f'buffer_store_dword v9, v8, s[52:55], 0 offen offset:{EPOCH}')
    A(f'{fin}:')
    flush_stamps(role)
    A('s_endpgm')

def gemv_loop(n, credits):
    A(f's_waitcnt vmcnt({n})')
    for t in range(n):
        a=(28,120)[t&1]
        buildA(a, 16+t//2, t&1)
        A(f's_waitcnt vmcnt({n-1-t})')
        A('s_nop 0')
        mfma(124,a,32+4*t,t==0)
        if t in credits: A('s_mov_b64 exec, 1','ds_add_u32 v6, v3','s_mov_b64 exec, -1')
    A('s_nop 7')
    for r in range(4): A(f'v_bfi_b32 v{124+r}, s41, v7, v{124+r}')
    A('buffer_store_dwordx4 v[124:127], v5, s[52:55], s13 offen sc1')

A('s_setprio 3')
A('s_mul_i32 s9, s2, 293','s_lshr_b32 s9, s9, 11','s_mul_i32 s10, s9, 7','s_sub_u32 s10, s2, s10')
A('s_mul_i32 s11, s10, 88','s_mul_i32 s12, s10, 80','s_add_u32 s12, s12, 16','s_min_u32 s11, s11, s12')
A('s_cmp_lt_u32 s10, 2','s_cselect_b32 s14, 22, 20',f's_cselect_b32 s57, 0, {hex(OOB)}')
A('s_lshl_b32 s15, s9, 8','s_cmp_ge_u32 s2, 252',f's_cselect_b32 s15, {hex(OOB)}, s15')
A('s_lshr_b32 s12, s7, 1','s_mul_i32 s13, s12, 72','s_and_b32 s8, s7, 1','s_lshl_b32 s58, s4, 1','s_add_u32 s58, s58, s8','s_lshl_b32 s59, s58, 8')
A('s_lshl_b32 s43, s3, 10','s_add_u32 s43, s43, 8192')
A('s_cmp_eq_u32 s3, 0','s_cselect_b32 s11, s13, s11','s_cselect_b32 s14, 18, s14','s_cselect_b32 s15, s59, s15',f's_cselect_b32 s56, {hex(OOB)}, 0','s_cselect_b32 s57, 0, s57')
A('s_mul_i32 s8, s14, s43','v_mul_u32_u24 v3, s8, v2','v_lshl_add_u32 v3, v1, 4, v3')
A('v_bfe_u32 v4, v0, 3, 1','v_mul_u32_u24 v4, 1152, v4','s_lshl_b32 s8, s14, 1','v_mul_u32_u24 v5, s8, v2','v_add_u32 v4, v4, v5')
A('s_lshl_b32 s8, s11, 1','s_mul_i32 s11, s11, s43','s_add_u32 s11, s11, s15','s_mul_i32 s50, s43, 576','s_mov_b32 s51, 0x20000','s_mov_b32 s46, 2304','s_mov_b32 s47, 0x20000','s_cmp_eq_u32 s3, 0')
A('s_waitcnt lgkmcnt(0)')
A('s_mov_b32 s44, s16','s_mov_b32 s45, s17','s_cselect_b32 s48, s22, s28','s_cselect_b32 s49, s23, s29')
A('buffer_load_dwordx4 v[16:19], v4, s[44:47], s8 offen','buffer_load_dwordx4 v[20:23], v4, s[44:47], s8 offen offset:16','buffer_load_dwordx3 v[24:26], v4, s[44:47], s8 offen offset:32')
for t in range(22):
    A(f'buffer_load_dwordx4 v[{32+4*t}:{35+4*t}], v3, s[48:51], s11 offen{PW}')
    if t<21: A('s_add_u32 s11, s11, s43')
    if t==17: A('s_add_u32 s11, s11, s56')
    if t==19: A('s_add_u32 s11, s11, s57')
A(f's_load_dword s40, s[38:39], {EPOCH}')
srd(52,38,WS_SIZE); A('s_mov_b32 s41, 0xfff')
A(f's_mul_i32 s13, s10, {2*4608*4}','s_lshl_b32 s8, s15, 1','s_add_u32 s13, s13, s8',f's_add_u32 s13, s13, {hex(HP)}')
A('s_lshl_b32 s8, s4, 14','s_lshl_b32 s9, s12, 10','s_add_u32 s8, s8, s9','s_and_b32 s9, s7, 1','s_lshl_b32 s9, s9, 9','s_add_u32 s8, s8, s9',f's_add_u32 s8, s8, {hex(QP)}')
A('s_cmp_ge_u32 s2, 252',f's_cselect_b32 s13, {hex(OOB)}, s13','s_cmp_eq_u32 s3, 0','s_cselect_b32 s13, s8, s13','s_mul_i32 s8, s3, 10240','s_add_u32 s8, s8, 8192')
A('v_lshrrev_b32 v5, 1, v2','v_mul_u32_u24 v5, s8, v5','v_lshl_add_u32 v5, v1, 5, v5','v_and_b32 v6, 1, v2','v_lshl_add_u32 v5, v6, 4, v5')
tag_ready()
A(*BB)
selectors(8, 120)
A(f'v_mov_b32 v6, {hex(CR)}','v_mov_b32 v3, 1')
gemv_loop(22,(9,17))
A('s_cmp_lg_u32 s3, 0','s_cbranch_scc1 L_H2')
A('s_getreg_b32 s15, hwreg(HW_REG_XCC_ID, 0, 3)','s_lshl_b32 s8, s42, 3','s_or_b32 s15, s15, s8')
A('v_lshlrev_b32 v26, 7, v0','v_mov_b32 v27, s15','s_lshl_b32 s14, s4, 11','s_lshl_b32 s8, s7, 2','s_add_u32 s14, s14, s8',f's_add_u32 s14, s14, {hex(FL)}')
A('s_mov_b64 exec, 0xffff','buffer_store_dword v27, v26, s[52:55], s14 offen sc1','s_mov_b64 exec, -1')
stamp(1,'Q')
A('v_lshlrev_b32 v5, 4, v0')
A('s_lshl_b32 s13, s4, 1','s_add_u32 s13, s13, s5','s_lshl_b32 s13, s13, 13',f's_add_u32 s13, s13, {hex(QP)}','s_add_u32 s14, s13, 4096')
A('s_lshl_b32 s8, s4, 4','s_add_u32 s8, s8, s7','s_lshl_b32 s8, s8, 7',f's_add_u32 s8, s8, {hex(FL)}','s_add_u32 s46, s38, s8','s_addc_u32 s47, s39, 0')
A('s_mov_b32 s8, 1',f's_mov_b32 s62, {GSPIN}','L_qprobe:',f's_sleep {QSL}','s_load_dwordx16 s[64:79], s[46:47], 0 glc','s_sub_u32 s62, s62, 1','s_cbranch_scc1 L_qfetch0','s_waitcnt lgkmcnt(0)')
A('s_xor_b32 s8, s64, s15')
for p in range(1,16): A(f's_xor_b32 s9, s{64+p}, s15','s_or_b32 s8, s8, s9')
A('s_lshr_b32 s9, s8, 3')
A('s_cbranch_scc1 L_qprobe','L_qfetch0:',f's_mov_b32 s62, {GSPIN}','s_waitcnt lgkmcnt(0)')
if QFAST: A('s_cmp_eq_u32 s8, 0',f's_cselect_b32 s9, {QA-QP}, 0','s_add_u32 s13, s13, s9','s_add_u32 s14, s14, s9')
if FINE==1: stamp(8,'Q')
A('L_qfetch:')
if NOQ: A('s_branch L_qgo')
for r in range(8): A(f'buffer_load_dwordx4 v[{32+4*r}:{35+4*r}], v5, s[52:55], s{13 if r<4 else 14} offen offset:{(r&3)*1024} sc1')
A('s_sub_u32 s62, s62, 1','s_cbranch_scc1 L_qgo','v_mov_b32 v6, 0')
for r in range(8):
    A(f's_waitcnt vmcnt({7-r})')
    for k in range(4): A(f'v_xor_b32 v{32+4*r+k}, v7, v{32+4*r+k}')
    A(f'v_or3_b32 v6, v6, v{32+4*r}, v{33+4*r}',f'v_or3_b32 v6, v6, v{34+4*r}, v{35+4*r}')
A('v_and_b32 v6, s41, v6','v_cmp_ne_u32 vcc, 0, v6','s_cbranch_vccnz L_qfetch','L_qgo:','s_waitcnt vmcnt(0)')
for r in (0,2,4,6): pkadd(32+4*r,32+4*r,36+4*r)
pkadd(32,32,40); pkadd(48,48,56); pkadd(32,32,48)
A('v_cvt_pk_bf16_f32 v32, v32, v33','v_cvt_pk_bf16_f32 v33, v34, v35','v_lshlrev_b32 v5, 3, v0',f'v_add_u32 v5, {hex(QL)}, v5','ds_write_b64 v5, v[32:33]')
A('s_cmp_eq_u32 s8, 0',f's_cselect_b32 s9, {1+FAST}, 1','v_mov_b32 v6, s9',f'v_mov_b32 v5, {hex(QF)}','ds_write_b32 v5, v6')
stamp(2,'Q')
A('v_lshlrev_b32 v123, 11, v1','v_lshl_add_u32 v122, v2, 4, v123')
A('s_lshl_b32 s43, s4, 15','s_lshl_b32 s8, s7, 7','s_add_u32 s43, s43, s8',f's_add_u32 s43, s43, {hex(OP)}')
A('v_lshlrev_b32 v121, 3, v0',f'v_add_u32 v121, {hex(YO)}, v121',f'v_mov_b32 v120, {hex(YOF)}','v_mov_b32 v119, 1')
lds_spin(PB,1,104,'oc',sleep=1)
if WDK: lds_spin(WD,WDK,104,'wd',sleep=0)
if PR:
    for k in range(PR):
        if k: A(f's_sleep {PSL}')
        A(f'buffer_load_dwordx4 v[{16+8*k}:{19+8*k}], v122, s[52:55], s43 offen sc1',f'buffer_load_dwordx4 v[{20+8*k}:{23+8*k}], v123, s[52:55], s43 offen offset:64 sc1')
    for k in range(PR):
        A(f's_waitcnt vmcnt({2*(PR-1-k)})')
        for i in range(8): A(f'v_xor_b32 v{64+i}, v7, v{16+8*k+i}')
        A('v_or3_b32 v74, v64, v65, v66','v_or3_b32 v74, v74, v67, v68','v_or3_b32 v74, v74, v69, v70','v_or_b32 v74, v74, v71','v_and_b32 v74, s41, v74','v_cmp_ne_u32 vcc, 0, v74','s_cbranch_vccz L_odone')
mpoll([(64,4,'buffer_load_dwordx4 v[64:67], v122, s[52:55], s43 offen sc1'),(68,4,'buffer_load_dwordx4 v[68:71], v123, s[52:55], s43 offen offset:64 sc1')],'op',74)
A('L_odone:')
stamp(7,'Q')
allreduce('v_max_f32',[70],['x1','x2','hm'])
A('v_sub_f32 v68, v68, v70','v_exp_f32 v68, v68','s_nop 0','v_mul_f32 v69, v68, v69')
for k in range(4): A(f'v_mul_f32 v{64+k}, v68, v{64+k}')
allreduce('v_add_f32',[69,64,65,66,67],['x1','x2','hm'])
A('v_rcp_f32 v69, v69','s_nop 0')
for k in range(4): A(f'v_mul_f32 v{64+k}, v69, v{64+k}')
A('v_cvt_pk_bf16_f32 v64, v64, v65','v_cvt_pk_bf16_f32 v65, v66, v67','ds_write_b64 v121, v[64:65]','ds_write_b32 v120, v119')
reducer('Q')

A('.p2align 6','L_disp:')
A('s_cmp_eq_u32 s3, 2','s_cbranch_scc1 L_L','s_cmp_eq_u32 s3, 3','s_cbranch_scc1 L_X','s_cmp_ge_u32 s3, 8','s_cbranch_scc1 L_W','s_branch L_C')
A('L_H2:')
stamp(12,'H')
A('v_and_b32 v6, 7, v0','v_lshlrev_b32 v6, 1, v6','v_bfe_u32 v9, v0, 3, 1','v_add_u32 v6, v6, v9',f'v_mul_u32_u24 v6, {4608*4}, v6')
A('v_mov_b32 v9, v6','v_lshl_add_u32 v6, v2, 4, v6')
A('s_mul_i32 s11, s2, 72',f's_add_u32 s11, s11, {hex(HP)}','s_and_b32 s8, s2, 1','s_lshl_b32 s8, s8, 3','s_sub_u32 s12, s11, s8')
A('s_cmp_eq_u32 s8, 0','s_cselect_b32 s64, 0, -1','s_mov_b32 s65, s64','s_mov_b32 s66, 0xffff0000','s_mov_b32 s67, 0xffff0000')
A('v_lshlrev_b32 v121, 4, v0',f'v_add_u32 v121, {hex(YH)}, v121',f'v_mov_b32 v120, {hex(YHF)}','v_mov_b32 v119, 1')
for k in range(8): A(f'v_mov_b32 v{64+k}, 0')
A('s_mov_b32 s78, 0x7f7f7f7f','s_mov_b32 s79, 0x7f7f7f7f')
lds_spin(LD,HTH,104,'hl',sleep=4)
if not NOH: mpoll([(64,4,'buffer_load_dwordx4 v[64:67], v6, s[52:55], s11 offen sc1'),(68,4,'buffer_load_dwordx4 v[68:71], v9, s[52:55], s12 offen offset:64 sc1')],'hp',72,init='s[78:79]')
A('v_cndmask_b32 v68, v68, v70, s[64:65]','v_cndmask_b32 v69, v69, v71, s[64:65]','v_cndmask_b32 v68, v68, v69, s[66:67]','s_nop 0')
stamp(13,'H')
allreduce('v_add_f32',[64,65,66,67,68],['x1','x2','hm'])
for k in range(5): A(f'v_max_f32 v{64+k}, 0, v{64+k}')
A('v_cvt_pk_bf16_f32 v64, v64, v65','v_cvt_pk_bf16_f32 v65, v66, v67','v_cvt_pk_bf16_f32 v66, v68, v68','ds_write_b128 v121, v[64:67]','ds_write_b32 v120, v119')
reducer('H')

A('.p2align 6','L_L:','s_setprio 3')
for u in range(4): A(f'v_add_u32 v8, {4*u}, v2','v_xor_b32 v8, v8, v1','v_lshlrev_b32 v8, 4, v8',f'v_lshl_add_u32 v{12+u}, v2, 8, v8')
A('v_lshlrev_b32 v3, 4, v0')
A('s_lshl_b32 s12, s5, 4','s_add_u32 s12, s12, s4','s_lshl_b32 s12, s12, 21','s_lshl_b32 s13, s6, 16','s_add_u32 s12, s12, s13','s_add_u32 s12, s12, 0x180000')
A('s_lshr_b32 s13, s2, 3','s_add_u32 s13, s13, s2')
for i in range(16): A(f's_add_u32 s14, s13, {i}','s_and_b32 s14, s14, 15','s_lshl_b32 s14, s14, 12',f's_add_u32 s{64+i}, s12, s14')
A(f'v_mov_b32 v9, {hex(LD)}','s_waitcnt lgkmcnt(0)')
epoch_load()
srd(44,18,0x4000000); srd(48,20,0x4000000)
tag_ready()
A(*BB)
n=0; sig=0
def signal(upto):
    global sig
    if upto>sig:
        sig=upto
        A(f'v_mov_b32 v10, {upto}','ds_write_b32 v9, v10')
for i in range(32):
    for u in range(4):
        if n in RAMPC: lds_spin(CR,RAMPC[n],16,'cr',sleep=0)
        if u==0: A(f's_mov_b32 m0, {hex(i*4096)}')
        w = RAMPN if n==RAMPN else (WIN2 if (WIN2 and n>=N2) else WIN)
        if n>=w:
            A(f's_waitcnt vmcnt({w-1})')
            signal((n-w+1)//4)
        elif u==0: A('s_nop 0')
        if i<16: A(f'buffer_load_dwordx4 v{12+u}, s[44:47], s{64+i} offen offset:{u*1024}{PKV} lds')
        else: A(f'buffer_load_dwordx4 v3, s[48:51], s{64+i-16} offen offset:{u*1024}{PKV} lds')
        n+=1
stamp(14,'L')
while sig<32:
    A(f's_waitcnt vmcnt({128-4*(sig+1)})')
    signal(sig+1)
stamp(3,'L')
reducer('L')

A('.p2align 6','L_C:','s_setprio 2','s_sub_u32 s15, s3, 4')
A('v_mov_b32 v4, 0','v_lshlrev_b32 v5, 2, v0',f'v_add_u32 v5, {hex(ML)}, v5','ds_write_b32 v5, v4')
A('v_lshlrev_b32 v122, 4, v0',f'v_add_u32 v122, {hex(OACC)}, v122','s_lshl_b32 s8, s15, 10','v_add_u32 v125, s8, v122')
A('s_waitcnt lgkmcnt(0)')
epoch_load()
tag_ready()
A(*BB)
selectors(8,104)
A('s_lshl_b32 s8, s15, 12')
for ks in range(4): A(f'v_add_u32 v4, {4*ks}, v2','v_xor_b32 v4, v4, v1','v_lshlrev_b32 v4, 4, v4','v_lshl_add_u32 v4, v1, 8, v4',f'v_add_u32 v{116+ks}, s8, v4')
A('v_lshlrev_b32 v3, 4, v0',f's_add_u32 s9, s8, {hex(VL)}','v_add_u32 v3, s9, v3')
A('v_and_b32 v5, 1, v0','v_lshlrev_b32 v5, 8, v5','v_lshl_add_u32 v5, v2, 4, v5',f'v_add_u32 v5, {hex(QL)}, v5')
A('s_lshl_b32 s8, s15, 8',f's_add_u32 s8, s8, {hex(PL)}')
A('v_and_b32 v6, 3, v0','v_lshlrev_b32 v6, 5, v6','v_lshrrev_b32 v4, 2, v0','v_lshl_add_u32 v6, v4, 1, v6','v_add_u32 v6, s8, v6')
A('v_bfe_u32 v4, v0, 3, 1','v_lshl_add_u32 v4, v4, 2, v2','v_lshlrev_b32 v4, 5, v4','v_add_u32 v123, s8, v4')
A('v_lshrrev_b32 v124, 5, v0','v_lshlrev_b32 v124, 4, v124',f'v_add_u32 v124, {hex(ML)}, v124')
A('v_lshrrev_b32 v121, 5, v0','v_lshlrev_b32 v121, 3, v121','v_lshrrev_b32 v4, 1, v1','v_add_u32 v121, v121, v4','v_lshlrev_b32 v121, 7, v121')
A('v_and_b32 v4, 1, v1','v_lshl_add_u32 v120, v4, 5, v121','v_and_b32 v4, 1, v2','v_lshl_add_u32 v120, v4, 4, v120')
A('s_lshl_b32 s12, s4, 1','s_add_u32 s12, s12, s5','s_lshl_b32 s12, s12, 3','s_add_u32 s12, s12, s6','s_lshl_b32 s12, s12, 11',f's_add_u32 s12, s12, {hex(OP)}')
A(f's_mov_b32 s43, {hex(f2u(SC))}')
A('s_mov_b32 s64, 0xffff0000','s_mov_b32 s65, 0','s_mov_b32 s66, 0','s_mov_b32 s67, 0xffff','s_mov_b32 s68, 0','s_mov_b32 s69, 0xffff0000')
if STAMPS:
    stamp_regs['C']=[0]; A('s_mov_b64 s[84:85], s[82:83]')
if PT:
    lds_spin(LD,4,16,'pt',sleep=4)
    A('s_cmp_lg_u32 s15, 0','s_cbranch_scc1 L_Cnopt','buffer_load_dwordx4 v[76:79], v120, s[52:55], s12 offen','L_Cnopt:')
lds_spin(QF,1,16,'qf',sleep=2)
A('s_mov_b32 s73, s63')
for ks in range(4): A(f'ds_read_b128 v[{80+4*ks}:{83+4*ks}], v5 offset:{ks*64}')
A('s_add_u32 s13, s15, 13')
lds_spin(LD,'s13',16,'kl')
A('s_mov_b32 s72, s63','s_waitcnt vmcnt(0)')
for t in range(4):
    for ks in range(4): A(f'ds_read_b128 v[{16+16*t+4*ks}:{19+16*t+4*ks}], v{116+ks} offset:{t*16384}')
for t in range(4):
    A(f's_waitcnt lgkmcnt({12-4*t})')
    for ks in range(4): mfma(96+4*t, 80+4*ks, 16+16*t+4*ks, ks==0)
A('s_nop 7')
for h in range(2): A(f'v_cndmask_b32 v{16+h}, v{96+h}, v{100+h}, s[64:65]')
for h in range(2): A(f'v_cndmask_b32 v{16+h}, v{16+h}, v{104+h}, s[66:67]')
for h in range(2): A(f'v_cndmask_b32 v{16+h}, v{16+h}, v{108+h}, s[68:69]')
A('v_mov_b32 v18, v16','v_mov_b32 v19, v17')
allreduce('v_max_f32',[18,19],['x1','x2','hm','m','r16','r32'],tmp=20)
A('v_mul_f32 v18, s43, v18','v_mul_f32 v19, s43, v19','v_fma_f32 v16, v16, s43, -v18','v_fma_f32 v17, v17, s43, -v19')
A('v_exp_f32 v16, v16','v_exp_f32 v17, v17','s_nop 0','v_cvt_pk_bf16_f32 v22, v16, v17')
A('ds_write_b16 v6, v22','ds_write_b16_d16_hi v6, v22 offset:128','ds_read_b128 v[80:83], v123','ds_read_b128 v[84:87], v123 offset:16')
allreduce('v_add_f32',[16,17],['x1','x2','hm','m','r16','r32'],tmp=20)
A('s_lshl_b32 s8, s15, 2',f's_add_u32 s8, s8, {hex(ML)}','v_mov_b32 v5, s8','s_mov_b32 s70, -1','s_mov_b32 s71, 0')
A('v_cndmask_b32 v96, v19, v18, s[70:71]')
A('s_mov_b64 exec, 1','ds_write2_b32 v5, v18, v19 offset0:0 offset1:4','ds_write2_b32 v5, v16, v17 offset0:8 offset1:12')
A('v_mov_b32 v6, 1',f'v_mov_b32 v5, {hex(PF)}','ds_add_u32 v5, v6','s_mov_b64 exec, -1')
stamp(4,'C')
def factors():
    lds_spin(PF,4,104,'pf')
    A('ds_read_b128 v[88:91], v124','ds_read_b128 v[92:95], v124 offset:32','s_waitcnt lgkmcnt(0)')
    A('v_max3_f32 v97, v88, v89, v90','v_max_f32 v97, v97, v91','v_and_b32 v97, 0xfffff000, v97')
    for k in range(4): A(f'v_sub_f32 v{88+k}, v{88+k}, v97')
    A('v_sub_f32 v96, v96, v97')
    for k in range(4): A(f'v_exp_f32 v{88+k}, v{88+k}')
    A('v_exp_f32 v96, v96','v_mul_f32 v99, v88, v92')
    for k in range(1,4): A(f'v_fmac_f32 v99, v{88+k}, v{92+k}')
    A('v_or_b32 v100, v97, v7','v_bfi_b32 v101, s41, v7, v99','v_mov_b32 v102, v100','v_mov_b32 v103, v101')
    A('v_mov_b32 v106, 1',f'v_mov_b32 v107, {hex(OC)}')
A('s_waitcnt lgkmcnt(0)')
for tau in range(4):
    for u in range(4): buildA(32+4*u, 80+(4*tau+u)//2, u&1)
    if tau==3: factors()
    sk=newlab('vsk')
    A(f's_add_u32 s13, s15, {17+4*tau}','s_cmp_ge_u32 s72, s13',f's_cbranch_scc1 {sk}')
    lds_spin(LD,'s13',104,'vl',sleep=0)
    A('s_mov_b32 s72, s63',f'{sk}:')
    for u in range(4): A(f'ds_read_b128 v[{16+4*u}:{19+4*u}], v3 offset:{tau*16384+u*1024}')
    for u in range(4):
        A(f's_waitcnt lgkmcnt({3-u})')
        mfma(112,32+4*u,16+4*u,tau==0 and u==0)
A('s_nop 7')
for r in range(4): A(f'v_mul_f32 v{112+r}, v96, v{112+r}')
A('ds_write_b128 v125, v[112:115]','s_mov_b64 exec, 1','ds_add_rtn_u32 v106, v107, v106','s_mov_b64 exec, -1','s_waitcnt lgkmcnt(0)')
A('v_readfirstlane_b32 s8, v106','s_cmp_lg_u32 s8, 3','s_cbranch_scc1 L_Cnopub')
for w in range(4): A(f'ds_read_b128 v[{16+4*w}:{19+4*w}], v122 offset:{1024*w}')
A('s_setprio 3','s_waitcnt lgkmcnt(2)')
pkadd(16,16,20)
A('s_waitcnt lgkmcnt(0)')
pkadd(24,24,28); pkadd(112,16,24)
for r in range(4): A(f'v_bfi_b32 v{112+r}, s41, v7, v{112+r}')
A('s_cmp_eq_u32 s73, 2','s_cbranch_scc1 L_Cfast')
A('buffer_store_dwordx4 v[112:115], v120, s[52:55], s12 offen sc1')
A('s_mov_b32 exec_lo, 0x5555','s_mov_b32 exec_hi, 0x5555','buffer_store_dwordx4 v[100:103], v121, s[52:55], s12 offen offset:64 sc1','s_branch L_Cpubd')
A('L_Cfast:','buffer_store_dwordx4 v[112:115], v120, s[52:55], s12 offen')
A('s_mov_b32 exec_lo, 0x5555','s_mov_b32 exec_hi, 0x5555','buffer_store_dwordx4 v[100:103], v121, s[52:55], s12 offen offset:64')
A('L_Cpubd:','s_mov_b64 exec, -1',f'ds_write_b32 v107, v107 offset:{PB-OC}')
stamp_now(6)
A('L_Cnopub:')
stamp(5,'C')
reducer('C')

A('.p2align 6','L_X:')
A('v_and_b32 v9, 31, v0','v_mul_u32_u24 v9, 36, v9','v_lshrrev_b32 v10, 5, v0','v_mul_u32_u24 v10, 1152, v10','v_add_u32 v10, v10, v9')
A('s_waitcnt lgkmcnt(0)')
epoch_load()
srd(44,16,2304); srd(48,32,1152)
tag_ready()
A(*BB)
for k in range(3): A(f'buffer_load_dwordx3 v[{64+4*k}:{66+4*k}], v10, s[44:47], 0 offen offset:{12*k}')
for k in range(3): A(f'buffer_load_dwordx3 v[{80+4*k}:{82+4*k}], v9, s[48:51], 0 offen offset:{12*k}')
A('v_mov_b32 v100, 0','s_waitcnt vmcnt(0)')
for k in range(3):
    for i in range(3):
        x=64+4*k+i; w=80+4*k+i
        A(f'v_lshlrev_b32 v96, 16, v{x}',f'v_lshlrev_b32 v97, 16, v{w}',f'v_and_b32 v98, 0xffff0000, v{x}',f'v_and_b32 v99, 0xffff0000, v{w}')
        A('v_mul_f32 v96, v96, v97','v_mul_f32 v98, v98, v99','v_cvt_pk_bf16_f32 v96, v96, v98','v_lshlrev_b32 v97, 16, v96','v_and_b32 v98, 0xffff0000, v96')
        A('v_add_f32 v100, v100, v97','v_add_f32 v100, v100, v98')
allreduce('v_add_f32',[100],['x1','x2','hm','m','r16'],tmp=101)
A('v_cvt_pk_bf16_f32 v100, v100, v100','v_and_b32 v100, 0xffff0000, v100',f'v_mul_f32 v100, {hex(f2u(-1.4426950408889634))}, v100')
A('v_exp_f32 v100, v100','s_nop 0','v_add_f32 v100, 1.0, v100','v_rcp_f32 v100, v100','s_nop 0')
A('v_cvt_pk_bf16_f32 v100, v100, v100','v_and_b32 v100, 0xffff0000, v100')
A('v_sub_f32 v101, 1.0, v100','v_cvt_pk_bf16_f32 v101, v101, v101','v_and_b32 v101, 0xffff0000, v101')
A('v_lshrrev_b32 v9, 5, v0','v_lshlrev_b32 v9, 3, v9',f'v_add_u32 v9, {hex(GL)}, v9','ds_write_b64 v9, v[100:101]')
A('v_mov_b32 v9, 1',f'v_mov_b32 v10, {hex(GF)}','ds_write_b32 v10, v9')
reducer('X')

A('.p2align 6','L_W:')
A('s_sub_u32 s15, s3, 8')
A('v_lshlrev_b32 v3, 4, v1',f'v_mov_b32 v9, {hex(OOB)}','s_cmp_eq_u32 s15, 4','s_cselect_b32 s60, 0xff00ff00, 0','s_mov_b32 s61, s60')
A('v_cndmask_b32 v3, v3, v9, s[60:61]')
A(f'v_mul_u32_u24 v4, {4*1152}, v2','v_add_u32 v4, v4, v3')
A('v_mul_u32_u24 v5, 1152, v2','v_add_u32 v5, v5, v3','s_mov_b32 s62, 0','s_mov_b32 s63, -1','v_cndmask_b32 v5, v5, v9, s[62:63]')
A('s_lshl_b32 s8, s15, 8',f's_mul_i32 s10, s2, {18*1152}','s_add_u32 s10, s10, s8',f's_add_u32 s13, s10, {16*1152}')
A('s_lshl_b32 s12, s4, 4','s_add_u32 s12, s12, s7',f's_mul_i32 s12, s12, {16*1152}','s_add_u32 s12, s12, s8')
A('v_lshrrev_b32 v120, 5, v0','v_lshlrev_b32 v121, 3, v120',f'v_add_u32 v121, {hex(GL)}, v121')
A('v_mul_u32_u24 v120, 576, v120','v_lshl_add_u32 v120, v1, 3, v120','v_and_b32 v122, 1, v2','v_lshl_add_u32 v120, v122, 2, v120')
A('s_lshl_b32 s8, s15, 7','v_add_u32 v120, s8, v120')
if FLAY=='t': A('v_and_b32 v122, 15, v120','v_lshrrev_b32 v120, 4, v120','v_lshlrev_b32 v120, 14, v120','v_lshl_add_u32 v120, v122, 2, v120')
else: A('v_lshlrev_b32 v120, 2, v120')
A('v_cndmask_b32 v120, v120, v9, s[60:61]')
if PSW: A('s_and_b32 s14, s2, 7','s_lshl_b32 s14, s14, 5','s_lshr_b32 s8, s2, 3','s_add_u32 s14, s14, s8','s_lshl_b32 s14, s14, 6')
else: A('s_lshl_b32 s14, s2, 6')
if FLAY=='c': A('s_mul_i32 s14, s14, 72')
A(f's_add_u32 s14, s14, {hex(FP)}')
A('v_lshlrev_b32 v122, 4, v0',f'v_add_u32 v122, {hex(YH)}, v122','v_lshlrev_b32 v123, 3, v0',f'v_add_u32 v123, {hex(YO)}, v123')
A('s_waitcnt lgkmcnt(0)')
epoch_load()
srd(44,24,4096*1152); srd(48,30,4608*1152)
tag_ready()
A(*BB)
selectors(8,104)
thr=sum(t<<(6*i) for i,t in enumerate(THR))
A(f's_mov_b32 s8, {hex(thr)}','s_mul_i32 s9, s15, 6','s_lshr_b32 s8, s8, s9','s_and_b32 s64, s8, 63')
if PT:
    lds_spin(LD,8,104,'pt',sleep=4)
    A('buffer_load_dwordx4 v[76:79], v120, s[52:55], s14 offen')
lds_spin(GF,1,104,'gl',sleep=4)
A('ds_read_b64 v[72:73], v121')
lds_spin(LD,'s64',104,'wg',sleep=2)
if WPB<5:
    A(f's_cmp_lt_u32 s15, {WPB}','s_cbranch_scc1 L_Wnopb')
    lds_spin(PB,1,104,'wpb',sleep=0)
    A('L_Wnopb:')
A('s_setprio 1')
for t in range(4): A(f'buffer_load_dwordx4 v[{16+4*t}:{19+4*t}], v4, s[48:51], s10 offen offset:{t*1152}{PW}')
A(f'buffer_load_dwordx4 v[32:35], v5, s[48:51], s13 offen{PW}')
for t in range(4): A(f'buffer_load_dwordx4 v[{36+4*t}:{39+4*t}], v4, s[44:47], s12 offen offset:{t*1152}{PW}')
stamp(15,'W')
lds_spin(YHF,1,104,'yh',sleep=1)
A('ds_read_b128 v[64:67], v122','s_waitcnt lgkmcnt(0)')
for t in range(5):
    a=104+4*(t&1)
    buildA(a, 64+t//2, t&1)
    A(f's_waitcnt vmcnt({8-t})','s_nop 0')
    mfma(116,a,16+4*t,t==0)
A('s_nop 7')
if WDK: A('v_mov_b32 v104, 1',f'v_mov_b32 v105, {hex(WD)}','s_mov_b64 exec, 1','ds_add_u32 v105, v104','s_mov_b64 exec, -1')
for r in range(4): A(f'v_mul_f32 v{116+r}, v73, v{116+r}')
A('s_setprio 3')
if FINE==2:
    A('s_waitcnt vmcnt(0)'); stamp(8,'W')
lds_spin(YOF,1,104,'yo',sleep=0)
A('ds_read_b64 v[64:65], v123','s_waitcnt vmcnt(0) lgkmcnt(0)')
if not FINE: stamp(8,'W')
for t in range(4):
    buildA(80+4*t, 64+t//2, t&1)
    if t>0: mfma(112,80+4*(t-1),36+4*(t-1),t==1)
A('s_nop 0')
mfma(112,92,48,False)
A('s_nop 7')
for r in range(4): A(f'v_fma_f32 v{112+r}, v72, v{112+r}, v{116+r}')
for r in range(4): A(f'v_bfi_b32 v{112+r}, s41, v7, v{112+r}')
A('buffer_store_dwordx4 v[112:115], v120, s[52:55], s14 offen sc1')
stamp(9,'W')
A(f's_cmp_ge_u32 s2, {NRED}','s_cbranch_scc1 L_Wend')
if ACK: A('s_waitcnt vmcnt(0)')
A('s_barrier','L_Wend:')
flush_stamps('W')
A('L_end:','s_endpgm','L_code_end:')
A('.section .rodata,"a"','.p2align 6',f'.amdhsa_kernel {KNAME}')
A('  .amdhsa_next_free_vgpr 128','  .amdhsa_next_free_sgpr 102','  .amdhsa_accum_offset 128')
A('  .amdhsa_group_segment_fixed_size 0','  .amdhsa_kernarg_size 96','  .amdhsa_user_sgpr_count 2','  .amdhsa_user_sgpr_kernarg_segment_ptr 1','  .amdhsa_system_sgpr_workgroup_id_x 1')
A('  .amdhsa_float_denorm_mode_32 3','.end_amdhsa_kernel')
import subprocess, re, os
def emit(nl):
    t='\n'.join(L)+'\n'
    return t.replace('PFSTEP',hex(0x100+0) if nl is None else f'{(nl+31)//32:#x}').replace('NLINES',hex(0x100) if nl is None else f'{nl:#x}')
def size_of(txt):
    open(out+'.tmp.s','w').write(txt)
    subprocess.run(['clang','-x','assembler','-target','amdgcn-amd-amdhsa','-mcpu=gfx950','-c',out+'.tmp.s','-o',out+'.tmp.o'],check=True)
    o=subprocess.run(['llvm-readelf','-S',out+'.tmp.o'],capture_output=True,text=True).stdout
    os.remove(out+'.tmp.s'); os.remove(out+'.tmp.o')
    m=re.search(r'\.text\s+PROGBITS\s+\w+\s+\w+\s+(\w+)',o)
    return int(m.group(1),16)
sz=size_of(emit(None)); nl=sz//128
txt=emit(nl); sz2=size_of(txt); assert nl*128<=sz2, (sz,sz2)
open(out,'w').write(txt)
print('code bytes',sz2,end=' ')
print('lines',len(L),'lds',LDS,'ws end',hex(WS_END))
```

```python
import sys, struct
KNAME='gated_mix__sliding_block_cached__dense_activation_relu__decode_kernel'
opts=dict(a.split('=') for a in sys.argv[2:])
out=sys.argv[1]
def I(n,d): return int(opts.get(n,d))
STAMPS=I('stamps',0); PROBE=I('probe',-1); PMUL=I('pmul',2); FINE=I('fine',0)
SPIN=I('spin',1<<17); GSPIN=I('gspin',1<<17); WIN=I('win',32)
THR=[int(x) for x in opts.get('thr','26,28,31,32,32').split(',')]
RP=opts.get('ramp','20').split(',')
RAMPC={int(x.split(':')[0]):int(x.split(':')[1]) for x in RP[:-1]}; RAMPN=int(RP[-1])
SLP=I('slp',1); WIN2=I('win2',0); N2=I('n2',64); FLD=opts.get('fld','sc1').replace('+',' '); FSLP=I('fslp',0); FLAY=opts.get('flay','c'); FDL=I('fdl',0); PR=I('pr',0); PSL=I('psl',6); ACK=I('ack',1); WPB=I('wpb',9); CPF=I('cpf',24); CSZ=I('csz',0); SPEC=I('spec',1); WGS=I('wgs',2); RND=I('rnd',1); FAST=I('fast',1); NOQ=I('noq',0); NOH=I('noh',0); QFAST=I('qfast',0); WDK=I('wdk',0); HTH=I('hth',20); PSW=I('psw',1); QSL=I('qsl',4); PT=I('pt',0); NOST=I('nostore',0); NOPOLL=I('nopoll',0)
NRED=72
def pol(n):
    p=opts.get(n,'nt').replace('+',' ')
    return '' if p=='none' else ' '+p
PKV=pol('pkv'); PW=pol('pw')
def f2u(f): return struct.unpack('<I',struct.pack('<f',f))[0]
EPOCH=0x0
QP=0x1000
OP=QP+0x40000
HP=OP+0x80000
FP=HP+7*2*4608*4
QA=FP+256*4608
FL=QA+0x40000
WS_END=FL+256*128
WS_SIZE=0x10000000 if STAMPS else WS_END
STAMP_OFF=0x8000000
OOB=0x7f000000
VL=0x10000; SB=0x20000
QL=SB+0x000; PL=SB+0x200; ML=SB+0x600; QF=SB+0x640; PF=SB+0x644; OC=SB+0x648; FC=SB+0x64c; LD=SB+0x650; CR=SB+0x654; YHF=SB+0x658; YOF=SB+0x65c; WD=SB+0x660; PB=SB+0x664
GL=SB+0x680; GF=SB+0x690; OACC=SB+0x800; FSL=SB+0x1800; STL=SB+0x1A00; YH=SB+0x1C00; YO=SB+0x2000
LDS=SB+0x2200
SC=0.08838834764831845*1.4426950408889634
L=[]
def A(*ss):
    for s in ss:
        if NOST and s.startswith('buffer_store') and s.endswith(' sc1'): s='s_nop 0'
        if NOPOLL and s.startswith('buffer_load') and s.endswith(' sc1'): s='s_nop 0'
        L.append(s)
lab=[0]
def newlab(p):
    lab[0]+=1; return f'L_{p}{lab[0]}'
FIRST={'C':7 if FINE else 4,'L':2,'Q':0,'H':1,'X':3,'W':11 if FINE==2 else (12 if FINE==4 else 8)}
def srd(d,p,n):
    A(f's_mov_b32 s{d}, s{p}', f's_mov_b32 s{d+1}, s{p+1}', f's_mov_b32 s{d+2}, {hex(n)}', f's_mov_b32 s{d+3}, 0x20000')
stamp_regs={}
def stamp(k, role):
    if FINE in (3,4) and k in (4,5,13,15) and role!='Q': return
    if PROBE==k:
        sk=newlab('pk')
        A(f's_cmp_lg_u32 s3, {FIRST[role]}', f's_cbranch_scc1 {sk}')
        A('s_memrealtime s[84:85]','s_waitcnt lgkmcnt(0)','v_mov_b32 v30, s84',f'v_mov_b32 v31, {STL}','ds_write_b32 v31, v30','s_waitcnt lgkmcnt(0)')
        A(f'{sk}:')
    if not STAMPS: return
    lst=stamp_regs.setdefault(role,[])
    i=len(lst); lst.append(k); assert i<8
    A(f's_memrealtime s[{84+2*i}:{85+2*i}]')
def stamp_now(k):
    if not STAMPS: return
    A('s_memrealtime s[80:81]','s_waitcnt lgkmcnt(0)','v_mov_b32 v20, s80','v_mov_b32 v21, s81','v_mov_b32 v22, 0')
    A('s_lshl_b32 s8, s2, 7', f's_add_u32 s8, s8, {hex(STAMP_OFF)}')
    A(f'buffer_store_dwordx2 v[20:21], v22, s[52:55], s8 offen offset:{8*k}')
def flush_stamps(role):
    if not STAMPS: return
    lst=stamp_regs.get(role,[])
    skip=newlab('nost')
    A('s_mov_b64 exec, -1', f's_cmp_lg_u32 s3, {FIRST[role]}', f's_cbranch_scc1 {skip}', 's_waitcnt lgkmcnt(0)')
    A('s_lshl_b32 s8, s2, 7', f's_add_u32 s8, s8, {hex(STAMP_OFF)}', 'v_mov_b32 v3, 0')
    for i,k in enumerate(lst):
        A(f'v_mov_b32 v4, s{84+2*i}', f'v_mov_b32 v5, s{85+2*i}', f'buffer_store_dwordx2 v[4:5], v3, s[52:55], s8 offen offset:{k*8}', 's_waitcnt vmcnt(0)')
    A(f'{skip}:')
def epoch_load():
    A(f's_load_dword s40, s[38:39], {EPOCH}')
    srd(52,38,WS_SIZE)
    A('s_mov_b32 s41, 0xfff')
def tag_ready():
    A('s_waitcnt lgkmcnt(0)','s_add_u32 s42, s40, 1','s_and_b32 s40, s42, s41','v_mov_b32 v7, s40')
def selectors(base, tmp):
    A(f'v_mov_b32 v{tmp}, 0x0c0c0100', f'v_mov_b32 v{tmp+1}, 0x01000c0c', 's_mov_b32 s60, 0xaaaaaaaa', 's_mov_b32 s61, 0xaaaaaaaa')
    A(f'v_cndmask_b32 v{tmp}, v{tmp}, v{tmp+1}, s[60:61]')
    A(f'v_mov_b32 v{tmp+1}, 0x0c0c0302', f'v_mov_b32 v{tmp+2}, 0x03020c0c')
    A(f'v_cndmask_b32 v{tmp+1}, v{tmp+1}, v{tmp+2}, s[60:61]')
    A(f'v_mov_b32 v{tmp+2}, 0x0c0c0c0c')
    for d in range(4):
        m=(0x03030303<<(2*d))&0xffffffff
        A(f's_mov_b32 s60, {hex(m)}', f's_mov_b32 s61, {hex(m)}')
        A(f'v_cndmask_b32 v{base+d}, v{tmp+2}, v{tmp}, s[60:61]', f'v_cndmask_b32 v{base+4+d}, v{tmp+2}, v{tmp+1}, s[60:61]')
def buildA(dst, src, odd, sel=8):
    for d in range(4): A(f'v_perm_b32 v{dst+d}, v{src}, v{src}, v{sel+(4 if odd else 0)+d}')
def mfma(d,a,b,first):
    c='0' if first else f'v[{d}:{d+3}]'
    A(f'v_mfma_f32_16x16x32_bf16 v[{d}:{d+3}], v[{a}:{a+3}], v[{b}:{b+3}], {c}')
def lds_spin(addr, val, vt, name, sleep=1):
    l=newlab(name); d=newlab(name+'d')
    A(f'v_mov_b32 v{vt}, {hex(addr)}', f's_mov_b32 s62, {SPIN}', f'{l}:', f'ds_read_b32 v{vt+1}, v{vt}', 's_sub_u32 s62, s62, 1', 's_waitcnt lgkmcnt(0)')
    A(f'v_readfirstlane_b32 s63, v{vt+1}', f's_cbranch_scc1 {d}', f's_cmp_ge_u32 s63, {val}')
    if sleep: A(f's_cbranch_scc1 {d}', f's_sleep {sleep*SLP}', f's_branch {l}')
    else: A(f's_cbranch_scc0 {l}')
    A(f'{d}:')
def mpoll(loads, name, chk, init='-1', slp=0):
    lp=newlab(name); go=newlab(name+'go')
    for i,_ in enumerate(loads): A(f's_mov_b64 s[{72+2*i}:{73+2*i}], {init}')
    A(f's_mov_b32 s62, {GSPIN}', f'{lp}:')
    if slp: A(f's_sleep {slp}')
    for i,(d,n,t) in enumerate(loads):
        sk=newlab('sk')
        A(f's_mov_b64 exec, s[{72+2*i}:{73+2*i}]', f's_cbranch_execz {sk}', t, f'{sk}:')
    A('s_sub_u32 s62, s62, 1', f's_cbranch_scc1 {go}', 's_waitcnt vmcnt(0)')
    if FINE==4 and name=='op':
        A(f's_cmp_lg_u32 s62, {GSPIN-1}','s_cbranch_scc1 L_nf4'); stamp(5,'Q'); A('L_nf4:')
    for i,(d,n,t) in enumerate(loads):
        A(f's_mov_b64 exec, s[{72+2*i}:{73+2*i}]')
        for k in range(n): A(f'v_xor_b32 v{d+k}, v7, v{d+k}')
        if n==4: A(f'v_or3_b32 v{chk}, v{d}, v{d+1}, v{d+2}', f'v_or_b32 v{chk}, v{chk}, v{d+3}', f'v_and_b32 v{chk}, s41, v{chk}')
        else: A(f'v_and_b32 v{chk}, s41, v{d}')
        A(f'v_cmp_ne_u32 s[{72+2*i}:{73+2*i}], 0, v{chk}')
    A('s_nop 0', 's_or_b64 s[76:77], s[72:73], s[74:75]', f's_cbranch_scc1 {lp}', f'{go}:', 's_mov_b64 exec, -1', 's_waitcnt vmcnt(0)')
DPP=' row_mask:0xf bank_mask:0xf'
def allreduce(op, regs, steps, tmp=None):
    n=len(regs); pad=max(0,2-(n-1))
    ctl={'x1':'quad_perm:[1,0,3,2]','x2':'quad_perm:[2,3,0,1]','hm':'row_half_mirror','m':'row_mirror','ror4':'row_ror:4','ror8':'row_ror:8'}
    for s in steps:
        if s in ctl:
            if pad: A(f's_nop {pad-1}')
            for r in regs: A(f'{op}_dpp v{r}, v{r}, v{r} {ctl[s]}{DPP}')
        else:
            ins='v_permlane16_swap_b32' if s=='r16' else 'v_permlane32_swap_b32'
            for i,r in enumerate(regs): A(f'v_mov_b32 v{tmp+i}, v{r}')
            A('s_nop 1')
            for i,r in enumerate(regs): A(f'{ins} v{r}, v{tmp+i}')
            A('s_nop 0')
            for i,r in enumerate(regs): A(f'{op} v{r}, v{r}, v{tmp+i}')
def pkadd(d,a,b):
    for k in (0,2): A(f'v_pk_add_f32 v[{d+k}:{d+k+1}], v[{a+k}:{a+k+1}], v[{b+k}:{b+k+1}]')
BB=('s_barrier',)

A(f'; @launch grid=(256,1,1) block=(832,1,1) lds={LDS}')
A('.amdgcn_target "amdgcn-amd-amdhsa--gfx950"','.text',f'.globl {KNAME}','.p2align 8',f'.type {KNAME},@function',f'{KNAME}:')
if STAMPS or PROBE>=0: A('s_memrealtime s[82:83]')
A('s_cmp_ge_u32 s2, 256','s_cbranch_scc1 L_end')
A('s_load_dwordx16 s[16:31], s[0:1], 0','s_load_dwordx8 s[32:39], s[0:1], 64')
A('v_lshrrev_b32 v1, 6, v0','v_and_b32 v0, 63, v0','s_and_b32 s4, s2, 7','v_readfirstlane_b32 s3, v1')
A('s_lshl_b32 s4, s4, 1','s_bfe_u32 s5, s2, 0x10003','s_add_u32 s4, s4, s5')
A('s_bfe_u32 s5, s2, 0x10004','s_lshr_b32 s6, s2, 5','s_lshr_b32 s7, s2, 4')
A('v_and_b32 v1, 15, v0','v_lshrrev_b32 v2, 4, v0')
if CPF:
    A('s_cmp_lg_u32 s3, 3','s_cbranch_scc1 L_nopf')
    A('s_getpc_b64 s[10:11]','s_and_b32 s10, s10, 0xffffff00','s_lshr_b32 s8, s2, 3','s_mul_i32 s8, s8, PFSTEP','v_add_u32 v3, s8, v0')
    A('v_subrev_u32 v4, NLINES, v3','v_min_u32 v3, v3, v4','v_lshlrev_b32 v3, 7, v3',f's_mov_b32 exec_lo, {hex(((1<<CPF)-1)&0xffffffff)}',f's_mov_b32 exec_hi, {hex(((1<<CPF)-1)>>32)}','global_load_dword v4, v3, s[10:11]','s_mov_b64 exec, -1','L_nopf:')
A('s_cmp_gt_u32 s3, 1','s_cbranch_scc1 L_disp')
QPOS=len(L)

RED_EMITTED=[0]
def reducer(role):
    if not STAMPS:
        if RED_EMITTED[0]:
            A('s_branch L_red'); return
        RED_EMITTED[0]=1; A('L_red:')
    fin=newlab('fin')
    A(f's_cmp_ge_u32 s2, {NRED}', f's_cbranch_scc1 {fin}', 's_setprio 0')
    A('v_lshlrev_b32 v5, 4, v0','v_and_b32 v6, 3, v0')
    if FLAY=='t': A('s_lshl_b32 s8, s2, 14','s_lshl_b32 s9, s3, 11','s_add_u32 s8, s8, s9',f's_add_u32 s8, s8, {hex(FP)}','s_add_u32 s11, s8, 1024')
    else: A('v_lshrrev_b32 v5, 2, v0','v_mul_u32_u24 v5, 4608, v5','v_lshl_add_u32 v5, v6, 4, v5',f's_mul_i32 s8, s3, {32*4608}','s_lshl_b32 s9, s2, 6','s_add_u32 s8, s8, s9',f's_add_u32 s8, s8, {hex(FP)}',f's_add_u32 s11, s8, {16*4608}')
    A('v_bfe_u32 v8, v0, 2, 2','v_lshl_add_u32 v8, v6, 2, v8','v_lshlrev_b32 v8, 5, v8','s_lshl_b32 s10, s3, 2',f's_add_u32 s10, s10, {hex(FSL)}','v_add_u32 v8, s10, v8')
    A('v_mov_b32 v11, 1',f'v_mov_b32 v10, {hex(FC)}','v_lshlrev_b32 v12, 5, v0',f'v_add_u32 v12, {hex(FSL)}, v12','v_lshlrev_b32 v13, 1, v0')
    srd(44,34,2304)
    A('s_lshl_b32 s10, s2, 5')
    A('s_mov_b32 s64, 0x00f000f0','s_mov_b32 s65, 0x00f000f0','s_mov_b32 s66, 0x0f000f00','s_mov_b32 s67, 0x0f000f00','s_mov_b32 s68, 0xf000f000','s_mov_b32 s69, 0xf000f000')
    A('s_barrier')
    if FDL: A(f's_sleep {FDL}')
    mpoll([(16,4,f'buffer_load_dwordx4 v[16:19], v5, s[52:55], s8 offen {FLD}'),(20,4,f'buffer_load_dwordx4 v[20:23], v5, s[52:55], s11 offen {FLD}')],'fp',9,slp=FSLP)
    if role=='C': stamp(10, role)
    for k in range(4): A(f'v_add_f32 v{16+k}, v{16+k}, v{20+k}')
    allreduce('v_add_f32',[16,17,18,19],['ror4','ror8'])
    A('v_cndmask_b32 v16, v16, v17, s[64:65]','v_cndmask_b32 v16, v16, v18, s[66:67]','v_cndmask_b32 v16, v16, v19, s[68:69]')
    allreduce('v_add_f32',[16],['r16','r32'],tmp=17)
    A('s_mov_b64 exec, 0xffff','ds_write_b32 v8, v16','s_mov_b64 exec, 1','ds_add_rtn_u32 v9, v10, v11','s_mov_b64 exec, 0xffff')
    if SPEC: A('ds_read_b128 v[16:19], v12','ds_read_b128 v[20:23], v12 offset:16','s_waitcnt lgkmcnt(2)')
    else: A('s_waitcnt lgkmcnt(0)')
    A('v_readfirstlane_b32 s8, v9','s_cmp_lg_u32 s8, 7',f's_cbranch_scc1 {fin}')
    if not SPEC: A('ds_read_b128 v[16:19], v12','ds_read_b128 v[20:23], v12 offset:16')
    A('s_waitcnt lgkmcnt(0)')
    pkadd(16,16,20)
    A('v_pk_add_f32 v[16:17], v[16:17], v[18:19]','v_add_f32 v16, v16, v17','v_cvt_pk_bf16_f32 v16, v16, v16')
    A('buffer_store_short v16, v13, s[44:47], s10 offen')
    stamp_now(11)
    A('s_mov_b64 exec, 1','s_cmp_lg_u32 s2, 0',f's_cbranch_scc1 {fin}')
    if PROBE>=0:
        pl=newlab('pl')
        A('s_memrealtime s[80:81]',f'v_mov_b32 v31, {STL}','ds_read_b32 v30, v31','s_waitcnt lgkmcnt(0)','v_readfirstlane_b32 s84, v30')
        if PROBE==11: A('s_mov_b32 s84, s80')
        A('s_sub_u32 s84, s84, s82','s_min_u32 s84, s84, 10000',f's_mul_i32 s84, s84, {PMUL}')
        A(f'{pl}:','s_memrealtime s[86:87]','s_waitcnt lgkmcnt(0)','s_sub_u32 s86, s86, s80','s_cmp_lt_u32 s86, s84',f's_cbranch_scc1 {pl}')
    A('v_mov_b32 v9, s42','v_mov_b32 v8, 0',f'buffer_store_dword v9, v8, s[52:55], 0 offen offset:{EPOCH}')
    A(f'{fin}:')
    flush_stamps(role)
    A('s_endpgm')

def gemv_loop(n, credits):
    A(f's_waitcnt vmcnt({n})')
    for t in range(n):
        a=(28,120)[t&1]
        buildA(a, 16+t//2, t&1)
        A(f's_waitcnt vmcnt({n-1-t})')
        A('s_memrealtime s[98:99]' if (FINE==3 and t==0) else 's_nop 0')
        mfma(124,a,32+4*t,t==0)
        if t in credits: A('s_mov_b64 exec, 1','ds_add_u32 v6, v3','s_mov_b64 exec, -1')
    A('s_nop 7')
    for r in range(4): A(f'v_bfi_b32 v{124+r}, s41, v7, v{124+r}')
    A('buffer_store_dwordx4 v[124:127], v5, s[52:55], s13 offen sc1')

A('s_setprio 3')
A('s_mul_i32 s9, s2, 293','s_lshr_b32 s9, s9, 11','s_mul_i32 s10, s9, 7','s_sub_u32 s10, s2, s10')
A('s_mul_i32 s11, s10, 88','s_mul_i32 s12, s10, 80','s_add_u32 s12, s12, 16','s_min_u32 s11, s11, s12')
A('s_cmp_lt_u32 s10, 2','s_cselect_b32 s14, 22, 20',f's_cselect_b32 s57, 0, {hex(OOB)}')
A('s_lshl_b32 s15, s9, 8','s_cmp_ge_u32 s2, 252',f's_cselect_b32 s15, {hex(OOB)}, s15')
A('s_lshr_b32 s12, s7, 1','s_mul_i32 s13, s12, 72','s_and_b32 s8, s7, 1','s_lshl_b32 s58, s4, 1','s_add_u32 s58, s58, s8','s_lshl_b32 s59, s58, 8')
A('s_lshl_b32 s43, s3, 10','s_add_u32 s43, s43, 8192')
A('s_cmp_eq_u32 s3, 0','s_cselect_b32 s11, s13, s11','s_cselect_b32 s14, 18, s14','s_cselect_b32 s15, s59, s15',f's_cselect_b32 s56, {hex(OOB)}, 0','s_cselect_b32 s57, 0, s57')
A('s_mul_i32 s8, s14, s43','v_mul_u32_u24 v3, s8, v2','v_lshl_add_u32 v3, v1, 4, v3')
A('v_bfe_u32 v4, v0, 3, 1','v_mul_u32_u24 v4, 1152, v4','s_lshl_b32 s8, s14, 1','v_mul_u32_u24 v5, s8, v2','v_add_u32 v4, v4, v5')
A('s_lshl_b32 s8, s11, 1','s_mul_i32 s11, s11, s43','s_add_u32 s11, s11, s15','s_mul_i32 s50, s43, 576','s_mov_b32 s51, 0x20000','s_mov_b32 s46, 2304','s_mov_b32 s47, 0x20000','s_cmp_eq_u32 s3, 0')
A('s_waitcnt lgkmcnt(0)')
if FINE==3: A('s_memrealtime s[94:95]')
A('s_mov_b32 s44, s16','s_mov_b32 s45, s17','s_cselect_b32 s48, s22, s28','s_cselect_b32 s49, s23, s29')
A('buffer_load_dwordx4 v[16:19], v4, s[44:47], s8 offen','buffer_load_dwordx4 v[20:23], v4, s[44:47], s8 offen offset:16','buffer_load_dwordx3 v[24:26], v4, s[44:47], s8 offen offset:32')
for t in range(22):
    A(f'buffer_load_dwordx4 v[{32+4*t}:{35+4*t}], v3, s[48:51], s11 offen{PW}')
    if t<21: A('s_add_u32 s11, s11, s43')
    if t==17: A('s_add_u32 s11, s11, s56')
    if t==19: A('s_add_u32 s11, s11, s57')
if FINE==3: A('s_memrealtime s[96:97]')
A(f's_load_dword s40, s[38:39], {EPOCH}')
srd(52,38,WS_SIZE); A('s_mov_b32 s41, 0xfff')
A(f's_mul_i32 s13, s10, {2*4608*4}','s_lshl_b32 s8, s15, 1','s_add_u32 s13, s13, s8',f's_add_u32 s13, s13, {hex(HP)}')
A('s_lshl_b32 s8, s4, 14','s_lshl_b32 s9, s12, 10','s_add_u32 s8, s8, s9','s_and_b32 s9, s7, 1','s_lshl_b32 s9, s9, 9','s_add_u32 s8, s8, s9',f's_add_u32 s8, s8, {hex(QP)}')
A('s_cmp_ge_u32 s2, 252',f's_cselect_b32 s13, {hex(OOB)}, s13','s_cmp_eq_u32 s3, 0','s_cselect_b32 s13, s8, s13','s_mul_i32 s8, s3, 10240','s_add_u32 s8, s8, 8192')
A('v_lshrrev_b32 v5, 1, v2','v_mul_u32_u24 v5, s8, v5','v_lshl_add_u32 v5, v1, 5, v5','v_and_b32 v6, 1, v2','v_lshl_add_u32 v5, v6, 4, v5')
tag_ready()
A(*BB)
selectors(8, 120)
A(f'v_mov_b32 v6, {hex(CR)}','v_mov_b32 v3, 1')
gemv_loop(22,(9,17))
A('s_cmp_lg_u32 s3, 0','s_cbranch_scc1 L_H2')
A('s_getreg_b32 s15, hwreg(HW_REG_XCC_ID, 0, 3)','s_lshl_b32 s8, s42, 3','s_or_b32 s15, s15, s8')
A('v_lshlrev_b32 v26, 7, v0','v_mov_b32 v27, s15','s_lshl_b32 s14, s4, 11','s_lshl_b32 s8, s7, 2','s_add_u32 s14, s14, s8',f's_add_u32 s14, s14, {hex(FL)}')
A('s_mov_b64 exec, 0xffff','buffer_store_dword v27, v26, s[52:55], s14 offen sc1','s_mov_b64 exec, -1')
stamp(1,'Q')
if FINE==3:
    A('s_waitcnt lgkmcnt(0)','s_lshl_b32 s8, s2, 7', f's_add_u32 s8, s8, {hex(STAMP_OFF)}','v_mov_b32 v22, 0')
    for sr,k in ((82,4),(94,5),(96,13),(98,15)):
        A(f'v_mov_b32 v20, s{sr}',f'v_mov_b32 v21, s{sr+1}',f'buffer_store_dwordx2 v[20:21], v22, s[52:55], s8 offen offset:{8*k}','s_nop 1')
A('v_lshlrev_b32 v5, 4, v0')
A('s_lshl_b32 s13, s4, 1','s_add_u32 s13, s13, s5','s_lshl_b32 s13, s13, 13',f's_add_u32 s13, s13, {hex(QP)}','s_add_u32 s14, s13, 4096')
A('s_lshl_b32 s8, s4, 4','s_add_u32 s8, s8, s7','s_lshl_b32 s8, s8, 7',f's_add_u32 s8, s8, {hex(FL)}','s_add_u32 s46, s38, s8','s_addc_u32 s47, s39, 0')
A('s_mov_b32 s8, 1',f's_mov_b32 s62, {GSPIN}','L_qprobe:',f's_sleep {QSL}','s_load_dwordx16 s[64:79], s[46:47], 0 glc','s_sub_u32 s62, s62, 1','s_cbranch_scc1 L_qfetch0','s_waitcnt lgkmcnt(0)')
A('s_xor_b32 s8, s64, s15')
for p in range(1,16): A(f's_xor_b32 s9, s{64+p}, s15','s_or_b32 s8, s8, s9')
A('s_lshr_b32 s9, s8, 3')
A('s_cbranch_scc1 L_qprobe','L_qfetch0:',f's_mov_b32 s62, {GSPIN}','s_waitcnt lgkmcnt(0)')
if QFAST: A('s_cmp_eq_u32 s8, 0',f's_cselect_b32 s9, {QA-QP}, 0','s_add_u32 s13, s13, s9','s_add_u32 s14, s14, s9')
if FINE==1: stamp(8,'Q')
A('L_qfetch:')
if NOQ: A('s_branch L_qgo')
for r in range(8): A(f'buffer_load_dwordx4 v[{32+4*r}:{35+4*r}], v5, s[52:55], s{13 if r<4 else 14} offen offset:{(r&3)*1024} sc1')
A('s_sub_u32 s62, s62, 1','s_cbranch_scc1 L_qgo','v_mov_b32 v6, 0')
for r in range(8):
    A(f's_waitcnt vmcnt({7-r})')
    for k in range(4): A(f'v_xor_b32 v{32+4*r+k}, v7, v{32+4*r+k}')
    A(f'v_or3_b32 v6, v6, v{32+4*r}, v{33+4*r}',f'v_or3_b32 v6, v6, v{34+4*r}, v{35+4*r}')
A('v_and_b32 v6, s41, v6','v_cmp_ne_u32 vcc, 0, v6','s_cbranch_vccnz L_qfetch','L_qgo:','s_waitcnt vmcnt(0)')
for r in (0,2,4,6): pkadd(32+4*r,32+4*r,36+4*r)
pkadd(32,32,40); pkadd(48,48,56); pkadd(32,32,48)
A('v_cvt_pk_bf16_f32 v32, v32, v33','v_cvt_pk_bf16_f32 v33, v34, v35','v_lshlrev_b32 v5, 3, v0',f'v_add_u32 v5, {hex(QL)}, v5','ds_write_b64 v5, v[32:33]')
A('s_cmp_eq_u32 s8, 0',f's_cselect_b32 s9, {1+FAST}, 1','v_mov_b32 v6, s9',f'v_mov_b32 v5, {hex(QF)}','ds_write_b32 v5, v6')
stamp(2,'Q')
A('v_lshlrev_b32 v123, 11, v1','v_lshl_add_u32 v122, v2, 4, v123')
A('s_lshl_b32 s43, s4, 15','s_lshl_b32 s8, s7, 7','s_add_u32 s43, s43, s8',f's_add_u32 s43, s43, {hex(OP)}')
A('v_lshlrev_b32 v121, 3, v0',f'v_add_u32 v121, {hex(YO)}, v121',f'v_mov_b32 v120, {hex(YOF)}','v_mov_b32 v119, 1')
lds_spin(PB,1,104,'oc',sleep=1)
if WDK: lds_spin(WD,WDK,104,'wd',sleep=0)
if FINE==4: stamp(4,'Q')
if PR:
    for k in range(PR):
        if k: A(f's_sleep {PSL}')
        A(f'buffer_load_dwordx4 v[{16+8*k}:{19+8*k}], v122, s[52:55], s43 offen sc1',f'buffer_load_dwordx4 v[{20+8*k}:{23+8*k}], v123, s[52:55], s43 offen offset:64 sc1')
    for k in range(PR):
        A(f's_waitcnt vmcnt({2*(PR-1-k)})')
        for i in range(8): A(f'v_xor_b32 v{64+i}, v7, v{16+8*k+i}')
        A('v_or3_b32 v74, v64, v65, v66','v_or3_b32 v74, v74, v67, v68','v_or3_b32 v74, v74, v69, v70','v_or_b32 v74, v74, v71','v_and_b32 v74, s41, v74','v_cmp_ne_u32 vcc, 0, v74','s_cbranch_vccz L_odone')
mpoll([(64,4,'buffer_load_dwordx4 v[64:67], v122, s[52:55], s43 offen sc1'),(68,4,'buffer_load_dwordx4 v[68:71], v123, s[52:55], s43 offen offset:64 sc1')],'op',74)
A('L_odone:')
if FINE==4:
    A(f's_sub_u32 s8, {GSPIN}, s62','s_mul_i32 s8, s8, 100','s_waitcnt lgkmcnt(0)','s_add_u32 s98, s82, s8','s_addc_u32 s99, s83, 0','s_lshl_b32 s8, s2, 7', f's_add_u32 s8, s8, {hex(STAMP_OFF)}','v_mov_b32 v22, 0','v_mov_b32 v20, s98','v_mov_b32 v21, s99','buffer_store_dwordx2 v[20:21], v22, s[52:55], s8 offen offset:120')
stamp(7,'Q')
allreduce('v_max_f32',[70],['x1','x2','hm'])
A('v_sub_f32 v68, v68, v70','v_exp_f32 v68, v68','s_nop 0','v_mul_f32 v69, v68, v69')
for k in range(4): A(f'v_mul_f32 v{64+k}, v68, v{64+k}')
allreduce('v_add_f32',[69,64,65,66,67],['x1','x2','hm'])
A('v_rcp_f32 v69, v69','s_nop 0')
for k in range(4): A(f'v_mul_f32 v{64+k}, v69, v{64+k}')
A('v_cvt_pk_bf16_f32 v64, v64, v65','v_cvt_pk_bf16_f32 v65, v66, v67','ds_write_b64 v121, v[64:65]','ds_write_b32 v120, v119')
reducer('Q')

A('.p2align 6','L_disp:')
A('s_cmp_eq_u32 s3, 2','s_cbranch_scc1 L_L','s_cmp_eq_u32 s3, 3','s_cbranch_scc1 L_X','s_cmp_ge_u32 s3, 8','s_cbranch_scc1 L_W','s_branch L_C')
A('L_H2:')
stamp(12,'H')
A('v_and_b32 v6, 7, v0','v_lshlrev_b32 v6, 1, v6','v_bfe_u32 v9, v0, 3, 1','v_add_u32 v6, v6, v9',f'v_mul_u32_u24 v6, {4608*4}, v6')
A('v_mov_b32 v9, v6','v_lshl_add_u32 v6, v2, 4, v6')
A('s_mul_i32 s11, s2, 72',f's_add_u32 s11, s11, {hex(HP)}','s_and_b32 s8, s2, 1','s_lshl_b32 s8, s8, 3','s_sub_u32 s12, s11, s8')
A('s_cmp_eq_u32 s8, 0','s_cselect_b32 s64, 0, -1','s_mov_b32 s65, s64','s_mov_b32 s66, 0xffff0000','s_mov_b32 s67, 0xffff0000')
A('v_lshlrev_b32 v121, 4, v0',f'v_add_u32 v121, {hex(YH)}, v121',f'v_mov_b32 v120, {hex(YHF)}','v_mov_b32 v119, 1')
for k in range(8): A(f'v_mov_b32 v{64+k}, 0')
A('s_mov_b32 s78, 0x7f7f7f7f','s_mov_b32 s79, 0x7f7f7f7f')
lds_spin(LD,HTH,104,'hl',sleep=4)
if not NOH: mpoll([(64,4,'buffer_load_dwordx4 v[64:67], v6, s[52:55], s11 offen sc1'),(68,4,'buffer_load_dwordx4 v[68:71], v9, s[52:55], s12 offen offset:64 sc1')],'hp',72,init='s[78:79]')
A('v_cndmask_b32 v68, v68, v70, s[64:65]','v_cndmask_b32 v69, v69, v71, s[64:65]','v_cndmask_b32 v68, v68, v69, s[66:67]','s_nop 0')
stamp(13,'H')
allreduce('v_add_f32',[64,65,66,67,68],['x1','x2','hm'])
for k in range(5): A(f'v_max_f32 v{64+k}, 0, v{64+k}')
A('v_cvt_pk_bf16_f32 v64, v64, v65','v_cvt_pk_bf16_f32 v65, v66, v67','v_cvt_pk_bf16_f32 v66, v68, v68','ds_write_b128 v121, v[64:67]','ds_write_b32 v120, v119')
reducer('H')

A('.p2align 6','L_L:','s_setprio 3')
for u in range(4): A(f'v_add_u32 v8, {4*u}, v2','v_xor_b32 v8, v8, v1','v_lshlrev_b32 v8, 4, v8',f'v_lshl_add_u32 v{12+u}, v2, 8, v8')
A('v_lshlrev_b32 v3, 4, v0')
A('s_lshl_b32 s12, s5, 4','s_add_u32 s12, s12, s4','s_lshl_b32 s12, s12, 21','s_lshl_b32 s13, s6, 16','s_add_u32 s12, s12, s13','s_add_u32 s12, s12, 0x180000')
A('s_lshr_b32 s13, s2, 3','s_add_u32 s13, s13, s2')
for i in range(16): A(f's_add_u32 s14, s13, {i}','s_and_b32 s14, s14, 15','s_lshl_b32 s14, s14, 12',f's_add_u32 s{64+i}, s12, s14')
A(f'v_mov_b32 v9, {hex(LD)}','s_waitcnt lgkmcnt(0)')
epoch_load()
srd(44,18,0x4000000); srd(48,20,0x4000000)
tag_ready()
A(*BB)
n=0; sig=0
def signal(upto):
    global sig
    if upto>sig:
        sig=upto
        A(f'v_mov_b32 v10, {upto}','ds_write_b32 v9, v10')
for i in range(32):
    for u in range(4):
        if n in RAMPC: lds_spin(CR,RAMPC[n],16,'cr',sleep=0)
        if u==0: A(f's_mov_b32 m0, {hex(i*4096)}')
        w = RAMPN if n==RAMPN else (WIN2 if (WIN2 and n>=N2) else WIN)
        if n>=w:
            A(f's_waitcnt vmcnt({w-1})')
            signal((n-w+1)//4)
        elif u==0: A('s_nop 0')
        if i<16: A(f'buffer_load_dwordx4 v{12+u}, s[44:47], s{64+i} offen offset:{u*1024}{PKV} lds')
        else: A(f'buffer_load_dwordx4 v3, s[48:51], s{64+i-16} offen offset:{u*1024}{PKV} lds')
        n+=1
stamp(14,'L')
while sig<32:
    A(f's_waitcnt vmcnt({128-4*(sig+1)})')
    signal(sig+1)
stamp(3,'L')
reducer('L')

A('.p2align 6','L_C:','s_setprio 2','s_sub_u32 s15, s3, 4')
A('v_mov_b32 v4, 0','v_lshlrev_b32 v5, 2, v0',f'v_add_u32 v5, {hex(ML)}, v5','ds_write_b32 v5, v4')
A('v_lshlrev_b32 v122, 4, v0',f'v_add_u32 v122, {hex(OACC)}, v122','s_lshl_b32 s8, s15, 10','v_add_u32 v125, s8, v122')
A('s_waitcnt lgkmcnt(0)')
epoch_load()
tag_ready()
A(*BB)
selectors(8,104)
A('s_lshl_b32 s8, s15, 12')
for ks in range(4): A(f'v_add_u32 v4, {4*ks}, v2','v_xor_b32 v4, v4, v1','v_lshlrev_b32 v4, 4, v4','v_lshl_add_u32 v4, v1, 8, v4',f'v_add_u32 v{116+ks}, s8, v4')
A('v_lshlrev_b32 v3, 4, v0',f's_add_u32 s9, s8, {hex(VL)}','v_add_u32 v3, s9, v3')
A('v_and_b32 v5, 1, v0','v_lshlrev_b32 v5, 8, v5','v_lshl_add_u32 v5, v2, 4, v5',f'v_add_u32 v5, {hex(QL)}, v5')
A('s_lshl_b32 s8, s15, 8',f's_add_u32 s8, s8, {hex(PL)}')
A('v_and_b32 v6, 3, v0','v_lshlrev_b32 v6, 5, v6','v_lshrrev_b32 v4, 2, v0','v_lshl_add_u32 v6, v4, 1, v6','v_add_u32 v6, s8, v6')
A('v_bfe_u32 v4, v0, 3, 1','v_lshl_add_u32 v4, v4, 2, v2','v_lshlrev_b32 v4, 5, v4','v_add_u32 v123, s8, v4')
A('v_lshrrev_b32 v124, 5, v0','v_lshlrev_b32 v124, 4, v124',f'v_add_u32 v124, {hex(ML)}, v124')
A('v_lshrrev_b32 v121, 5, v0','v_lshlrev_b32 v121, 3, v121','v_lshrrev_b32 v4, 1, v1','v_add_u32 v121, v121, v4','v_lshlrev_b32 v121, 7, v121')
A('v_and_b32 v4, 1, v1','v_lshl_add_u32 v120, v4, 5, v121','v_and_b32 v4, 1, v2','v_lshl_add_u32 v120, v4, 4, v120')
A('s_lshl_b32 s12, s4, 1','s_add_u32 s12, s12, s5','s_lshl_b32 s12, s12, 3','s_add_u32 s12, s12, s6','s_lshl_b32 s12, s12, 11',f's_add_u32 s12, s12, {hex(OP)}')
A(f's_mov_b32 s43, {hex(f2u(1.4426950408889634 if RND else SC))}',f's_mov_b32 s74, {hex(f2u(0.08838834764831845))}')
A('s_mov_b32 s64, 0xffff0000','s_mov_b32 s65, 0','s_mov_b32 s66, 0','s_mov_b32 s67, 0xffff','s_mov_b32 s68, 0','s_mov_b32 s69, 0xffff0000')
if STAMPS:
    stamp_regs['C']=[0]; A('s_mov_b64 s[84:85], s[82:83]')
if PT:
    lds_spin(LD,4,16,'pt',sleep=4)
    A('s_cmp_lg_u32 s15, 0','s_cbranch_scc1 L_Cnopt','buffer_load_dwordx4 v[76:79], v120, s[52:55], s12 offen','L_Cnopt:')
lds_spin(QF,1,16,'qf',sleep=2)
A('s_mov_b32 s73, s63')
for ks in range(4): A(f'ds_read_b128 v[{80+4*ks}:{83+4*ks}], v5 offset:{ks*64}')
A('s_add_u32 s13, s15, 13')
lds_spin(LD,'s13',16,'kl')
A('s_mov_b32 s72, s63','s_waitcnt vmcnt(0)')
for t in range(4):
    for ks in range(4): A(f'ds_read_b128 v[{16+16*t+4*ks}:{19+16*t+4*ks}], v{116+ks} offset:{t*16384}')
for t in range(4):
    A(f's_waitcnt lgkmcnt({12-4*t})')
    for ks in range(4): mfma(96+4*t, 80+4*ks, 16+16*t+4*ks, ks==0)
A('s_nop 7')
for h in range(2): A(f'v_cndmask_b32 v{16+h}, v{96+h}, v{100+h}, s[64:65]')
for h in range(2): A(f'v_cndmask_b32 v{16+h}, v{16+h}, v{104+h}, s[66:67]')
for h in range(2): A(f'v_cndmask_b32 v{16+h}, v{16+h}, v{108+h}, s[68:69]')
if RND:
    A('v_cvt_pk_bf16_f32 v18, v16, v17','v_lshlrev_b32 v16, 16, v18','v_and_b32 v17, 0xffff0000, v18','v_mul_f32 v16, s74, v16','v_mul_f32 v17, s74, v17')
    A('v_cvt_pk_bf16_f32 v18, v16, v17','v_lshlrev_b32 v16, 16, v18','v_and_b32 v17, 0xffff0000, v18')
A('v_mov_b32 v18, v16','v_mov_b32 v19, v17')
allreduce('v_max_f32',[18,19],['x1','x2','hm','m','r16','r32'],tmp=20)
A('v_mul_f32 v18, s43, v18','v_mul_f32 v19, s43, v19','v_fma_f32 v16, v16, s43, -v18','v_fma_f32 v17, v17, s43, -v19')
A('v_exp_f32 v16, v16','v_exp_f32 v17, v17','s_nop 0','v_cvt_pk_bf16_f32 v22, v16, v17')
A('ds_write_b16 v6, v22','ds_write_b16_d16_hi v6, v22 offset:128','ds_read_b128 v[80:83], v123','ds_read_b128 v[84:87], v123 offset:16')
allreduce('v_add_f32',[16,17],['x1','x2','hm','m','r16','r32'],tmp=20)
A('s_lshl_b32 s8, s15, 2',f's_add_u32 s8, s8, {hex(ML)}','v_mov_b32 v5, s8','s_mov_b32 s70, -1','s_mov_b32 s71, 0')
A('v_cndmask_b32 v96, v19, v18, s[70:71]')
A('s_mov_b64 exec, 1','ds_write2_b32 v5, v18, v19 offset0:0 offset1:4','ds_write2_b32 v5, v16, v17 offset0:8 offset1:12')
A('v_mov_b32 v6, 1',f'v_mov_b32 v5, {hex(PF)}','ds_add_u32 v5, v6','s_mov_b64 exec, -1')
stamp(4,'C')
def factors():
    lds_spin(PF,4,104,'pf')
    A('ds_read_b128 v[88:91], v124','ds_read_b128 v[92:95], v124 offset:32','s_waitcnt lgkmcnt(0)')
    A('v_max3_f32 v97, v88, v89, v90','v_max_f32 v97, v97, v91','v_and_b32 v97, 0xfffff000, v97')
    for k in range(4): A(f'v_sub_f32 v{88+k}, v{88+k}, v97')
    A('v_sub_f32 v96, v96, v97')
    for k in range(4): A(f'v_exp_f32 v{88+k}, v{88+k}')
    A('v_exp_f32 v96, v96','v_mul_f32 v99, v88, v92')
    for k in range(1,4): A(f'v_fmac_f32 v99, v{88+k}, v{92+k}')
    A('v_or_b32 v100, v97, v7','v_bfi_b32 v101, s41, v7, v99','v_mov_b32 v102, v100','v_mov_b32 v103, v101')
    A('v_mov_b32 v106, 1',f'v_mov_b32 v107, {hex(OC)}')
A('s_waitcnt lgkmcnt(0)')
for tau in range(4):
    for u in range(4): buildA(32+4*u, 80+(4*tau+u)//2, u&1)
    if tau==3: factors()
    sk=newlab('vsk')
    A(f's_add_u32 s13, s15, {17+4*tau}','s_cmp_ge_u32 s72, s13',f's_cbranch_scc1 {sk}')
    lds_spin(LD,'s13',104,'vl',sleep=0)
    A('s_mov_b32 s72, s63',f'{sk}:')
    for u in range(4): A(f'ds_read_b128 v[{16+4*u}:{19+4*u}], v3 offset:{tau*16384+u*1024}')
    for u in range(4):
        A(f's_waitcnt lgkmcnt({3-u})')
        mfma(112,32+4*u,16+4*u,tau==0 and u==0)
A('s_nop 7')
for r in range(4): A(f'v_mul_f32 v{112+r}, v96, v{112+r}')
A('ds_write_b128 v125, v[112:115]','s_mov_b64 exec, 1','ds_add_rtn_u32 v106, v107, v106','s_mov_b64 exec, -1')
if SPEC:
    for w in range(4): A(f'ds_read_b128 v[{16+4*w}:{19+4*w}], v122 offset:{1024*w}')
A(f's_waitcnt lgkmcnt({4 if SPEC else 0})')
A('v_readfirstlane_b32 s8, v106','s_cmp_lg_u32 s8, 3','s_cbranch_scc1 L_Cnopub')
if not SPEC:
    for w in range(4): A(f'ds_read_b128 v[{16+4*w}:{19+4*w}], v122 offset:{1024*w}')
A('s_setprio 3','s_waitcnt lgkmcnt(2)')
pkadd(16,16,20)
A('s_waitcnt lgkmcnt(0)')
pkadd(24,24,28); pkadd(112,16,24)
for r in range(4): A(f'v_bfi_b32 v{112+r}, s41, v7, v{112+r}')
A('s_cmp_eq_u32 s73, 2','s_cbranch_scc1 L_Cfast')
A('buffer_store_dwordx4 v[112:115], v120, s[52:55], s12 offen sc1')
A('s_mov_b32 exec_lo, 0x5555','s_mov_b32 exec_hi, 0x5555','buffer_store_dwordx4 v[100:103], v121, s[52:55], s12 offen offset:64 sc1','s_branch L_Cpubd')
A('L_Cfast:','buffer_store_dwordx4 v[112:115], v120, s[52:55], s12 offen')
A('s_mov_b32 exec_lo, 0x5555','s_mov_b32 exec_hi, 0x5555','buffer_store_dwordx4 v[100:103], v121, s[52:55], s12 offen offset:64')
A('L_Cpubd:','s_mov_b64 exec, -1',f'ds_write_b32 v107, v107 offset:{PB-OC}')
stamp_now(6)
A('L_Cnopub:','s_waitcnt lgkmcnt(0)')
stamp(5,'C')
reducer('C')

A('.p2align 6','L_X:')
A('v_and_b32 v9, 31, v0','v_mul_u32_u24 v9, 36, v9','v_lshrrev_b32 v10, 5, v0','v_mul_u32_u24 v10, 1152, v10','v_add_u32 v10, v10, v9')
A('s_waitcnt lgkmcnt(0)')
epoch_load()
srd(44,16,2304); srd(48,32,1152)
tag_ready()
A(*BB)
for k in range(3): A(f'buffer_load_dwordx3 v[{64+4*k}:{66+4*k}], v10, s[44:47], 0 offen offset:{12*k}')
for k in range(3): A(f'buffer_load_dwordx3 v[{80+4*k}:{82+4*k}], v9, s[48:51], 0 offen offset:{12*k}')
A('v_mov_b32 v100, 0','s_waitcnt vmcnt(0)')
for k in range(3):
    for i in range(3):
        x=64+4*k+i; w=80+4*k+i
        A(f'v_lshlrev_b32 v96, 16, v{x}',f'v_lshlrev_b32 v97, 16, v{w}',f'v_and_b32 v98, 0xffff0000, v{x}',f'v_and_b32 v99, 0xffff0000, v{w}')
        A('v_mul_f32 v96, v96, v97','v_mul_f32 v98, v98, v99','v_cvt_pk_bf16_f32 v96, v96, v98','v_lshlrev_b32 v97, 16, v96','v_and_b32 v98, 0xffff0000, v96')
        A('v_add_f32 v100, v100, v97','v_add_f32 v100, v100, v98')
allreduce('v_add_f32',[100],['x1','x2','hm','m','r16'],tmp=101)
A('v_cvt_pk_bf16_f32 v100, v100, v100','v_and_b32 v100, 0xffff0000, v100',f'v_mul_f32 v100, {hex(f2u(-1.4426950408889634))}, v100')
A('v_exp_f32 v100, v100','s_nop 0','v_add_f32 v100, 1.0, v100','v_rcp_f32 v100, v100','s_nop 0')
A('v_cvt_pk_bf16_f32 v100, v100, v100','v_and_b32 v100, 0xffff0000, v100')
A('v_sub_f32 v101, 1.0, v100','v_cvt_pk_bf16_f32 v101, v101, v101','v_and_b32 v101, 0xffff0000, v101')
A('v_lshrrev_b32 v9, 5, v0','v_lshlrev_b32 v9, 3, v9',f'v_add_u32 v9, {hex(GL)}, v9','ds_write_b64 v9, v[100:101]')
A('v_mov_b32 v9, 1',f'v_mov_b32 v10, {hex(GF)}','ds_write_b32 v10, v9')
reducer('X')

A('.p2align 6','L_W:')
A('s_sub_u32 s15, s3, 8')
A('v_lshlrev_b32 v3, 4, v1',f'v_mov_b32 v9, {hex(OOB)}','s_cmp_eq_u32 s15, 4','s_cselect_b32 s60, 0xff00ff00, 0','s_mov_b32 s61, s60')
A('v_cndmask_b32 v3, v3, v9, s[60:61]')
A(f'v_mul_u32_u24 v4, {4*1152}, v2','v_add_u32 v4, v4, v3')
A('v_mul_u32_u24 v5, 1152, v2','v_add_u32 v5, v5, v3','s_mov_b32 s62, 0','s_mov_b32 s63, -1','v_cndmask_b32 v5, v5, v9, s[62:63]')
A('s_lshl_b32 s8, s15, 8',f's_mul_i32 s10, s2, {18*1152}','s_add_u32 s10, s10, s8',f's_add_u32 s13, s10, {16*1152}')
A('s_lshl_b32 s12, s4, 4','s_add_u32 s12, s12, s7',f's_mul_i32 s12, s12, {16*1152}','s_add_u32 s12, s12, s8')
A('v_lshrrev_b32 v120, 5, v0','v_lshlrev_b32 v121, 3, v120',f'v_add_u32 v121, {hex(GL)}, v121')
A('v_mul_u32_u24 v120, 576, v120','v_lshl_add_u32 v120, v1, 3, v120','v_and_b32 v122, 1, v2','v_lshl_add_u32 v120, v122, 2, v120')
A('s_lshl_b32 s8, s15, 7','v_add_u32 v120, s8, v120')
if FLAY=='t': A('v_and_b32 v122, 15, v120','v_lshrrev_b32 v120, 4, v120','v_lshlrev_b32 v120, 14, v120','v_lshl_add_u32 v120, v122, 2, v120')
else: A('v_lshlrev_b32 v120, 2, v120')
A('v_cndmask_b32 v120, v120, v9, s[60:61]')
if PSW: A('s_and_b32 s14, s2, 7','s_lshl_b32 s14, s14, 5','s_lshr_b32 s8, s2, 3','s_add_u32 s14, s14, s8','s_lshl_b32 s14, s14, 6')
else: A('s_lshl_b32 s14, s2, 6')
if FLAY=='c': A('s_mul_i32 s14, s14, 72')
A(f's_add_u32 s14, s14, {hex(FP)}')
A('v_lshlrev_b32 v122, 4, v0',f'v_add_u32 v122, {hex(YH)}, v122','v_lshlrev_b32 v123, 3, v0',f'v_add_u32 v123, {hex(YO)}, v123')
A('s_waitcnt lgkmcnt(0)')
epoch_load()
srd(44,24,4096*1152); srd(48,30,4608*1152)
tag_ready()
A(*BB)
selectors(8,104)
thr=sum(t<<(6*i) for i,t in enumerate(THR))
A(f's_mov_b32 s8, {hex(thr)}','s_mul_i32 s9, s15, 6','s_lshr_b32 s8, s8, s9','s_and_b32 s64, s8, 63')
if PT:
    lds_spin(LD,8,104,'pt',sleep=4)
    A('buffer_load_dwordx4 v[76:79], v120, s[52:55], s14 offen')
lds_spin(GF,1,104,'gl',sleep=4)
A('ds_read_b64 v[72:73], v121')
lds_spin(LD,'s64',104,'wg',sleep=WGS)
if WPB<5:
    A(f's_cmp_lt_u32 s15, {WPB}','s_cbranch_scc1 L_Wnopb')
    lds_spin(PB,1,104,'wpb',sleep=0)
    A('L_Wnopb:')
A('s_setprio 1')
for t in range(4): A(f'buffer_load_dwordx4 v[{16+4*t}:{19+4*t}], v4, s[48:51], s10 offen offset:{t*1152}{PW}')
A(f'buffer_load_dwordx4 v[32:35], v5, s[48:51], s13 offen{PW}')
for t in range(4): A(f'buffer_load_dwordx4 v[{36+4*t}:{39+4*t}], v4, s[44:47], s12 offen offset:{t*1152}{PW}')
stamp(15,'W')
lds_spin(YHF,1,104,'yh',sleep=1)
A('ds_read_b128 v[64:67], v122','s_waitcnt lgkmcnt(0)')
for t in range(5):
    a=104+4*(t&1)
    buildA(a, 64+t//2, t&1)
    A(f's_waitcnt vmcnt({8-t})','s_nop 0')
    mfma(116,a,16+4*t,t==0)
A('s_nop 7')
if WDK: A('v_mov_b32 v104, 1',f'v_mov_b32 v105, {hex(WD)}','s_mov_b64 exec, 1','ds_add_u32 v105, v104','s_mov_b64 exec, -1')
for r in range(4): A(f'v_mul_f32 v{116+r}, v73, v{116+r}')
A('s_setprio 3')
if FINE in (2,4):
    A('s_waitcnt vmcnt(0)'); stamp(8,'W')
lds_spin(YOF,1,104,'yo',sleep=0)
A('ds_read_b64 v[64:65], v123','s_waitcnt vmcnt(0) lgkmcnt(0)')
if not FINE: stamp(8,'W')
for t in range(4):
    buildA(80+4*t, 64+t//2, t&1)
    if t>0: mfma(112,80+4*(t-1),36+4*(t-1),t==1)
A('s_nop 0')
mfma(112,92,48,False)
A('s_nop 7')
for r in range(4): A(f'v_fma_f32 v{112+r}, v72, v{112+r}, v{116+r}')
for r in range(4): A(f'v_bfi_b32 v{112+r}, s41, v7, v{112+r}')
A('buffer_store_dwordx4 v[112:115], v120, s[52:55], s14 offen sc1')
stamp(9,'W')
A(f's_cmp_ge_u32 s2, {NRED}','s_cbranch_scc1 L_Wend')
if ACK: A('s_waitcnt vmcnt(0)')
A('s_barrier','L_Wend:')
flush_stamps('W')
A('L_end:','s_endpgm','L_code_end:')
A('.section .rodata,"a"','.p2align 6',f'.amdhsa_kernel {KNAME}')
A('  .amdhsa_next_free_vgpr 128','  .amdhsa_next_free_sgpr 102','  .amdhsa_accum_offset 128')
A('  .amdhsa_group_segment_fixed_size 0','  .amdhsa_kernarg_size 96','  .amdhsa_user_sgpr_count 2','  .amdhsa_user_sgpr_kernarg_segment_ptr 1','  .amdhsa_system_sgpr_workgroup_id_x 1')
A('  .amdhsa_float_denorm_mode_32 3','.end_amdhsa_kernel')
import subprocess, re, os
def emit(nl):
    t='\n'.join(L)+'\n'
    return t.replace('PFSTEP',hex(0x100+0) if nl is None else f'{(nl+31)//32:#x}').replace('NLINES',hex(0x100) if nl is None else f'{nl:#x}')
def size_of(txt):
    open(out+'.tmp.s','w').write(txt)
    subprocess.run(['clang','-x','assembler','-target','amdgcn-amd-amdhsa','-mcpu=gfx950','-c',out+'.tmp.s','-o',out+'.tmp.o'],check=True)
    o=subprocess.run(['llvm-readelf','-S',out+'.tmp.o'],capture_output=True,text=True).stdout
    os.remove(out+'.tmp.s'); os.remove(out+'.tmp.o')
    m=re.search(r'\.text\s+PROGBITS\s+\w+\s+\w+\s+(\w+)',o)
    return int(m.group(1),16)
sz=size_of(emit(None)); nl=sz//128
txt=emit(nl); sz2=size_of(txt); assert nl*128<=sz2, (sz,sz2)
open(out,'w').write(txt)
print('code bytes',sz2,end=' ')
print('lines',len(L),'lds',LDS,'ws end',hex(WS_END))
```

```python
import sys, struct
KNAME='gated_mix__sliding_block_cached__dense_activation_relu__decode_kernel'
opts=dict(a.split('=') for a in sys.argv[2:])
out=sys.argv[1]
def I(n,d): return int(opts.get(n,d))
STAMPS=I('stamps',0); PROBE=I('probe',-1); PMUL=I('pmul',2); FINE=I('fine',0)
SPIN=I('spin',1<<17); GSPIN=I('gspin',1<<17); WIN=I('win',32)
THR=[int(x) for x in opts.get('thr','26,28,31,32,32').split(',')]
RP=opts.get('ramp','20').split(',')
RAMPC={int(x.split(':')[0]):int(x.split(':')[1]) for x in RP[:-1]}; RAMPN=int(RP[-1])
SLP=I('slp',1); WIN2=I('win2',0); N2=I('n2',64); FLD=opts.get('fld','sc1').replace('+',' '); FSLP=I('fslp',0); FLAY=opts.get('flay','c'); FDL=I('fdl',0); PR=I('pr',0); PSL=I('psl',6); ACK=I('ack',1); WPB=I('wpb',9); CPF=I('cpf',24); CSZ=I('csz',0); SPEC=I('spec',1); WGS=I('wgs',2); RND=I('rnd',1); PTO=I('pto',0); QB=I('qb',4); FAST=I('fast',1); NOQ=I('noq',0); NOH=I('noh',0); QFAST=I('qfast',0); WDK=I('wdk',0); HTH=I('hth',20); PSW=I('psw',1); QSL=I('qsl',4); PT=I('pt',0); NOST=I('nostore',0); NOPOLL=I('nopoll',0)
NRED=72
def pol(n):
    p=opts.get(n,'nt').replace('+',' ')
    return '' if p=='none' else ' '+p
PKV=pol('pkv'); PW=pol('pw')
def f2u(f): return struct.unpack('<I',struct.pack('<f',f))[0]
EPOCH=0x0
QP=0x1000
OP=QP+0x40000
HP=OP+0x80000
FP=HP+7*2*4608*4
QA=FP+256*4608
FL=QA+0x40000
WS_END=FL+256*128
WS_SIZE=0x10000000 if STAMPS else WS_END
STAMP_OFF=0x8000000
OOB=0x7f000000
VL=0x10000; SB=0x20000
QL=SB+0x000; PL=SB+0x200; ML=SB+0x600; QF=SB+0x640; PF=SB+0x644; OC=SB+0x648; FC=SB+0x64c; LD=SB+0x650; CR=SB+0x654; YHF=SB+0x658; YOF=SB+0x65c; WD=SB+0x660; PB=SB+0x664
GL=SB+0x680; GF=SB+0x690; OACC=SB+0x800; FSL=SB+0x1800; STL=SB+0x1A00; YH=SB+0x1C00; YO=SB+0x2000
LDS=SB+0x2200
SC=0.08838834764831845*1.4426950408889634
L=[]
def A(*ss):
    for s in ss:
        if NOST and s.startswith('buffer_store') and s.endswith(' sc1'): s='s_nop 0'
        if NOPOLL and s.startswith('buffer_load') and s.endswith(' sc1'): s='s_nop 0'
        L.append(s)
lab=[0]
def newlab(p):
    lab[0]+=1; return f'L_{p}{lab[0]}'
FIRST={'C':7 if FINE else 4,'L':2,'Q':0,'H':1,'X':3,'W':11 if FINE==2 else (12 if FINE==4 else 8)}
def srd(d,p,n):
    A(f's_mov_b32 s{d}, s{p}', f's_mov_b32 s{d+1}, s{p+1}', f's_mov_b32 s{d+2}, {hex(n)}', f's_mov_b32 s{d+3}, 0x20000')
stamp_regs={}
def stamp(k, role):
    if FINE in (3,4) and k in (4,5,13,15) and role!='Q': return
    if PROBE==k:
        sk=newlab('pk')
        A(f's_cmp_lg_u32 s3, {FIRST[role]}', f's_cbranch_scc1 {sk}')
        A('s_memrealtime s[84:85]','s_waitcnt lgkmcnt(0)','v_mov_b32 v30, s84',f'v_mov_b32 v31, {STL}','ds_write_b32 v31, v30','s_waitcnt lgkmcnt(0)')
        A(f'{sk}:')
    if not STAMPS: return
    lst=stamp_regs.setdefault(role,[])
    i=len(lst); lst.append(k); assert i<8
    A(f's_memrealtime s[{84+2*i}:{85+2*i}]')
def stamp_now(k):
    if not STAMPS: return
    A('s_memrealtime s[80:81]','s_waitcnt lgkmcnt(0)','v_mov_b32 v20, s80','v_mov_b32 v21, s81','v_mov_b32 v22, 0')
    A('s_lshl_b32 s8, s2, 7', f's_add_u32 s8, s8, {hex(STAMP_OFF)}')
    A(f'buffer_store_dwordx2 v[20:21], v22, s[52:55], s8 offen offset:{8*k}')
def flush_stamps(role):
    if not STAMPS: return
    lst=stamp_regs.get(role,[])
    skip=newlab('nost')
    A('s_mov_b64 exec, -1', f's_cmp_lg_u32 s3, {FIRST[role]}', f's_cbranch_scc1 {skip}', 's_waitcnt lgkmcnt(0)')
    A('s_lshl_b32 s8, s2, 7', f's_add_u32 s8, s8, {hex(STAMP_OFF)}', 'v_mov_b32 v3, 0')
    for i,k in enumerate(lst):
        A(f'v_mov_b32 v4, s{84+2*i}', f'v_mov_b32 v5, s{85+2*i}', f'buffer_store_dwordx2 v[4:5], v3, s[52:55], s8 offen offset:{k*8}', 's_waitcnt vmcnt(0)')
    A(f'{skip}:')
def epoch_load():
    A(f's_load_dword s40, s[38:39], {EPOCH}')
    srd(52,38,WS_SIZE)
    A('s_mov_b32 s41, 0xfff')
def tag_ready():
    A('s_waitcnt lgkmcnt(0)','s_add_u32 s42, s40, 1','s_and_b32 s40, s42, s41','v_mov_b32 v7, s40')
def selectors(base, tmp):
    A(f'v_mov_b32 v{tmp}, 0x0c0c0100', f'v_mov_b32 v{tmp+1}, 0x01000c0c', 's_mov_b32 s60, 0xaaaaaaaa', 's_mov_b32 s61, 0xaaaaaaaa')
    A(f'v_cndmask_b32 v{tmp}, v{tmp}, v{tmp+1}, s[60:61]')
    A(f'v_mov_b32 v{tmp+1}, 0x0c0c0302', f'v_mov_b32 v{tmp+2}, 0x03020c0c')
    A(f'v_cndmask_b32 v{tmp+1}, v{tmp+1}, v{tmp+2}, s[60:61]')
    A(f'v_mov_b32 v{tmp+2}, 0x0c0c0c0c')
    for d in range(4):
        m=(0x03030303<<(2*d))&0xffffffff
        A(f's_mov_b32 s60, {hex(m)}', f's_mov_b32 s61, {hex(m)}')
        A(f'v_cndmask_b32 v{base+d}, v{tmp+2}, v{tmp}, s[60:61]', f'v_cndmask_b32 v{base+4+d}, v{tmp+2}, v{tmp+1}, s[60:61]')
def buildA(dst, src, odd, sel=8):
    for d in range(4): A(f'v_perm_b32 v{dst+d}, v{src}, v{src}, v{sel+(4 if odd else 0)+d}')
def mfma(d,a,b,first):
    c='0' if first else f'v[{d}:{d+3}]'
    A(f'v_mfma_f32_16x16x32_bf16 v[{d}:{d+3}], v[{a}:{a+3}], v[{b}:{b+3}], {c}')
def lds_spin(addr, val, vt, name, sleep=1):
    l=newlab(name); d=newlab(name+'d')
    A(f'v_mov_b32 v{vt}, {hex(addr)}', f's_mov_b32 s62, {SPIN}', f'{l}:', f'ds_read_b32 v{vt+1}, v{vt}', 's_sub_u32 s62, s62, 1', 's_waitcnt lgkmcnt(0)')
    A(f'v_readfirstlane_b32 s63, v{vt+1}', f's_cbranch_scc1 {d}', f's_cmp_ge_u32 s63, {val}')
    if sleep: A(f's_cbranch_scc1 {d}', f's_sleep {sleep*SLP}', f's_branch {l}')
    else: A(f's_cbranch_scc0 {l}')
    A(f'{d}:')
def mpoll(loads, name, chk, init='-1', slp=0):
    lp=newlab(name); go=newlab(name+'go')
    for i,_ in enumerate(loads): A(f's_mov_b64 s[{72+2*i}:{73+2*i}], {init}')
    A(f's_mov_b32 s62, {GSPIN}', f'{lp}:')
    if slp: A(f's_sleep {slp}')
    for i,(d,n,t) in enumerate(loads):
        sk=newlab('sk')
        A(f's_mov_b64 exec, s[{72+2*i}:{73+2*i}]', f's_cbranch_execz {sk}', t, f'{sk}:')
    A('s_sub_u32 s62, s62, 1', f's_cbranch_scc1 {go}', 's_waitcnt vmcnt(0)')
    if FINE==4 and name=='op':
        A(f's_cmp_lg_u32 s62, {GSPIN-1}','s_cbranch_scc1 L_nf4'); stamp(5,'Q'); A('L_nf4:')
    for i,(d,n,t) in enumerate(loads):
        A(f's_mov_b64 exec, s[{72+2*i}:{73+2*i}]')
        for k in range(n): A(f'v_xor_b32 v{d+k}, v7, v{d+k}')
        if n==4: A(f'v_or3_b32 v{chk}, v{d}, v{d+1}, v{d+2}', f'v_or_b32 v{chk}, v{chk}, v{d+3}', f'v_and_b32 v{chk}, s41, v{chk}')
        else: A(f'v_and_b32 v{chk}, s41, v{d}')
        A(f'v_cmp_ne_u32 s[{72+2*i}:{73+2*i}], 0, v{chk}')
    A('s_nop 0', 's_or_b64 s[76:77], s[72:73], s[74:75]', f's_cbranch_scc1 {lp}', f'{go}:', 's_mov_b64 exec, -1', 's_waitcnt vmcnt(0)')
DPP=' row_mask:0xf bank_mask:0xf'
def allreduce(op, regs, steps, tmp=None):
    n=len(regs); pad=max(0,2-(n-1))
    ctl={'x1':'quad_perm:[1,0,3,2]','x2':'quad_perm:[2,3,0,1]','hm':'row_half_mirror','m':'row_mirror','ror4':'row_ror:4','ror8':'row_ror:8'}
    for s in steps:
        if s in ctl:
            if pad: A(f's_nop {pad-1}')
            for r in regs: A(f'{op}_dpp v{r}, v{r}, v{r} {ctl[s]}{DPP}')
        else:
            ins='v_permlane16_swap_b32' if s=='r16' else 'v_permlane32_swap_b32'
            for i,r in enumerate(regs): A(f'v_mov_b32 v{tmp+i}, v{r}')
            A('s_nop 1')
            for i,r in enumerate(regs): A(f'{ins} v{r}, v{tmp+i}')
            A('s_nop 0')
            for i,r in enumerate(regs): A(f'{op} v{r}, v{r}, v{tmp+i}')
def pkadd(d,a,b):
    for k in (0,2): A(f'v_pk_add_f32 v[{d+k}:{d+k+1}], v[{a+k}:{a+k+1}], v[{b+k}:{b+k+1}]')
BB=('s_barrier',)

A(f'; @launch grid=(256,1,1) block=(832,1,1) lds={LDS}')
A('.amdgcn_target "amdgcn-amd-amdhsa--gfx950"','.text',f'.globl {KNAME}','.p2align 8',f'.type {KNAME},@function',f'{KNAME}:')
if STAMPS or PROBE>=0: A('s_memrealtime s[82:83]')
A('s_cmp_ge_u32 s2, 256','s_cbranch_scc1 L_end')
A('s_load_dwordx16 s[16:31], s[0:1], 0','s_load_dwordx8 s[32:39], s[0:1], 64')
A('v_lshrrev_b32 v1, 6, v0','v_and_b32 v0, 63, v0','s_and_b32 s4, s2, 7','v_readfirstlane_b32 s3, v1')
A('s_lshl_b32 s4, s4, 1','s_bfe_u32 s5, s2, 0x10003','s_add_u32 s4, s4, s5')
A('s_bfe_u32 s5, s2, 0x10004','s_lshr_b32 s6, s2, 5','s_lshr_b32 s7, s2, 4')
A('v_and_b32 v1, 15, v0','v_lshrrev_b32 v2, 4, v0')
if CPF:
    A('s_cmp_lg_u32 s3, 3','s_cbranch_scc1 L_nopf')
    A('s_getpc_b64 s[10:11]','s_and_b32 s10, s10, 0xffffff00','s_lshr_b32 s8, s2, 3','s_mul_i32 s8, s8, PFSTEP','v_add_u32 v3, s8, v0')
    A('v_subrev_u32 v4, NLINES, v3','v_min_u32 v3, v3, v4','v_lshlrev_b32 v3, 7, v3',f's_mov_b32 exec_lo, {hex(((1<<CPF)-1)&0xffffffff)}',f's_mov_b32 exec_hi, {hex(((1<<CPF)-1)>>32)}','global_load_dword v4, v3, s[10:11]','s_mov_b64 exec, -1','L_nopf:')
A('s_cmp_gt_u32 s3, 1','s_cbranch_scc1 L_disp')
QPOS=len(L)

RED_EMITTED=[0]
def reducer(role):
    if not STAMPS:
        if RED_EMITTED[0]:
            A('s_branch L_red'); return
        RED_EMITTED[0]=1; A('L_red:')
    fin=newlab('fin')
    A(f's_cmp_ge_u32 s2, {NRED}', f's_cbranch_scc1 {fin}', 's_setprio 0')
    A('v_lshlrev_b32 v5, 4, v0','v_and_b32 v6, 3, v0')
    if FLAY=='t': A('s_lshl_b32 s8, s2, 14','s_lshl_b32 s9, s3, 11','s_add_u32 s8, s8, s9',f's_add_u32 s8, s8, {hex(FP)}','s_add_u32 s11, s8, 1024')
    else: A('v_lshrrev_b32 v5, 2, v0','v_mul_u32_u24 v5, 4608, v5','v_lshl_add_u32 v5, v6, 4, v5',f's_mul_i32 s8, s3, {32*4608}','s_lshl_b32 s9, s2, 6','s_add_u32 s8, s8, s9',f's_add_u32 s8, s8, {hex(FP)}',f's_add_u32 s11, s8, {16*4608}')
    A('v_bfe_u32 v8, v0, 2, 2','v_lshl_add_u32 v8, v6, 2, v8','v_lshlrev_b32 v8, 5, v8','s_lshl_b32 s10, s3, 2',f's_add_u32 s10, s10, {hex(FSL)}','v_add_u32 v8, s10, v8')
    A('v_mov_b32 v11, 1',f'v_mov_b32 v10, {hex(FC)}','v_lshlrev_b32 v12, 5, v0',f'v_add_u32 v12, {hex(FSL)}, v12','v_lshlrev_b32 v13, 1, v0')
    srd(44,34,2304)
    A('s_lshl_b32 s10, s2, 5')
    A('s_mov_b32 s64, 0x00f000f0','s_mov_b32 s65, 0x00f000f0','s_mov_b32 s66, 0x0f000f00','s_mov_b32 s67, 0x0f000f00','s_mov_b32 s68, 0xf000f000','s_mov_b32 s69, 0xf000f000')
    A('s_barrier')
    if FDL: A(f's_sleep {FDL}')
    mpoll([(16,4,f'buffer_load_dwordx4 v[16:19], v5, s[52:55], s8 offen {FLD}'),(20,4,f'buffer_load_dwordx4 v[20:23], v5, s[52:55], s11 offen {FLD}')],'fp',9,slp=FSLP)
    if role=='C': stamp(10, role)
    for k in range(4): A(f'v_add_f32 v{16+k}, v{16+k}, v{20+k}')
    allreduce('v_add_f32',[16,17,18,19],['ror4','ror8'])
    A('v_cndmask_b32 v16, v16, v17, s[64:65]','v_cndmask_b32 v16, v16, v18, s[66:67]','v_cndmask_b32 v16, v16, v19, s[68:69]')
    allreduce('v_add_f32',[16],['r16','r32'],tmp=17)
    A('s_mov_b64 exec, 0xffff','ds_write_b32 v8, v16','s_mov_b64 exec, 1','ds_add_rtn_u32 v9, v10, v11','s_mov_b64 exec, 0xffff')
    if SPEC: A('ds_read_b128 v[16:19], v12','ds_read_b128 v[20:23], v12 offset:16','s_waitcnt lgkmcnt(2)')
    else: A('s_waitcnt lgkmcnt(0)')
    A('v_readfirstlane_b32 s8, v9','s_cmp_lg_u32 s8, 7',f's_cbranch_scc1 {fin}')
    if not SPEC: A('ds_read_b128 v[16:19], v12','ds_read_b128 v[20:23], v12 offset:16')
    A('s_waitcnt lgkmcnt(0)')
    pkadd(16,16,20)
    A('v_pk_add_f32 v[16:17], v[16:17], v[18:19]','v_add_f32 v16, v16, v17','v_cvt_pk_bf16_f32 v16, v16, v16')
    A('buffer_store_short v16, v13, s[44:47], s10 offen')
    stamp_now(11)
    A('s_mov_b64 exec, 1','s_cmp_lg_u32 s2, 0',f's_cbranch_scc1 {fin}')
    if PROBE>=0:
        pl=newlab('pl')
        A('s_memrealtime s[80:81]',f'v_mov_b32 v31, {STL}','ds_read_b32 v30, v31','s_waitcnt lgkmcnt(0)','v_readfirstlane_b32 s84, v30')
        if PROBE==11: A('s_mov_b32 s84, s80')
        A('s_sub_u32 s84, s84, s82','s_min_u32 s84, s84, 10000',f's_mul_i32 s84, s84, {PMUL}')
        A(f'{pl}:','s_memrealtime s[86:87]','s_waitcnt lgkmcnt(0)','s_sub_u32 s86, s86, s80','s_cmp_lt_u32 s86, s84',f's_cbranch_scc1 {pl}')
    A('v_mov_b32 v9, s42','v_mov_b32 v8, 0',f'buffer_store_dword v9, v8, s[52:55], 0 offen offset:{EPOCH}')
    A(f'{fin}:')
    flush_stamps(role)
    A('s_endpgm')

def gemv_loop(n, credits):
    A(f's_waitcnt vmcnt({n})')
    for t in range(n):
        a=(28,120)[t&1]
        buildA(a, 16+t//2, t&1)
        A(f's_waitcnt vmcnt({n-1-t})')
        A('s_memrealtime s[98:99]' if (FINE==3 and t==0) else 's_nop 0')
        mfma(124,a,32+4*t,t==0)
        if t in credits: A('s_mov_b64 exec, 1','ds_add_u32 v6, v3','s_mov_b64 exec, -1')
    A('s_nop 7')
    for r in range(4): A(f'v_bfi_b32 v{124+r}, s56, v7, v{124+r}')
    A('buffer_store_dwordx4 v[124:127], v5, s[52:55], s13 offen sc1')

A('s_setprio 3')
A('s_mul_i32 s9, s2, 293','s_lshr_b32 s9, s9, 11','s_mul_i32 s10, s9, 7','s_sub_u32 s10, s2, s10')
A('s_mul_i32 s11, s10, 88','s_mul_i32 s12, s10, 80','s_add_u32 s12, s12, 16','s_min_u32 s11, s11, s12')
A('s_cmp_lt_u32 s10, 2','s_cselect_b32 s14, 22, 20',f's_cselect_b32 s57, 0, {hex(OOB)}')
A('s_lshl_b32 s15, s9, 8','s_cmp_ge_u32 s2, 252',f's_cselect_b32 s15, {hex(OOB)}, s15')
A('s_lshr_b32 s12, s7, 1','s_mul_i32 s13, s12, 72','s_and_b32 s8, s7, 1','s_lshl_b32 s58, s4, 1','s_add_u32 s58, s58, s8','s_lshl_b32 s59, s58, 8')
A('s_lshl_b32 s43, s3, 10','s_add_u32 s43, s43, 8192')
A('s_cmp_eq_u32 s3, 0','s_cselect_b32 s11, s13, s11','s_cselect_b32 s14, 18, s14','s_cselect_b32 s15, s59, s15',f's_cselect_b32 s56, {hex(OOB)}, 0','s_cselect_b32 s57, 0, s57')
A('s_mul_i32 s8, s14, s43','v_mul_u32_u24 v3, s8, v2','v_lshl_add_u32 v3, v1, 4, v3')
A('v_bfe_u32 v4, v0, 3, 1','v_mul_u32_u24 v4, 1152, v4','s_lshl_b32 s8, s14, 1','v_mul_u32_u24 v5, s8, v2','v_add_u32 v4, v4, v5')
A('s_lshl_b32 s8, s11, 1','s_mul_i32 s11, s11, s43','s_add_u32 s11, s11, s15','s_mul_i32 s50, s43, 576','s_mov_b32 s51, 0x20000','s_mov_b32 s46, 2304','s_mov_b32 s47, 0x20000','s_cmp_eq_u32 s3, 0')
A('s_waitcnt lgkmcnt(0)')
if FINE==3: A('s_memrealtime s[94:95]')
A('s_mov_b32 s44, s16','s_mov_b32 s45, s17','s_cselect_b32 s48, s22, s28','s_cselect_b32 s49, s23, s29')
A('buffer_load_dwordx4 v[16:19], v4, s[44:47], s8 offen','buffer_load_dwordx4 v[20:23], v4, s[44:47], s8 offen offset:16','buffer_load_dwordx3 v[24:26], v4, s[44:47], s8 offen offset:32')
for t in range(22):
    A(f'buffer_load_dwordx4 v[{32+4*t}:{35+4*t}], v3, s[48:51], s11 offen{PW}')
    if t<21: A('s_add_u32 s11, s11, s43')
    if t==17: A('s_add_u32 s11, s11, s56')
    if t==19: A('s_add_u32 s11, s11, s57')
if FINE==3: A('s_memrealtime s[96:97]')
A(f's_load_dword s40, s[38:39], {EPOCH}')
srd(52,38,WS_SIZE); A('s_mov_b32 s41, 0xfff')
A(f's_mul_i32 s13, s10, {2*4608*4}','s_lshl_b32 s8, s15, 1','s_add_u32 s13, s13, s8',f's_add_u32 s13, s13, {hex(HP)}')
A('s_lshl_b32 s8, s4, 14','s_lshl_b32 s9, s12, 10','s_add_u32 s8, s8, s9','s_and_b32 s9, s7, 1','s_lshl_b32 s9, s9, 9','s_add_u32 s8, s8, s9',f's_add_u32 s8, s8, {hex(QP)}')
A('s_cmp_ge_u32 s2, 252',f's_cselect_b32 s13, {hex(OOB)}, s13','s_cmp_eq_u32 s3, 0','s_cselect_b32 s13, s8, s13','s_mul_i32 s8, s3, 10240','s_add_u32 s8, s8, 8192')
A('v_lshrrev_b32 v5, 1, v2','v_mul_u32_u24 v5, s8, v5','v_lshl_add_u32 v5, v1, 5, v5','v_and_b32 v6, 1, v2','v_lshl_add_u32 v5, v6, 4, v5')
tag_ready()
A(*BB)
selectors(8, 120)
A(f'v_mov_b32 v6, {hex(CR)}','v_mov_b32 v3, 1','s_cmp_eq_u32 s3, 0',f's_cselect_b32 s56, {hex((1<<QB)-1)}, s41','v_and_b32 v27, s56, v7')
gemv_loop(22,(9,17))
A('s_cmp_lg_u32 s3, 0','s_cbranch_scc1 L_H2')
A('s_getreg_b32 s15, hwreg(HW_REG_XCC_ID, 0, 3)','s_lshl_b32 s8, s42, 3','s_or_b32 s15, s15, s8')
A('v_mov_b32 v25, v27','v_lshlrev_b32 v26, 7, v0','v_mov_b32 v27, s15','s_lshl_b32 s14, s4, 11','s_lshl_b32 s8, s7, 2','s_add_u32 s14, s14, s8',f's_add_u32 s14, s14, {hex(FL)}')
A('s_mov_b64 exec, 0xffff','buffer_store_dword v27, v26, s[52:55], s14 offen sc1','s_mov_b64 exec, -1')
stamp(1,'Q')
if FINE==3:
    A('s_waitcnt lgkmcnt(0)','s_lshl_b32 s8, s2, 7', f's_add_u32 s8, s8, {hex(STAMP_OFF)}','v_mov_b32 v22, 0')
    for sr,k in ((82,4),(94,5),(96,13),(98,15)):
        A(f'v_mov_b32 v20, s{sr}',f'v_mov_b32 v21, s{sr+1}',f'buffer_store_dwordx2 v[20:21], v22, s[52:55], s8 offen offset:{8*k}','s_nop 1')
A('v_lshlrev_b32 v5, 4, v0')
A('s_lshl_b32 s13, s4, 1','s_add_u32 s13, s13, s5','s_lshl_b32 s13, s13, 13',f's_add_u32 s13, s13, {hex(QP)}','s_add_u32 s14, s13, 4096')
A('s_lshl_b32 s8, s4, 4','s_add_u32 s8, s8, s7','s_lshl_b32 s8, s8, 7',f's_add_u32 s8, s8, {hex(FL)}','s_add_u32 s46, s38, s8','s_addc_u32 s47, s39, 0')
A('s_mov_b32 s8, 1',f's_mov_b32 s62, {GSPIN}','L_qprobe:',f's_sleep {QSL}','s_load_dwordx16 s[64:79], s[46:47], 0 glc','s_sub_u32 s62, s62, 1','s_cbranch_scc1 L_qfetch0','s_waitcnt lgkmcnt(0)')
A('s_xor_b32 s8, s64, s15')
for p in range(1,16): A(f's_xor_b32 s9, s{64+p}, s15','s_or_b32 s8, s8, s9')
A('s_lshr_b32 s9, s8, 3')
A('s_cbranch_scc1 L_qprobe','L_qfetch0:',f's_mov_b32 s62, {GSPIN}','s_waitcnt lgkmcnt(0)')
if QFAST: A('s_cmp_eq_u32 s8, 0',f's_cselect_b32 s9, {QA-QP}, 0','s_add_u32 s13, s13, s9','s_add_u32 s14, s14, s9')
if FINE==1: stamp(8,'Q')
A('L_qfetch:')
if NOQ: A('s_branch L_qgo')
for r in range(8): A(f'buffer_load_dwordx4 v[{32+4*r}:{35+4*r}], v5, s[52:55], s{13 if r<4 else 14} offen offset:{(r&3)*1024} sc1')
A('s_sub_u32 s62, s62, 1','s_cbranch_scc1 L_qgo','v_mov_b32 v6, 0')
for r in range(8):
    A(f's_waitcnt vmcnt({7-r})')
    for k in range(4): A(f'v_xor_b32 v{32+4*r+k}, v25, v{32+4*r+k}')
    A(f'v_or3_b32 v6, v6, v{32+4*r}, v{33+4*r}',f'v_or3_b32 v6, v6, v{34+4*r}, v{35+4*r}')
A('v_and_b32 v6, s56, v6','v_cmp_ne_u32 vcc, 0, v6','s_cbranch_vccnz L_qfetch','L_qgo:','s_waitcnt vmcnt(0)')
for r in (0,2,4,6): pkadd(32+4*r,32+4*r,36+4*r)
pkadd(32,32,40); pkadd(48,48,56); pkadd(32,32,48)
A('v_cvt_pk_bf16_f32 v32, v32, v33','v_cvt_pk_bf16_f32 v33, v34, v35','v_lshlrev_b32 v5, 3, v0',f'v_add_u32 v5, {hex(QL)}, v5','ds_write_b64 v5, v[32:33]')
A('s_cmp_eq_u32 s8, 0',f's_cselect_b32 s9, {1+FAST}, 1','v_mov_b32 v6, s9',f'v_mov_b32 v5, {hex(QF)}','ds_write_b32 v5, v6')
stamp(2,'Q')
A('v_lshlrev_b32 v123, 11, v1','v_lshl_add_u32 v122, v2, 4, v123')
A('s_lshl_b32 s43, s4, 15','s_lshl_b32 s8, s7, 7','s_add_u32 s43, s43, s8',f's_add_u32 s43, s43, {hex(OP)}')
A('v_lshlrev_b32 v121, 3, v0',f'v_add_u32 v121, {hex(YO)}, v121',f'v_mov_b32 v120, {hex(YOF)}','v_mov_b32 v119, 1')
lds_spin(PB,1,104,'oc',sleep=1)
if WDK: lds_spin(WD,WDK,104,'wd',sleep=0)
if FINE==4: stamp(4,'Q')
if PR:
    for k in range(PR):
        if k: A(f's_sleep {PSL}')
        A(f'buffer_load_dwordx4 v[{16+8*k}:{19+8*k}], v122, s[52:55], s43 offen sc1',f'buffer_load_dwordx4 v[{20+8*k}:{23+8*k}], v123, s[52:55], s43 offen offset:64 sc1')
    for k in range(PR):
        A(f's_waitcnt vmcnt({2*(PR-1-k)})')
        for i in range(8): A(f'v_xor_b32 v{64+i}, v7, v{16+8*k+i}')
        A('v_or3_b32 v74, v64, v65, v66','v_or3_b32 v74, v74, v67, v68','v_or3_b32 v74, v74, v69, v70','v_or_b32 v74, v74, v71','v_and_b32 v74, s41, v74','v_cmp_ne_u32 vcc, 0, v74','s_cbranch_vccz L_odone')
mpoll([(64,4,'buffer_load_dwordx4 v[64:67], v122, s[52:55], s43 offen sc1'),(68,4,'buffer_load_dwordx4 v[68:71], v123, s[52:55], s43 offen offset:64 sc1')],'op',74)
A('L_odone:')
if FINE==4:
    A(f's_sub_u32 s8, {GSPIN}, s62','s_mul_i32 s8, s8, 100','s_waitcnt lgkmcnt(0)','s_add_u32 s98, s82, s8','s_addc_u32 s99, s83, 0','s_lshl_b32 s8, s2, 7', f's_add_u32 s8, s8, {hex(STAMP_OFF)}','v_mov_b32 v22, 0','v_mov_b32 v20, s98','v_mov_b32 v21, s99','buffer_store_dwordx2 v[20:21], v22, s[52:55], s8 offen offset:120')
stamp(7,'Q')
allreduce('v_max_f32',[70],['x1','x2','hm'])
A('v_sub_f32 v68, v68, v70','v_exp_f32 v68, v68','s_nop 0','v_mul_f32 v69, v68, v69')
for k in range(4): A(f'v_mul_f32 v{64+k}, v68, v{64+k}')
allreduce('v_add_f32',[69,64,65,66,67],['x1','x2','hm'])
A('v_rcp_f32 v69, v69','s_nop 0')
for k in range(4): A(f'v_mul_f32 v{64+k}, v69, v{64+k}')
A('v_cvt_pk_bf16_f32 v64, v64, v65','v_cvt_pk_bf16_f32 v65, v66, v67','ds_write_b64 v121, v[64:65]','ds_write_b32 v120, v119')
reducer('Q')

A('.p2align 6','L_disp:')
A('s_cmp_eq_u32 s3, 2','s_cbranch_scc1 L_L','s_cmp_eq_u32 s3, 3','s_cbranch_scc1 L_X','s_cmp_ge_u32 s3, 8','s_cbranch_scc1 L_W','s_branch L_C')
A('L_H2:')
stamp(12,'H')
A('v_and_b32 v6, 7, v0','v_lshlrev_b32 v6, 1, v6','v_bfe_u32 v9, v0, 3, 1','v_add_u32 v6, v6, v9',f'v_mul_u32_u24 v6, {4608*4}, v6')
A('v_mov_b32 v9, v6','v_lshl_add_u32 v6, v2, 4, v6')
A('s_mul_i32 s11, s2, 72',f's_add_u32 s11, s11, {hex(HP)}','s_and_b32 s8, s2, 1','s_lshl_b32 s8, s8, 3','s_sub_u32 s12, s11, s8')
A('s_cmp_eq_u32 s8, 0','s_cselect_b32 s64, 0, -1','s_mov_b32 s65, s64','s_mov_b32 s66, 0xffff0000','s_mov_b32 s67, 0xffff0000')
A('v_lshlrev_b32 v121, 4, v0',f'v_add_u32 v121, {hex(YH)}, v121',f'v_mov_b32 v120, {hex(YHF)}','v_mov_b32 v119, 1')
for k in range(8): A(f'v_mov_b32 v{64+k}, 0')
A('s_mov_b32 s78, 0x7f7f7f7f','s_mov_b32 s79, 0x7f7f7f7f')
lds_spin(LD,HTH,104,'hl',sleep=4)
if not NOH: mpoll([(64,4,'buffer_load_dwordx4 v[64:67], v6, s[52:55], s11 offen sc1'),(68,4,'buffer_load_dwordx4 v[68:71], v9, s[52:55], s12 offen offset:64 sc1')],'hp',72,init='s[78:79]')
A('v_cndmask_b32 v68, v68, v70, s[64:65]','v_cndmask_b32 v69, v69, v71, s[64:65]','v_cndmask_b32 v68, v68, v69, s[66:67]','s_nop 0')
stamp(13,'H')
allreduce('v_add_f32',[64,65,66,67,68],['x1','x2','hm'])
for k in range(5): A(f'v_max_f32 v{64+k}, 0, v{64+k}')
A('v_cvt_pk_bf16_f32 v64, v64, v65','v_cvt_pk_bf16_f32 v65, v66, v67','v_cvt_pk_bf16_f32 v66, v68, v68','ds_write_b128 v121, v[64:67]','ds_write_b32 v120, v119')
reducer('H')

A('.p2align 6','L_L:','s_setprio 3')
for u in range(4): A(f'v_add_u32 v8, {4*u}, v2','v_xor_b32 v8, v8, v1','v_lshlrev_b32 v8, 4, v8',f'v_lshl_add_u32 v{12+u}, v2, 8, v8')
A('v_lshlrev_b32 v3, 4, v0')
A('s_lshl_b32 s12, s5, 4','s_add_u32 s12, s12, s4','s_lshl_b32 s12, s12, 21','s_lshl_b32 s13, s6, 16','s_add_u32 s12, s12, s13','s_add_u32 s12, s12, 0x180000')
A('s_lshr_b32 s13, s2, 3','s_add_u32 s13, s13, s2')
for i in range(16): A(f's_add_u32 s14, s13, {i}','s_and_b32 s14, s14, 15','s_lshl_b32 s14, s14, 12',f's_add_u32 s{64+i}, s12, s14')
A(f'v_mov_b32 v9, {hex(LD)}','s_waitcnt lgkmcnt(0)')
epoch_load()
srd(44,18,0x4000000); srd(48,20,0x4000000)
tag_ready()
A(*BB)
n=0; sig=0
def signal(upto):
    global sig
    if upto>sig:
        sig=upto
        A(f'v_mov_b32 v10, {upto}','ds_write_b32 v9, v10')
for i in range(32):
    for u in range(4):
        if n in RAMPC: lds_spin(CR,RAMPC[n],16,'cr',sleep=0)
        if u==0: A(f's_mov_b32 m0, {hex(i*4096)}')
        w = RAMPN if n==RAMPN else (WIN2 if (WIN2 and n>=N2) else WIN)
        if n>=w:
            A(f's_waitcnt vmcnt({w-1})')
            signal((n-w+1)//4)
        elif u==0: A('s_nop 0')
        if i<16: A(f'buffer_load_dwordx4 v{12+u}, s[44:47], s{64+i} offen offset:{u*1024}{PKV} lds')
        else: A(f'buffer_load_dwordx4 v3, s[48:51], s{64+i-16} offen offset:{u*1024}{PKV} lds')
        n+=1
stamp(14,'L')
while sig<32:
    A(f's_waitcnt vmcnt({128-4*(sig+1)})')
    signal(sig+1)
stamp(3,'L')
reducer('L')

A('.p2align 6','L_C:','s_setprio 2','s_sub_u32 s15, s3, 4')
A('v_mov_b32 v4, 0','v_lshlrev_b32 v5, 2, v0',f'v_add_u32 v5, {hex(ML)}, v5','ds_write_b32 v5, v4')
A('v_lshlrev_b32 v122, 4, v0',f'v_add_u32 v122, {hex(OACC)}, v122','s_lshl_b32 s8, s15, 10','v_add_u32 v125, s8, v122')
A('s_waitcnt lgkmcnt(0)')
epoch_load()
tag_ready()
A(*BB)
selectors(8,104)
A('s_lshl_b32 s8, s15, 12')
for ks in range(4): A(f'v_add_u32 v4, {4*ks}, v2','v_xor_b32 v4, v4, v1','v_lshlrev_b32 v4, 4, v4','v_lshl_add_u32 v4, v1, 8, v4',f'v_add_u32 v{116+ks}, s8, v4')
A('v_lshlrev_b32 v3, 4, v0',f's_add_u32 s9, s8, {hex(VL)}','v_add_u32 v3, s9, v3')
A('v_and_b32 v5, 1, v0','v_lshlrev_b32 v5, 8, v5','v_lshl_add_u32 v5, v2, 4, v5',f'v_add_u32 v5, {hex(QL)}, v5')
A('s_lshl_b32 s8, s15, 8',f's_add_u32 s8, s8, {hex(PL)}')
A('v_and_b32 v6, 3, v0','v_lshlrev_b32 v6, 5, v6','v_lshrrev_b32 v4, 2, v0','v_lshl_add_u32 v6, v4, 1, v6','v_add_u32 v6, s8, v6')
A('v_bfe_u32 v4, v0, 3, 1','v_lshl_add_u32 v4, v4, 2, v2','v_lshlrev_b32 v4, 5, v4','v_add_u32 v123, s8, v4')
A('v_lshrrev_b32 v124, 5, v0','v_lshlrev_b32 v124, 4, v124',f'v_add_u32 v124, {hex(ML)}, v124')
A('v_lshrrev_b32 v121, 5, v0','v_lshlrev_b32 v121, 3, v121','v_lshrrev_b32 v4, 1, v1','v_add_u32 v121, v121, v4','v_lshlrev_b32 v121, 7, v121')
A('v_and_b32 v4, 1, v1','v_lshl_add_u32 v120, v4, 5, v121','v_and_b32 v4, 1, v2','v_lshl_add_u32 v120, v4, 4, v120')
A('s_lshl_b32 s12, s4, 1','s_add_u32 s12, s12, s5','s_lshl_b32 s12, s12, 3','s_add_u32 s12, s12, s6','s_lshl_b32 s12, s12, 11',f's_add_u32 s12, s12, {hex(OP)}')
A(f's_mov_b32 s43, {hex(f2u(1.4426950408889634 if RND else SC))}',f's_mov_b32 s74, {hex(f2u(0.08838834764831845))}')
A('s_mov_b32 s64, 0xffff0000','s_mov_b32 s65, 0','s_mov_b32 s66, 0','s_mov_b32 s67, 0xffff','s_mov_b32 s68, 0','s_mov_b32 s69, 0xffff0000')
if STAMPS:
    stamp_regs['C']=[0]; A('s_mov_b64 s[84:85], s[82:83]')
if PT:
    lds_spin(LD,4,16,'pt',sleep=4)
    A('s_cmp_lg_u32 s15, 0','s_cbranch_scc1 L_Cnopt','buffer_load_dwordx4 v[76:79], v120, s[52:55], s12 offen','L_Cnopt:')
lds_spin(QF,1,16,'qf',sleep=2)
A('s_mov_b32 s73, s63')
for ks in range(4): A(f'ds_read_b128 v[{80+4*ks}:{83+4*ks}], v5 offset:{ks*64}')
A('s_add_u32 s13, s15, 13')
lds_spin(LD,'s13',16,'kl')
A('s_mov_b32 s72, s63','s_waitcnt vmcnt(0)')
for t in range(4):
    for ks in range(4): A(f'ds_read_b128 v[{16+16*t+4*ks}:{19+16*t+4*ks}], v{116+ks} offset:{t*16384}')
for t in range(4):
    A(f's_waitcnt lgkmcnt({12-4*t})')
    for ks in range(4): mfma(96+4*t, 80+4*ks, 16+16*t+4*ks, ks==0)
A('s_nop 7')
for h in range(2): A(f'v_cndmask_b32 v{16+h}, v{96+h}, v{100+h}, s[64:65]')
for h in range(2): A(f'v_cndmask_b32 v{16+h}, v{16+h}, v{104+h}, s[66:67]')
for h in range(2): A(f'v_cndmask_b32 v{16+h}, v{16+h}, v{108+h}, s[68:69]')
if RND:
    A('v_cvt_pk_bf16_f32 v18, v16, v17','v_lshlrev_b32 v16, 16, v18','v_and_b32 v17, 0xffff0000, v18','v_mul_f32 v16, s74, v16','v_mul_f32 v17, s74, v17')
    A('v_cvt_pk_bf16_f32 v18, v16, v17','v_lshlrev_b32 v16, 16, v18','v_and_b32 v17, 0xffff0000, v18')
A('v_mov_b32 v18, v16','v_mov_b32 v19, v17')
allreduce('v_max_f32',[18,19],['x1','x2','hm','m','r16','r32'],tmp=20)
A('v_mul_f32 v18, s43, v18','v_mul_f32 v19, s43, v19','v_fma_f32 v16, v16, s43, -v18','v_fma_f32 v17, v17, s43, -v19')
A('v_exp_f32 v16, v16','v_exp_f32 v17, v17','s_nop 0','v_cvt_pk_bf16_f32 v22, v16, v17')
A('ds_write_b16 v6, v22','ds_write_b16_d16_hi v6, v22 offset:128','ds_read_b128 v[80:83], v123','ds_read_b128 v[84:87], v123 offset:16')
allreduce('v_add_f32',[16,17],['x1','x2','hm','m','r16','r32'],tmp=20)
A('s_lshl_b32 s8, s15, 2',f's_add_u32 s8, s8, {hex(ML)}','v_mov_b32 v5, s8','s_mov_b32 s70, -1','s_mov_b32 s71, 0')
A('v_cndmask_b32 v96, v19, v18, s[70:71]')
A('s_mov_b64 exec, 1','ds_write2_b32 v5, v18, v19 offset0:0 offset1:4','ds_write2_b32 v5, v16, v17 offset0:8 offset1:12')
A('v_mov_b32 v6, 1',f'v_mov_b32 v5, {hex(PF)}','ds_add_u32 v5, v6','s_mov_b64 exec, -1')
stamp(4,'C')
def factors():
    lds_spin(PF,4,104,'pf')
    A('ds_read_b128 v[88:91], v124','ds_read_b128 v[92:95], v124 offset:32','s_waitcnt lgkmcnt(0)')
    A('v_max3_f32 v97, v88, v89, v90','v_max_f32 v97, v97, v91','v_and_b32 v97, 0xfffff000, v97')
    for k in range(4): A(f'v_sub_f32 v{88+k}, v{88+k}, v97')
    A('v_sub_f32 v96, v96, v97')
    for k in range(4): A(f'v_exp_f32 v{88+k}, v{88+k}')
    A('v_exp_f32 v96, v96','v_mul_f32 v99, v88, v92')
    for k in range(1,4): A(f'v_fmac_f32 v99, v{88+k}, v{92+k}')
    A('v_or_b32 v100, v97, v7','v_bfi_b32 v101, s41, v7, v99','v_mov_b32 v102, v100','v_mov_b32 v103, v101')
    A('v_mov_b32 v106, 1',f'v_mov_b32 v107, {hex(OC)}')
A('s_waitcnt lgkmcnt(0)')
for tau in range(4):
    for u in range(4): buildA(32+4*u, 80+(4*tau+u)//2, u&1)
    if tau==3: factors()
    sk=newlab('vsk')
    A(f's_add_u32 s13, s15, {17+4*tau}','s_cmp_ge_u32 s72, s13',f's_cbranch_scc1 {sk}')
    lds_spin(LD,'s13',104,'vl',sleep=0)
    A('s_mov_b32 s72, s63',f'{sk}:')
    for u in range(4): A(f'ds_read_b128 v[{16+4*u}:{19+4*u}], v3 offset:{tau*16384+u*1024}')
    for u in range(4):
        A(f's_waitcnt lgkmcnt({3-u})')
        mfma(112,32+4*u,16+4*u,tau==0 and u==0)
A('s_nop 7')
for r in range(4): A(f'v_mul_f32 v{112+r}, v96, v{112+r}')
A('ds_write_b128 v125, v[112:115]','s_mov_b64 exec, 1','ds_add_rtn_u32 v106, v107, v106','s_mov_b64 exec, -1')
if SPEC:
    for w in range(4): A(f'ds_read_b128 v[{16+4*w}:{19+4*w}], v122 offset:{1024*w}')
A(f's_waitcnt lgkmcnt({4 if SPEC else 0})')
A('v_readfirstlane_b32 s8, v106','s_cmp_lg_u32 s8, 3','s_cbranch_scc1 L_Cnopub')
if not SPEC:
    for w in range(4): A(f'ds_read_b128 v[{16+4*w}:{19+4*w}], v122 offset:{1024*w}')
A('s_setprio 3','s_waitcnt lgkmcnt(2)')
pkadd(16,16,20)
A('s_waitcnt lgkmcnt(0)')
pkadd(24,24,28); pkadd(112,16,24)
for r in range(4): A(f'v_bfi_b32 v{112+r}, s41, v7, v{112+r}')
A('s_cmp_eq_u32 s73, 2','s_cbranch_scc1 L_Cfast')
A('buffer_store_dwordx4 v[112:115], v120, s[52:55], s12 offen sc1')
A('s_mov_b32 exec_lo, 0x5555','s_mov_b32 exec_hi, 0x5555','buffer_store_dwordx4 v[100:103], v121, s[52:55], s12 offen offset:64 sc1','s_branch L_Cpubd')
A('L_Cfast:','buffer_store_dwordx4 v[112:115], v120, s[52:55], s12 offen')
A('s_mov_b32 exec_lo, 0x5555','s_mov_b32 exec_hi, 0x5555','buffer_store_dwordx4 v[100:103], v121, s[52:55], s12 offen offset:64')
A('L_Cpubd:','s_mov_b64 exec, -1',f'ds_write_b32 v107, v107 offset:{PB-OC}')
stamp_now(6)
A('L_Cnopub:','s_waitcnt lgkmcnt(0)')
stamp(5,'C')
reducer('C')

A('.p2align 6','L_X:')
A('v_and_b32 v9, 31, v0','v_mul_u32_u24 v9, 36, v9','v_lshrrev_b32 v10, 5, v0','v_mul_u32_u24 v10, 1152, v10','v_add_u32 v10, v10, v9')
A('s_waitcnt lgkmcnt(0)')
epoch_load()
srd(44,16,2304); srd(48,32,1152)
tag_ready()
A(*BB)
for k in range(3): A(f'buffer_load_dwordx3 v[{64+4*k}:{66+4*k}], v10, s[44:47], 0 offen offset:{12*k}')
for k in range(3): A(f'buffer_load_dwordx3 v[{80+4*k}:{82+4*k}], v9, s[48:51], 0 offen offset:{12*k}')
if PTO:
    A('v_mov_b32 v4, 0','s_mov_b64 exec, 1')
    if PTO&1:
        srd(56,34,2304); A('buffer_load_dword v102, v4, s[56:59], 0 offen')
    if PTO&2:
        A('s_mul_i32 s8, s2, 4608',f's_add_u32 s8, s8, {hex(FP)}','buffer_load_dword v103, v4, s[52:55], s8 offen')
    if PTO&4:
        A('s_lshl_b32 s12, s5, 4','s_add_u32 s12, s12, s4','s_lshl_b32 s12, s12, 21','s_add_u32 s12, s12, 0x180000')
        srd(56,20,0x4000000); A('buffer_load_dword v104, v4, s[56:59], s12 offen')
        A('s_lshl_b32 s12, s4, 4','s_add_u32 s12, s12, s7',f's_mul_i32 s12, s12, {16*1152}')
        srd(56,24,4096*1152); A('buffer_load_dword v105, v4, s[56:59], s12 offen')
        A(f's_mul_i32 s12, s2, {18*1152}')
        srd(56,30,4608*1152); A('buffer_load_dword v106, v4, s[56:59], s12 offen')
    A('s_mov_b64 exec, -1')
A('v_mov_b32 v100, 0','s_waitcnt vmcnt(0)')
for k in range(3):
    for i in range(3):
        x=64+4*k+i; w=80+4*k+i
        A(f'v_lshlrev_b32 v96, 16, v{x}',f'v_lshlrev_b32 v97, 16, v{w}',f'v_and_b32 v98, 0xffff0000, v{x}',f'v_and_b32 v99, 0xffff0000, v{w}')
        A('v_mul_f32 v96, v96, v97','v_mul_f32 v98, v98, v99','v_cvt_pk_bf16_f32 v96, v96, v98','v_lshlrev_b32 v97, 16, v96','v_and_b32 v98, 0xffff0000, v96')
        A('v_add_f32 v100, v100, v97','v_add_f32 v100, v100, v98')
allreduce('v_add_f32',[100],['x1','x2','hm','m','r16'],tmp=101)
A('v_cvt_pk_bf16_f32 v100, v100, v100','v_and_b32 v100, 0xffff0000, v100',f'v_mul_f32 v100, {hex(f2u(-1.4426950408889634))}, v100')
A('v_exp_f32 v100, v100','s_nop 0','v_add_f32 v100, 1.0, v100','v_rcp_f32 v100, v100','s_nop 0')
A('v_cvt_pk_bf16_f32 v100, v100, v100','v_and_b32 v100, 0xffff0000, v100')
A('v_sub_f32 v101, 1.0, v100','v_cvt_pk_bf16_f32 v101, v101, v101','v_and_b32 v101, 0xffff0000, v101')
A('v_lshrrev_b32 v9, 5, v0','v_lshlrev_b32 v9, 3, v9',f'v_add_u32 v9, {hex(GL)}, v9','ds_write_b64 v9, v[100:101]')
A('v_mov_b32 v9, 1',f'v_mov_b32 v10, {hex(GF)}','ds_write_b32 v10, v9')
reducer('X')

A('.p2align 6','L_W:')
A('s_sub_u32 s15, s3, 8')
A('v_lshlrev_b32 v3, 4, v1',f'v_mov_b32 v9, {hex(OOB)}','s_cmp_eq_u32 s15, 4','s_cselect_b32 s60, 0xff00ff00, 0','s_mov_b32 s61, s60')
A('v_cndmask_b32 v3, v3, v9, s[60:61]')
A(f'v_mul_u32_u24 v4, {4*1152}, v2','v_add_u32 v4, v4, v3')
A('v_mul_u32_u24 v5, 1152, v2','v_add_u32 v5, v5, v3','s_mov_b32 s62, 0','s_mov_b32 s63, -1','v_cndmask_b32 v5, v5, v9, s[62:63]')
A('s_lshl_b32 s8, s15, 8',f's_mul_i32 s10, s2, {18*1152}','s_add_u32 s10, s10, s8',f's_add_u32 s13, s10, {16*1152}')
A('s_lshl_b32 s12, s4, 4','s_add_u32 s12, s12, s7',f's_mul_i32 s12, s12, {16*1152}','s_add_u32 s12, s12, s8')
A('v_lshrrev_b32 v120, 5, v0','v_lshlrev_b32 v121, 3, v120',f'v_add_u32 v121, {hex(GL)}, v121')
A('v_mul_u32_u24 v120, 576, v120','v_lshl_add_u32 v120, v1, 3, v120','v_and_b32 v122, 1, v2','v_lshl_add_u32 v120, v122, 2, v120')
A('s_lshl_b32 s8, s15, 7','v_add_u32 v120, s8, v120')
if FLAY=='t': A('v_and_b32 v122, 15, v120','v_lshrrev_b32 v120, 4, v120','v_lshlrev_b32 v120, 14, v120','v_lshl_add_u32 v120, v122, 2, v120')
else: A('v_lshlrev_b32 v120, 2, v120')
A('v_cndmask_b32 v120, v120, v9, s[60:61]')
if PSW: A('s_and_b32 s14, s2, 7','s_lshl_b32 s14, s14, 5','s_lshr_b32 s8, s2, 3','s_add_u32 s14, s14, s8','s_lshl_b32 s14, s14, 6')
else: A('s_lshl_b32 s14, s2, 6')
if FLAY=='c': A('s_mul_i32 s14, s14, 72')
A(f's_add_u32 s14, s14, {hex(FP)}')
A('v_lshlrev_b32 v122, 4, v0',f'v_add_u32 v122, {hex(YH)}, v122','v_lshlrev_b32 v123, 3, v0',f'v_add_u32 v123, {hex(YO)}, v123')
A('s_waitcnt lgkmcnt(0)')
epoch_load()
srd(44,24,4096*1152); srd(48,30,4608*1152)
tag_ready()
A(*BB)
selectors(8,104)
thr=sum(t<<(6*i) for i,t in enumerate(THR))
A(f's_mov_b32 s8, {hex(thr)}','s_mul_i32 s9, s15, 6','s_lshr_b32 s8, s8, s9','s_and_b32 s64, s8, 63')
if PT:
    lds_spin(LD,8,104,'pt',sleep=4)
    A('buffer_load_dwordx4 v[76:79], v120, s[52:55], s14 offen')
lds_spin(GF,1,104,'gl',sleep=4)
A('ds_read_b64 v[72:73], v121')
lds_spin(LD,'s64',104,'wg',sleep=WGS)
if WPB<5:
    A(f's_cmp_lt_u32 s15, {WPB}','s_cbranch_scc1 L_Wnopb')
    lds_spin(PB,1,104,'wpb',sleep=0)
    A('L_Wnopb:')
A('s_setprio 1')
for t in range(4): A(f'buffer_load_dwordx4 v[{16+4*t}:{19+4*t}], v4, s[48:51], s10 offen offset:{t*1152}{PW}')
A(f'buffer_load_dwordx4 v[32:35], v5, s[48:51], s13 offen{PW}')
for t in range(4): A(f'buffer_load_dwordx4 v[{36+4*t}:{39+4*t}], v4, s[44:47], s12 offen offset:{t*1152}{PW}')
stamp(15,'W')
lds_spin(YHF,1,104,'yh',sleep=1)
A('ds_read_b128 v[64:67], v122','s_waitcnt lgkmcnt(0)')
for t in range(5):
    a=104+4*(t&1)
    buildA(a, 64+t//2, t&1)
    A(f's_waitcnt vmcnt({8-t})','s_nop 0')
    mfma(116,a,16+4*t,t==0)
A('s_nop 7')
if WDK: A('v_mov_b32 v104, 1',f'v_mov_b32 v105, {hex(WD)}','s_mov_b64 exec, 1','ds_add_u32 v105, v104','s_mov_b64 exec, -1')
for r in range(4): A(f'v_mul_f32 v{116+r}, v73, v{116+r}')
A('s_setprio 3')
if FINE in (2,4):
    A('s_waitcnt vmcnt(0)'); stamp(8,'W')
lds_spin(YOF,1,104,'yo',sleep=0)
A('ds_read_b64 v[64:65], v123','s_waitcnt vmcnt(0) lgkmcnt(0)')
if not FINE: stamp(8,'W')
for t in range(4):
    buildA(80+4*t, 64+t//2, t&1)
    if t>0: mfma(112,80+4*(t-1),36+4*(t-1),t==1)
A('s_nop 0')
mfma(112,92,48,False)
A('s_nop 7')
for r in range(4): A(f'v_fma_f32 v{112+r}, v72, v{112+r}, v{116+r}')
for r in range(4): A(f'v_bfi_b32 v{112+r}, s41, v7, v{112+r}')
A('buffer_store_dwordx4 v[112:115], v120, s[52:55], s14 offen sc1')
stamp(9,'W')
A(f's_cmp_ge_u32 s2, {NRED}','s_cbranch_scc1 L_Wend')
if ACK: A('s_waitcnt vmcnt(0)')
A('s_barrier','L_Wend:')
flush_stamps('W')
A('L_end:','s_endpgm','L_code_end:')
A('.section .rodata,"a"','.p2align 6',f'.amdhsa_kernel {KNAME}')
A('  .amdhsa_next_free_vgpr 128','  .amdhsa_next_free_sgpr 102','  .amdhsa_accum_offset 128')
A('  .amdhsa_group_segment_fixed_size 0','  .amdhsa_kernarg_size 96','  .amdhsa_user_sgpr_count 2','  .amdhsa_user_sgpr_kernarg_segment_ptr 1','  .amdhsa_system_sgpr_workgroup_id_x 1')
A('  .amdhsa_float_denorm_mode_32 3','.end_amdhsa_kernel')
import subprocess, re, os
def emit(nl):
    t='\n'.join(L)+'\n'
    return t.replace('PFSTEP',hex(0x100+0) if nl is None else f'{(nl+31)//32:#x}').replace('NLINES',hex(0x100) if nl is None else f'{nl:#x}')
def size_of(txt):
    open(out+'.tmp.s','w').write(txt)
    subprocess.run(['clang','-x','assembler','-target','amdgcn-amd-amdhsa','-mcpu=gfx950','-c',out+'.tmp.s','-o',out+'.tmp.o'],check=True)
    o=subprocess.run(['llvm-readelf','-S',out+'.tmp.o'],capture_output=True,text=True).stdout
    os.remove(out+'.tmp.s'); os.remove(out+'.tmp.o')
    m=re.search(r'\.text\s+PROGBITS\s+\w+\s+\w+\s+(\w+)',o)
    return int(m.group(1),16)
sz=size_of(emit(None)); nl=sz//128
txt=emit(nl); sz2=size_of(txt); assert nl*128<=sz2, (sz,sz2)
open(out,'w').write(txt)
print('code bytes',sz2,end=' ')
print('lines',len(L),'lds',LDS,'ws end',hex(WS_END))
```

```python
import sys, struct
KNAME='gated_mix__sliding_block_cached__dense_activation_relu__decode_kernel'
opts=dict(a.split('=') for a in sys.argv[2:])
out=sys.argv[1]
def I(n,d): return int(opts.get(n,d))
STAMPS=I('stamps',0); PROBE=I('probe',-1); PMUL=I('pmul',2); FINE=I('fine',0)
SPIN=I('spin',1<<17); GSPIN=I('gspin',1<<17); WIN=I('win',32)
THR=[int(x) for x in opts.get('thr','26,29,28,28,28').split(',')]
RP=opts.get('ramp','20').split(',')
RAMPC={int(x.split(':')[0]):int(x.split(':')[1]) for x in RP[:-1]}; RAMPN=int(RP[-1])
SLP=I('slp',1); WIN2=I('win2',0); N2=I('n2',64); FLD=opts.get('fld','sc1').replace('+',' '); FSLP=I('fslp',0); FLAY=opts.get('flay','c'); FDL=I('fdl',0); PR=I('pr',1); PSL=I('psl',6); ACK=I('ack',1); WPB=I('wpb',2); CPF=I('cpf',24); CSZ=I('csz',0); SPEC=I('spec',1); WGS=I('wgs',2); RND=I('rnd',1); PTO=I('pto',0); QB=I('qb',4); WQI=I('wqi',1); OCS=I('ocs',0); DV=I('dv',0); DVT=I('dvt',21); B0=I('b0',0); PIPE=I('pipe',0); PGAP=I('pgap',0); FAST=I('fast',1); NOQ=I('noq',0); NOH=I('noh',0); QFAST=I('qfast',0); WDK=I('wdk',0); HTH=I('hth',20); PSW=I('psw',1); QSL=I('qsl',4); PT=I('pt',0); NOST=I('nostore',0); NOPOLL=I('nopoll',0)
NRED=72
def pol(n):
    p=opts.get(n,'nt').replace('+',' ')
    return '' if p=='none' else ' '+p
PKV=pol('pkv'); PW=pol('pw')
def f2u(f): return struct.unpack('<I',struct.pack('<f',f))[0]
EPOCH=0x0
QP=0x1000
OP=QP+0x40000
HP=OP+0x80000
FP=HP+7*2*4608*4
QA=FP+256*4608
FL=QA+0x40000
WS_END=FL+256*128
WS_SIZE=0x10000000 if STAMPS else WS_END
STAMP_OFF=0x8000000
OOB=0x7f000000
VL=0x10000; SB=0x20000
QL=SB+0x000; PL=SB+0x200; ML=SB+0x600; QF=SB+0x640; PF=SB+0x644; OC=SB+0x648; FC=SB+0x64c; LD=SB+0x650; CR=SB+0x654; YHF=SB+0x658; YOF=SB+0x65c; WD=SB+0x660; PB=SB+0x664; QI=SB+0x668
GL=SB+0x680; GF=SB+0x690; OACC=SB+0x800; FSL=SB+0x1800; STL=SB+0x1A00; YH=SB+0x1C00; YO=SB+0x2000
LDS=SB+0x2200
SC=0.08838834764831845*1.4426950408889634
L=[]
def A(*ss):
    for s in ss:
        if NOST and s.startswith('buffer_store') and s.endswith(' sc1'): s='s_nop 0'
        if NOPOLL and s.startswith('buffer_load') and s.endswith(' sc1'): s='s_nop 0'
        L.append(s)
lab=[0]
def newlab(p):
    lab[0]+=1; return f'L_{p}{lab[0]}'
FIRST={'C':7 if FINE else 4,'L':2,'Q':0,'H':1,'X':3,'W':11 if FINE==2 else (12 if FINE==4 else 8)}
def srd(d,p,n):
    A(f's_mov_b32 s{d}, s{p}', f's_mov_b32 s{d+1}, s{p+1}', f's_mov_b32 s{d+2}, {hex(n)}', f's_mov_b32 s{d+3}, 0x20000')
stamp_regs={}
CUR=['']
def stamp(k, role):
    if FINE==5 and not (k in (9,) or (role=='L' and k in (12,13))): return
    if FINE in (3,4) and k in (4,5,13,15) and role!='Q': return
    if PROBE==k:
        sk=newlab('pk')
        A(f's_cmp_lg_u32 s3, {FIRST[role]}', f's_cbranch_scc1 {sk}')
        A('s_memrealtime s[84:85]','s_waitcnt lgkmcnt(0)','v_mov_b32 v30, s84',f'v_mov_b32 v31, {STL}','ds_write_b32 v31, v30','s_waitcnt lgkmcnt(0)')
        A(f'{sk}:')
    if not STAMPS or k>=16: return
    lst=stamp_regs.setdefault(role,[])
    i=len(lst); lst.append(k); assert i<8
    A(f's_memrealtime s[{84+2*i}:{85+2*i}]')
def stamp_now(k):
    if not STAMPS: return
    if FINE==5 and k==6: return
    A('s_memrealtime s[80:81]','s_waitcnt lgkmcnt(0)','v_mov_b32 v20, s80','v_mov_b32 v21, s81','v_mov_b32 v22, 0')
    A('s_lshl_b32 s8, s2, 7', f's_add_u32 s8, s8, {hex(STAMP_OFF)}')
    A(f'buffer_store_dwordx2 v[20:21], v22, s[52:55], s8 offen offset:{8*k}')
def flush_stamps(role):
    if not STAMPS: return
    lst=stamp_regs.get(role,[])
    skip=newlab('nost')
    A('s_mov_b64 exec, -1', f's_cmp_lg_u32 s3, {FIRST[role]}', f's_cbranch_scc1 {skip}', 's_waitcnt lgkmcnt(0)')
    A('s_lshl_b32 s8, s2, 7', f's_add_u32 s8, s8, {hex(STAMP_OFF)}', 'v_mov_b32 v3, 0')
    for i,k in enumerate(lst):
        A(f'v_mov_b32 v4, s{84+2*i}', f'v_mov_b32 v5, s{85+2*i}', f'buffer_store_dwordx2 v[4:5], v3, s[52:55], s8 offen offset:{k*8}', 's_waitcnt vmcnt(0)')
    A(f'{skip}:')
def epoch_load():
    A(f's_load_dword s40, s[38:39], {EPOCH}')
    srd(52,38,WS_SIZE)
    A('s_mov_b32 s41, 0xfff')
def tag_ready():
    A('s_waitcnt lgkmcnt(0)','s_add_u32 s42, s40, 1','s_and_b32 s40, s42, s41','v_mov_b32 v7, s40')
def selectors(base, tmp):
    A(f'v_mov_b32 v{tmp}, 0x0c0c0100', f'v_mov_b32 v{tmp+1}, 0x01000c0c', 's_mov_b32 s60, 0xaaaaaaaa', 's_mov_b32 s61, 0xaaaaaaaa')
    A(f'v_cndmask_b32 v{tmp}, v{tmp}, v{tmp+1}, s[60:61]')
    A(f'v_mov_b32 v{tmp+1}, 0x0c0c0302', f'v_mov_b32 v{tmp+2}, 0x03020c0c')
    A(f'v_cndmask_b32 v{tmp+1}, v{tmp+1}, v{tmp+2}, s[60:61]')
    A(f'v_mov_b32 v{tmp+2}, 0x0c0c0c0c')
    for d in range(4):
        m=(0x03030303<<(2*d))&0xffffffff
        A(f's_mov_b32 s60, {hex(m)}', f's_mov_b32 s61, {hex(m)}')
        A(f'v_cndmask_b32 v{base+d}, v{tmp+2}, v{tmp}, s[60:61]', f'v_cndmask_b32 v{base+4+d}, v{tmp+2}, v{tmp+1}, s[60:61]')
def buildA(dst, src, odd, sel=8):
    for d in range(4): A(f'v_perm_b32 v{dst+d}, v{src}, v{src}, v{sel+(4 if odd else 0)+d}')
def mfma(d,a,b,first):
    c='0' if first else f'v[{d}:{d+3}]'
    A(f'v_mfma_f32_16x16x32_bf16 v[{d}:{d+3}], v[{a}:{a+3}], v[{b}:{b+3}], {c}')
def lds_spin(addr, val, vt, name, sleep=1):
    l=newlab(name); d=newlab(name+'d')
    A(f'v_mov_b32 v{vt}, {hex(addr)}', f's_mov_b32 s62, {SPIN}', f'{l}:', f'ds_read_b32 v{vt+1}, v{vt}', 's_sub_u32 s62, s62, 1', 's_waitcnt lgkmcnt(0)')
    A(f'v_readfirstlane_b32 s63, v{vt+1}', f's_cbranch_scc1 {d}', f's_cmp_ge_u32 s63, {val}')
    if sleep: A(f's_cbranch_scc1 {d}', f's_sleep {sleep*SLP}', f's_branch {l}')
    else: A(f's_cbranch_scc0 {l}')
    A(f'{d}:')
def mpoll(loads, name, chk, init='-1', slp=0):
    lp=newlab(name); go=newlab(name+'go')
    for i,_ in enumerate(loads): A(f's_mov_b64 s[{72+2*i}:{73+2*i}], {init}')
    A(f's_mov_b32 s62, {GSPIN}', f'{lp}:')
    if slp: A(f's_sleep {slp}')
    for i,(d,n,t) in enumerate(loads):
        sk=newlab('sk')
        A(f's_mov_b64 exec, s[{72+2*i}:{73+2*i}]', f's_cbranch_execz {sk}', t, f'{sk}:')
    A('s_sub_u32 s62, s62, 1', f's_cbranch_scc1 {go}', 's_waitcnt vmcnt(0)')
    if FINE==5 and name=='fp' and CUR[0]=='L':
        A(f's_cmp_lg_u32 s62, {GSPIN-1}','s_cbranch_scc1 L_nf5'); stamp(13,'L'); A('L_nf5:')
    if FINE==4 and name=='op':
        A(f's_cmp_lg_u32 s62, {GSPIN-1}','s_cbranch_scc1 L_nf4'); stamp(5,'Q'); A('L_nf4:')
    for i,(d,n,t) in enumerate(loads):
        A(f's_mov_b64 exec, s[{72+2*i}:{73+2*i}]')
        for k in range(n): A(f'v_xor_b32 v{d+k}, v7, v{d+k}')
        if n==4: A(f'v_or3_b32 v{chk}, v{d}, v{d+1}, v{d+2}', f'v_or_b32 v{chk}, v{chk}, v{d+3}', f'v_and_b32 v{chk}, s41, v{chk}')
        else: A(f'v_and_b32 v{chk}, s41, v{d}')
        A(f'v_cmp_ne_u32 s[{72+2*i}:{73+2*i}], 0, v{chk}')
    A('s_nop 0', 's_or_b64 s[76:77], s[72:73], s[74:75]', f's_cbranch_scc1 {lp}', f'{go}:', 's_mov_b64 exec, -1', 's_waitcnt vmcnt(0)')
def ppoll(res, stage, addr, name, chk, depth):
    go=newlab(name+'go'); lp=newlab(name)
    n=len(res)
    def issue(k, first=False):
        for i in range(n):
            if first: A('s_mov_b64 exec, -1')
            else: A(f's_or_b64 exec, s[{72+2*i}:{73+2*i}], 1')
            A(f'buffer_load_dwordx4 v[{stage[k][i]}:{stage[k][i]+3}], {addr[i]}')
    def check(k):
        for i in range(n):
            d=res[i]
            A(f's_mov_b64 exec, s[{72+2*i}:{73+2*i}]')
            for q in range(4): A(f'v_xor_b32 v{d+q}, v7, v{stage[k][i]+q}')
            A(f'v_or3_b32 v{chk}, v{d}, v{d+1}, v{d+2}', f'v_or_b32 v{chk}, v{chk}, v{d+3}', f'v_and_b32 v{chk}, s41, v{chk}', f'v_cmp_ne_u32 s[{72+2*i}:{73+2*i}], 0, v{chk}')
        A('s_nop 0','s_or_b64 s[76:77], s[72:73], s[74:75]',f's_cbranch_scc0 {go}')
    for i in range(n): A(f's_mov_b64 s[{72+2*i}:{73+2*i}], -1')
    A(f's_mov_b32 s62, {GSPIN}')
    issue(0,True)
    A('s_waitcnt vmcnt(0)'); check(0)
    for k in range(depth-1):
        issue(k)
        if PGAP: A(f's_sleep {PGAP}')
    A(f'{lp}:')
    for k in range(depth):
        issue((k+depth-1)%depth)
        A(f's_waitcnt vmcnt({n*(depth-1)})')
        check(k)
    A('s_sub_u32 s62, s62, 1',f's_cbranch_scc0 {lp}',f'{go}:','s_mov_b64 exec, -1')
DPP=' row_mask:0xf bank_mask:0xf'
def allreduce(op, regs, steps, tmp=None):
    n=len(regs); pad=max(0,2-(n-1))
    ctl={'x1':'quad_perm:[1,0,3,2]','x2':'quad_perm:[2,3,0,1]','hm':'row_half_mirror','m':'row_mirror','ror4':'row_ror:4','ror8':'row_ror:8'}
    for s in steps:
        if s in ctl:
            if pad: A(f's_nop {pad-1}')
            for r in regs: A(f'{op}_dpp v{r}, v{r}, v{r} {ctl[s]}{DPP}')
        else:
            ins='v_permlane16_swap_b32' if s=='r16' else 'v_permlane32_swap_b32'
            for i,r in enumerate(regs): A(f'v_mov_b32 v{tmp+i}, v{r}')
            A('s_nop 1')
            for i,r in enumerate(regs): A(f'{ins} v{r}, v{tmp+i}')
            A('s_nop 0')
            for i,r in enumerate(regs): A(f'{op} v{r}, v{r}, v{tmp+i}')
def pkadd(d,a,b):
    for k in (0,2): A(f'v_pk_add_f32 v[{d+k}:{d+k+1}], v[{a+k}:{a+k+1}], v[{b+k}:{b+k+1}]')
BB=('s_barrier',)

A(f'; @launch grid=(256,1,1) block=(832,1,1) lds={LDS}')
A('.amdgcn_target "amdgcn-amd-amdhsa--gfx950"','.text',f'.globl {KNAME}','.p2align 8',f'.type {KNAME},@function',f'{KNAME}:')
if STAMPS or PROBE>=0: A('s_memrealtime s[82:83]')
A('s_cmp_ge_u32 s2, 256','s_cbranch_scc1 L_end')
A('s_load_dwordx16 s[16:31], s[0:1], 0','s_load_dwordx8 s[32:39], s[0:1], 64')
A('v_lshrrev_b32 v1, 6, v0','v_and_b32 v0, 63, v0','s_and_b32 s4, s2, 7','v_readfirstlane_b32 s3, v1')
A('s_lshl_b32 s4, s4, 1','s_bfe_u32 s5, s2, 0x10003','s_add_u32 s4, s4, s5')
A('s_bfe_u32 s5, s2, 0x10004','s_lshr_b32 s6, s2, 5','s_lshr_b32 s7, s2, 4')
A('v_and_b32 v1, 15, v0','v_lshrrev_b32 v2, 4, v0')
if CPF:
    A('s_cmp_lg_u32 s3, 3','s_cbranch_scc1 L_nopf')
    A('s_getpc_b64 s[10:11]','s_and_b32 s10, s10, 0xffffff00','s_lshr_b32 s8, s2, 3','s_mul_i32 s8, s8, PFSTEP','v_add_u32 v3, s8, v0')
    A('v_subrev_u32 v4, NLINES, v3','v_min_u32 v3, v3, v4','v_lshlrev_b32 v3, 7, v3',f's_mov_b32 exec_lo, {hex(((1<<CPF)-1)&0xffffffff)}',f's_mov_b32 exec_hi, {hex(((1<<CPF)-1)>>32)}','global_load_dword v4, v3, s[10:11]','s_mov_b64 exec, -1','L_nopf:')
A('s_cmp_gt_u32 s3, 1','s_cbranch_scc1 L_disp')
QPOS=len(L)

RED_EMITTED=[0]
def reducer(role):
    CUR[0]=role
    if not STAMPS:
        if RED_EMITTED[0]:
            A('s_branch L_red'); return
        RED_EMITTED[0]=1; A('L_red:')
    fin=newlab('fin')
    A(f's_cmp_ge_u32 s2, {NRED}', f's_cbranch_scc1 {fin}', 's_setprio 0')
    A('v_lshlrev_b32 v5, 4, v0','v_and_b32 v6, 3, v0')
    if FLAY=='t': A('s_lshl_b32 s8, s2, 14','s_lshl_b32 s9, s3, 11','s_add_u32 s8, s8, s9',f's_add_u32 s8, s8, {hex(FP)}','s_add_u32 s11, s8, 1024')
    else: A('v_lshrrev_b32 v5, 2, v0','v_mul_u32_u24 v5, 4608, v5','v_lshl_add_u32 v5, v6, 4, v5',f's_mul_i32 s8, s3, {32*4608}','s_lshl_b32 s9, s2, 6','s_add_u32 s8, s8, s9',f's_add_u32 s8, s8, {hex(FP)}',f's_add_u32 s11, s8, {16*4608}')
    A('v_bfe_u32 v8, v0, 2, 2','v_lshl_add_u32 v8, v6, 2, v8','v_lshlrev_b32 v8, 5, v8','s_lshl_b32 s10, s3, 2',f's_add_u32 s10, s10, {hex(FSL)}','v_add_u32 v8, s10, v8')
    A('v_mov_b32 v11, 1',f'v_mov_b32 v10, {hex(FC)}','v_lshlrev_b32 v12, 5, v0',f'v_add_u32 v12, {hex(FSL)}, v12','v_lshlrev_b32 v13, 1, v0')
    srd(44,34,2304)
    A('s_lshl_b32 s10, s2, 5')
    A('s_mov_b32 s64, 0x00f000f0','s_mov_b32 s65, 0x00f000f0','s_mov_b32 s66, 0x0f000f00','s_mov_b32 s67, 0x0f000f00','s_mov_b32 s68, 0xf000f000','s_mov_b32 s69, 0xf000f000')
    A('s_barrier')
    if FDL: A(f's_sleep {FDL}')
    if role=='L' and FINE==5: stamp(12,'L')
    if PIPE: ppoll([16,20],[[32+8*k,36+8*k] for k in range(PIPE)],[f'v5, s[52:55], s8 offen {FLD}',f'v5, s[52:55], s11 offen {FLD}'],'fp',9,PIPE)
    else: mpoll([(16,4,f'buffer_load_dwordx4 v[16:19], v5, s[52:55], s8 offen {FLD}'),(20,4,f'buffer_load_dwordx4 v[20:23], v5, s[52:55], s11 offen {FLD}')],'fp',9,slp=FSLP)
    if role=='C': stamp(10, role)
    if FINE==5:
        A('s_memrealtime s[80:81]','s_waitcnt lgkmcnt(0)','v_mov_b32 v24, s80','v_mov_b32 v25, s81','v_mov_b32 v26, 0','s_lshl_b32 s8, s2, 7', f's_add_u32 s8, s8, {hex(STAMP_OFF+8)}','s_lshl_b32 s9, s3, 3','s_add_u32 s8, s8, s9','buffer_store_dwordx2 v[24:25], v26, s[52:55], s8 offen')
    for k in range(4): A(f'v_add_f32 v{16+k}, v{16+k}, v{20+k}')
    allreduce('v_add_f32',[16,17,18,19],['ror4','ror8'])
    A('v_cndmask_b32 v16, v16, v17, s[64:65]','v_cndmask_b32 v16, v16, v18, s[66:67]','v_cndmask_b32 v16, v16, v19, s[68:69]')
    allreduce('v_add_f32',[16],['r16','r32'],tmp=17)
    A('s_mov_b64 exec, 0xffff','ds_write_b32 v8, v16','s_mov_b64 exec, 1','ds_add_rtn_u32 v9, v10, v11','s_mov_b64 exec, 0xffff')
    if SPEC: A('ds_read_b128 v[16:19], v12','ds_read_b128 v[20:23], v12 offset:16','s_waitcnt lgkmcnt(2)')
    else: A('s_waitcnt lgkmcnt(0)')
    A('v_readfirstlane_b32 s8, v9','s_cmp_lg_u32 s8, 7',f's_cbranch_scc1 {fin}')
    if not SPEC: A('ds_read_b128 v[16:19], v12','ds_read_b128 v[20:23], v12 offset:16')
    A('s_waitcnt lgkmcnt(0)')
    pkadd(16,16,20)
    A('v_pk_add_f32 v[16:17], v[16:17], v[18:19]','v_add_f32 v16, v16, v17','v_cvt_pk_bf16_f32 v16, v16, v16')
    A('buffer_store_short v16, v13, s[44:47], s10 offen')
    stamp_now(11)
    A('s_mov_b64 exec, 1','s_cmp_lg_u32 s2, 0',f's_cbranch_scc1 {fin}')
    if PROBE>=0:
        pl=newlab('pl')
        A('s_memrealtime s[80:81]',f'v_mov_b32 v31, {STL}','ds_read_b32 v30, v31','s_waitcnt lgkmcnt(0)','v_readfirstlane_b32 s84, v30')
        if PROBE==11: A('s_mov_b32 s84, s80')
        A('s_sub_u32 s84, s84, s82','s_min_u32 s84, s84, 10000',f's_mul_i32 s84, s84, {PMUL}')
        A(f'{pl}:','s_memrealtime s[86:87]','s_waitcnt lgkmcnt(0)','s_sub_u32 s86, s86, s80','s_cmp_lt_u32 s86, s84',f's_cbranch_scc1 {pl}')
    A('v_mov_b32 v9, s42','v_mov_b32 v8, 0',f'buffer_store_dword v9, v8, s[52:55], 0 offen offset:{EPOCH}')
    A(f'{fin}:')
    flush_stamps(role)
    A('s_endpgm')

def gemv_loop(n, credits):
    A(f's_waitcnt vmcnt({n})')
    for t in range(n):
        a=(28,120)[t&1]
        buildA(a, 16+t//2, t&1)
        A(f's_waitcnt vmcnt({n-1-t})')
        A('s_memrealtime s[98:99]' if (FINE==3 and t==0) else 's_nop 0')
        mfma(124,a,32+4*t,t==0)
        if t in credits: A('s_mov_b64 exec, 1','ds_add_u32 v6, v3','s_mov_b64 exec, -1')
    A('s_nop 7')
    for r in range(4): A(f'v_bfi_b32 v{124+r}, s56, v7, v{124+r}')
    A('buffer_store_dwordx4 v[124:127], v5, s[52:55], s13 offen sc1')

A('s_setprio 3')
A('s_mul_i32 s9, s2, 293','s_lshr_b32 s9, s9, 11','s_mul_i32 s10, s9, 7','s_sub_u32 s10, s2, s10')
A('s_mul_i32 s11, s10, 88','s_mul_i32 s12, s10, 80','s_add_u32 s12, s12, 16','s_min_u32 s11, s11, s12')
A('s_cmp_lt_u32 s10, 2','s_cselect_b32 s14, 22, 20',f's_cselect_b32 s57, 0, {hex(OOB)}')
A('s_lshl_b32 s15, s9, 8','s_cmp_ge_u32 s2, 252',f's_cselect_b32 s15, {hex(OOB)}, s15')
A('s_lshr_b32 s12, s7, 1','s_mul_i32 s13, s12, 72','s_and_b32 s8, s7, 1','s_lshl_b32 s58, s4, 1','s_add_u32 s58, s58, s8','s_lshl_b32 s59, s58, 8')
A('s_lshl_b32 s43, s3, 10','s_add_u32 s43, s43, 8192')
A('s_cmp_eq_u32 s3, 0','s_cselect_b32 s11, s13, s11','s_cselect_b32 s14, 18, s14','s_cselect_b32 s15, s59, s15',f's_cselect_b32 s56, {hex(OOB)}, 0','s_cselect_b32 s57, 0, s57')
A('s_mul_i32 s8, s14, s43','v_mul_u32_u24 v3, s8, v2','v_lshl_add_u32 v3, v1, 4, v3')
A('v_bfe_u32 v4, v0, 3, 1','v_mul_u32_u24 v4, 1152, v4','s_lshl_b32 s8, s14, 1','v_mul_u32_u24 v5, s8, v2','v_add_u32 v4, v4, v5')
A('s_lshl_b32 s8, s11, 1','s_mul_i32 s11, s11, s43','s_add_u32 s11, s11, s15','s_mul_i32 s50, s43, 576','s_mov_b32 s51, 0x20000','s_mov_b32 s46, 2304','s_mov_b32 s47, 0x20000','s_cmp_eq_u32 s3, 0')
A('s_waitcnt lgkmcnt(0)')
if FINE==3: A('s_memrealtime s[94:95]')
A(f's_load_dword s40, s[38:39], {EPOCH}')
A('s_mov_b32 s44, s16','s_mov_b32 s45, s17','s_cselect_b32 s48, s22, s28','s_cselect_b32 s49, s23, s29')
if B0: A('s_cbranch_scc1 L_nb0','s_barrier','L_nb0:')
stamp(22,'Q')
A('buffer_load_dwordx4 v[16:19], v4, s[44:47], s8 offen','buffer_load_dwordx4 v[20:23], v4, s[44:47], s8 offen offset:16','buffer_load_dwordx3 v[24:26], v4, s[44:47], s8 offen offset:32')
for t in range(22):
    A(f'buffer_load_dwordx4 v[{32+4*t}:{35+4*t}], v3, s[48:51], s11 offen{PW}')
    if t<21: A('s_add_u32 s11, s11, s43')
    if t==17: A('s_add_u32 s11, s11, s56')
    if t==19: A('s_add_u32 s11, s11, s57')
if B0: A('s_cmp_lg_u32 s3, 0','s_cbranch_scc1 L_nb1','s_barrier','L_nb1:')
if FINE==3: A('s_memrealtime s[96:97]')
stamp(21,'Q')
A('s_waitcnt lgkmcnt(0)','s_barrier')
srd(52,38,WS_SIZE); A('s_mov_b32 s41, 0xfff')
A(f's_mul_i32 s13, s10, {2*4608*4}','s_lshl_b32 s8, s15, 1','s_add_u32 s13, s13, s8',f's_add_u32 s13, s13, {hex(HP)}')
A('s_lshl_b32 s8, s4, 14','s_lshl_b32 s9, s12, 10','s_add_u32 s8, s8, s9','s_and_b32 s9, s7, 1','s_lshl_b32 s9, s9, 9','s_add_u32 s8, s8, s9',f's_add_u32 s8, s8, {hex(QP)}')
A('s_cmp_ge_u32 s2, 252',f's_cselect_b32 s13, {hex(OOB)}, s13','s_cmp_eq_u32 s3, 0','s_cselect_b32 s13, s8, s13','s_mul_i32 s8, s3, 10240','s_add_u32 s8, s8, 8192')
A('v_lshrrev_b32 v5, 1, v2','v_mul_u32_u24 v5, s8, v5','v_lshl_add_u32 v5, v1, 5, v5','v_and_b32 v6, 1, v2','v_lshl_add_u32 v5, v6, 4, v5')
tag_ready()
selectors(8, 120)
A(f'v_mov_b32 v6, {hex(CR)}','v_mov_b32 v3, 1','s_cmp_eq_u32 s3, 0',f's_cselect_b32 s56, {hex((1<<QB)-1)}, s41','v_and_b32 v27, s56, v7')
gemv_loop(22,(9,17))
A('s_cmp_lg_u32 s3, 0','s_cbranch_scc1 L_H2')
A('s_getreg_b32 s15, hwreg(HW_REG_XCC_ID, 0, 3)','s_lshl_b32 s8, s42, 3','s_or_b32 s15, s15, s8')
A('v_mov_b32 v25, v27','v_lshlrev_b32 v26, 7, v0','v_mov_b32 v27, s15','s_lshl_b32 s14, s4, 11','s_lshl_b32 s8, s7, 2','s_add_u32 s14, s14, s8',f's_add_u32 s14, s14, {hex(FL)}')
A('s_mov_b64 exec, 0xffff','buffer_store_dword v27, v26, s[52:55], s14 offen sc1','s_mov_b64 exec, -1')
stamp(1,'Q')
if FINE==3:
    A('s_waitcnt lgkmcnt(0)','s_lshl_b32 s8, s2, 7', f's_add_u32 s8, s8, {hex(STAMP_OFF)}','v_mov_b32 v22, 0')
    for sr,k in ((82,4),(94,5),(96,13),(98,15)):
        A(f'v_mov_b32 v20, s{sr}',f'v_mov_b32 v21, s{sr+1}',f'buffer_store_dwordx2 v[20:21], v22, s[52:55], s8 offen offset:{8*k}','s_nop 1')
A('v_lshlrev_b32 v5, 4, v0')
A('s_lshl_b32 s13, s4, 1','s_add_u32 s13, s13, s5','s_lshl_b32 s13, s13, 13',f's_add_u32 s13, s13, {hex(QP)}','s_add_u32 s14, s13, 4096')
A('s_lshl_b32 s8, s4, 4','s_add_u32 s8, s8, s7','s_lshl_b32 s8, s8, 7',f's_add_u32 s8, s8, {hex(FL)}','s_add_u32 s46, s38, s8','s_addc_u32 s47, s39, 0')
A('s_mov_b32 s8, 1',f's_mov_b32 s62, {GSPIN}','L_qprobe:',f's_sleep {QSL}','s_load_dwordx16 s[64:79], s[46:47], 0 glc','s_sub_u32 s62, s62, 1','s_cbranch_scc1 L_qfetch0','s_waitcnt lgkmcnt(0)')
A('s_xor_b32 s8, s64, s15')
for p in range(1,16): A(f's_xor_b32 s9, s{64+p}, s15','s_or_b32 s8, s8, s9')
A('s_lshr_b32 s9, s8, 3')
A('s_cbranch_scc1 L_qprobe','L_qfetch0:',f's_mov_b32 s62, {GSPIN}','s_waitcnt lgkmcnt(0)')
if QFAST: A('s_cmp_eq_u32 s8, 0',f's_cselect_b32 s9, {QA-QP}, 0','s_add_u32 s13, s13, s9','s_add_u32 s14, s14, s9')
if FINE==1: stamp(8,'Q')
A('L_qfetch:')
if NOQ: A('s_branch L_qgo')
for r in range(8): A(f'buffer_load_dwordx4 v[{32+4*r}:{35+4*r}], v5, s[52:55], s{13 if r<4 else 14} offen offset:{(r&3)*1024} sc1')
A('s_sub_u32 s62, s62, 1','s_cbranch_scc1 L_qgo','v_mov_b32 v6, 0')
for r in range(8):
    A(f's_waitcnt vmcnt({7-r})')
    for k in range(4): A(f'v_xor_b32 v{32+4*r+k}, v25, v{32+4*r+k}')
    A(f'v_or3_b32 v6, v6, v{32+4*r}, v{33+4*r}',f'v_or3_b32 v6, v6, v{34+4*r}, v{35+4*r}')
A('v_and_b32 v6, s56, v6','v_cmp_ne_u32 vcc, 0, v6','s_cbranch_vccnz L_qfetch','L_qgo:','s_waitcnt vmcnt(0)')
for r in (0,2,4,6): pkadd(32+4*r,32+4*r,36+4*r)
pkadd(32,32,40); pkadd(48,48,56); pkadd(32,32,48)
A('v_cvt_pk_bf16_f32 v32, v32, v33','v_cvt_pk_bf16_f32 v33, v34, v35','v_lshlrev_b32 v5, 3, v0',f'v_add_u32 v5, {hex(QL)}, v5','ds_write_b64 v5, v[32:33]')
A('s_cmp_eq_u32 s8, 0',f's_cselect_b32 s9, {1+FAST}, 1','v_mov_b32 v6, s9',f'v_mov_b32 v5, {hex(QF)}','ds_write_b32 v5, v6')
stamp(2,'Q')
A('v_lshlrev_b32 v123, 11, v1','v_lshl_add_u32 v122, v2, 4, v123')
A('s_lshl_b32 s43, s4, 15','s_lshl_b32 s8, s7, 7','s_add_u32 s43, s43, s8',f's_add_u32 s43, s43, {hex(OP)}')
A('v_lshlrev_b32 v121, 3, v0',f'v_add_u32 v121, {hex(YO)}, v121',f'v_mov_b32 v120, {hex(YOF)}','v_mov_b32 v119, 1')
lds_spin(PB,1,104,'oc',sleep=OCS)
if WDK: lds_spin(WD,WDK,104,'wd',sleep=0)
if FINE==4: stamp(4,'Q')
if PR:
    for k in range(PR):
        if k: A(f's_sleep {PSL}')
        A(f'buffer_load_dwordx4 v[{16+8*k}:{19+8*k}], v122, s[52:55], s43 offen sc1',f'buffer_load_dwordx4 v[{20+8*k}:{23+8*k}], v123, s[52:55], s43 offen offset:64 sc1')
    if WQI: A(f'ds_write_b32 v120, v119 offset:{QI-YOF}')
    for k in range(PR):
        A(f's_waitcnt vmcnt({2*(PR-1-k)})')
        for i in range(8): A(f'v_xor_b32 v{64+i}, v7, v{16+8*k+i}')
        A('v_or3_b32 v74, v64, v65, v66','v_or3_b32 v74, v74, v67, v68','v_or3_b32 v74, v74, v69, v70','v_or_b32 v74, v74, v71','v_and_b32 v74, s41, v74','v_cmp_ne_u32 vcc, 0, v74','s_cbranch_vccz L_odone')
mpoll([(64,4,'buffer_load_dwordx4 v[64:67], v122, s[52:55], s43 offen sc1'),(68,4,'buffer_load_dwordx4 v[68:71], v123, s[52:55], s43 offen offset:64 sc1')],'op',74)
A('L_odone:')
if FINE==4:
    A(f's_sub_u32 s8, {GSPIN}, s62','s_mul_i32 s8, s8, 100','s_waitcnt lgkmcnt(0)','s_add_u32 s98, s82, s8','s_addc_u32 s99, s83, 0','s_lshl_b32 s8, s2, 7', f's_add_u32 s8, s8, {hex(STAMP_OFF)}','v_mov_b32 v22, 0','v_mov_b32 v20, s98','v_mov_b32 v21, s99','buffer_store_dwordx2 v[20:21], v22, s[52:55], s8 offen offset:120')
stamp(7,'Q')
allreduce('v_max_f32',[70],['x1','x2','hm'])
A('v_sub_f32 v68, v68, v70','v_exp_f32 v68, v68','s_nop 0','v_mul_f32 v69, v68, v69')
for k in range(4): A(f'v_mul_f32 v{64+k}, v68, v{64+k}')
allreduce('v_add_f32',[69,64,65,66,67],['x1','x2','hm'])
A('v_rcp_f32 v69, v69','s_nop 0')
for k in range(4): A(f'v_mul_f32 v{64+k}, v69, v{64+k}')
A('v_cvt_pk_bf16_f32 v64, v64, v65','v_cvt_pk_bf16_f32 v65, v66, v67','ds_write_b64 v121, v[64:65]','ds_write_b32 v120, v119')
reducer('Q')

A('.p2align 6','L_disp:')
if B0: A('s_barrier')
A('s_cmp_eq_u32 s3, 2','s_cbranch_scc1 L_L','s_cmp_eq_u32 s3, 3','s_cbranch_scc1 L_X','s_cmp_ge_u32 s3, 8','s_cbranch_scc1 L_W','s_branch L_C')
A('L_H2:')
stamp(12,'H')
A('v_and_b32 v6, 7, v0','v_lshlrev_b32 v6, 1, v6','v_bfe_u32 v9, v0, 3, 1','v_add_u32 v6, v6, v9',f'v_mul_u32_u24 v6, {4608*4}, v6')
A('v_mov_b32 v9, v6','v_lshl_add_u32 v6, v2, 4, v6')
A('s_mul_i32 s11, s2, 72',f's_add_u32 s11, s11, {hex(HP)}','s_and_b32 s8, s2, 1','s_lshl_b32 s8, s8, 3','s_sub_u32 s12, s11, s8')
A('s_cmp_eq_u32 s8, 0','s_cselect_b32 s64, 0, -1','s_mov_b32 s65, s64','s_mov_b32 s66, 0xffff0000','s_mov_b32 s67, 0xffff0000')
A('v_lshlrev_b32 v121, 4, v0',f'v_add_u32 v121, {hex(YH)}, v121',f'v_mov_b32 v120, {hex(YHF)}','v_mov_b32 v119, 1')
for k in range(8): A(f'v_mov_b32 v{64+k}, 0')
A('s_mov_b32 s78, 0x7f7f7f7f','s_mov_b32 s79, 0x7f7f7f7f')
lds_spin(LD,HTH,104,'hl',sleep=4)
if not NOH: mpoll([(64,4,'buffer_load_dwordx4 v[64:67], v6, s[52:55], s11 offen sc1'),(68,4,'buffer_load_dwordx4 v[68:71], v9, s[52:55], s12 offen offset:64 sc1')],'hp',72,init='s[78:79]')
A('v_cndmask_b32 v68, v68, v70, s[64:65]','v_cndmask_b32 v69, v69, v71, s[64:65]','v_cndmask_b32 v68, v68, v69, s[66:67]','s_nop 0')
stamp(13,'H')
allreduce('v_add_f32',[64,65,66,67,68],['x1','x2','hm'])
for k in range(5): A(f'v_max_f32 v{64+k}, 0, v{64+k}')
A('v_cvt_pk_bf16_f32 v64, v64, v65','v_cvt_pk_bf16_f32 v65, v66, v67','v_cvt_pk_bf16_f32 v66, v68, v68','ds_write_b128 v121, v[64:67]','ds_write_b32 v120, v119')
reducer('H')

A('.p2align 6','L_L:','s_setprio 3')
for u in range(4): A(f'v_add_u32 v8, {4*u}, v2','v_xor_b32 v8, v8, v1','v_lshlrev_b32 v8, 4, v8',f'v_lshl_add_u32 v{12+u}, v2, 8, v8')
A('v_lshlrev_b32 v3, 4, v0')
A('s_lshl_b32 s12, s5, 4','s_add_u32 s12, s12, s4','s_lshl_b32 s12, s12, 21','s_lshl_b32 s13, s6, 16','s_add_u32 s12, s12, s13','s_add_u32 s12, s12, 0x180000')
A('s_lshr_b32 s13, s2, 3','s_add_u32 s13, s13, s2')
for i in range(16): A(f's_add_u32 s14, s13, {i}','s_and_b32 s14, s14, 15','s_lshl_b32 s14, s14, 12',f's_add_u32 s{64+i}, s12, s14')
A(f'v_mov_b32 v9, {hex(LD)}','s_waitcnt lgkmcnt(0)')
epoch_load()
srd(44,18,0x4000000); srd(48,20,0x4000000)
tag_ready()
A(*BB)
stamp(20,'L')
n=0; sig=0
def signal(upto):
    global sig
    if upto>sig:
        sig=upto
        A(f'v_mov_b32 v10, {upto}','ds_write_b32 v9, v10')
NT=28 if DV else 32
for i in range(NT):
    for u in range(4):
        if n in RAMPC: lds_spin(CR,RAMPC[n],16,'cr',sleep=0)
        if u==0: A(f's_mov_b32 m0, {hex(i*4096)}')
        w = RAMPN if n==RAMPN else (WIN2 if (WIN2 and n>=N2) else WIN)
        if n>=w:
            A(f's_waitcnt vmcnt({w-1})')
            signal((n-w+1)//4)
        elif u==0: A('s_nop 0')
        if i<16: A(f'buffer_load_dwordx4 v{12+u}, s[44:47], s{64+i} offen offset:{u*1024}{PKV} lds')
        else: A(f'buffer_load_dwordx4 v3, s[48:51], s{64+i-16} offen offset:{u*1024}{PKV} lds')
        n+=1
stamp(14,'L')
while sig<NT:
    A(f's_waitcnt vmcnt({4*NT-4*(sig+1)})')
    signal(sig+1)
stamp(3,'L')
reducer('L')

A('.p2align 6','L_C:','s_setprio 2','s_sub_u32 s15, s3, 4')
A('v_mov_b32 v4, 0','v_lshlrev_b32 v5, 2, v0',f'v_add_u32 v5, {hex(ML)}, v5','ds_write_b32 v5, v4')
A('v_lshlrev_b32 v122, 4, v0',f'v_add_u32 v122, {hex(OACC)}, v122','s_lshl_b32 s8, s15, 10','v_add_u32 v125, s8, v122')
A('s_waitcnt lgkmcnt(0)')
epoch_load()
tag_ready()
A(*BB)
selectors(8,104)
A('s_lshl_b32 s8, s15, 12')
for ks in range(4): A(f'v_add_u32 v4, {4*ks}, v2','v_xor_b32 v4, v4, v1','v_lshlrev_b32 v4, 4, v4','v_lshl_add_u32 v4, v1, 8, v4',f'v_add_u32 v{116+ks}, s8, v4')
A('v_lshlrev_b32 v3, 4, v0',f's_add_u32 s9, s8, {hex(VL)}','v_add_u32 v3, s9, v3')
A('v_and_b32 v5, 1, v0','v_lshlrev_b32 v5, 8, v5','v_lshl_add_u32 v5, v2, 4, v5',f'v_add_u32 v5, {hex(QL)}, v5')
A('s_lshl_b32 s8, s15, 8',f's_add_u32 s8, s8, {hex(PL)}')
A('v_and_b32 v6, 3, v0','v_lshlrev_b32 v6, 5, v6','v_lshrrev_b32 v4, 2, v0','v_lshl_add_u32 v6, v4, 1, v6','v_add_u32 v6, s8, v6')
A('v_bfe_u32 v4, v0, 3, 1','v_lshl_add_u32 v4, v4, 2, v2','v_lshlrev_b32 v4, 5, v4','v_add_u32 v123, s8, v4')
A('v_lshrrev_b32 v124, 5, v0','v_lshlrev_b32 v124, 4, v124',f'v_add_u32 v124, {hex(ML)}, v124')
A('v_lshrrev_b32 v121, 5, v0','v_lshlrev_b32 v121, 3, v121','v_lshrrev_b32 v4, 1, v1','v_add_u32 v121, v121, v4','v_lshlrev_b32 v121, 7, v121')
A('v_and_b32 v4, 1, v1','v_lshl_add_u32 v120, v4, 5, v121','v_and_b32 v4, 1, v2','v_lshl_add_u32 v120, v4, 4, v120')
A('s_lshl_b32 s12, s4, 1','s_add_u32 s12, s12, s5','s_lshl_b32 s12, s12, 3','s_add_u32 s12, s12, s6','s_lshl_b32 s12, s12, 11',f's_add_u32 s12, s12, {hex(OP)}')
if DV:
    srd(44,20,0x4000000)
    A('s_lshl_b32 s14, s5, 4','s_add_u32 s14, s14, s4','s_lshl_b32 s14, s14, 21','s_lshl_b32 s8, s6, 16','s_add_u32 s14, s14, s8','s_add_u32 s14, s14, 0x180000')
    A('s_lshr_b32 s8, s2, 3','s_add_u32 s8, s8, s2','s_add_u32 s8, s8, s15','s_add_u32 s8, s8, 12','s_and_b32 s8, s8, 15','s_lshl_b32 s8, s8, 12','s_add_u32 s14, s14, s8','v_lshlrev_b32 v126, 4, v0')
A(f's_mov_b32 s43, {hex(f2u(1.4426950408889634 if RND else SC))}',f's_mov_b32 s74, {hex(f2u(0.08838834764831845))}')
A('s_mov_b32 s64, 0xffff0000','s_mov_b32 s65, 0','s_mov_b32 s66, 0','s_mov_b32 s67, 0xffff','s_mov_b32 s68, 0','s_mov_b32 s69, 0xffff0000')
if STAMPS:
    stamp_regs['C']=[0]; A('s_mov_b64 s[84:85], s[82:83]')
if PT:
    lds_spin(LD,4,16,'pt',sleep=4)
    A('s_cmp_lg_u32 s15, 0','s_cbranch_scc1 L_Cnopt','buffer_load_dwordx4 v[76:79], v120, s[52:55], s12 offen','L_Cnopt:')
lds_spin(QF,1,16,'qf',sleep=2)
A('s_mov_b32 s73, s63')
for ks in range(4): A(f'ds_read_b128 v[{80+4*ks}:{83+4*ks}], v5 offset:{ks*64}')
A('s_add_u32 s13, s15, 13')
lds_spin(LD,'s13',16,'kl')
A('s_mov_b32 s72, s63','s_waitcnt vmcnt(0)')
for t in range(4):
    for ks in range(4): A(f'ds_read_b128 v[{16+16*t+4*ks}:{19+16*t+4*ks}], v{116+ks} offset:{t*16384}')
for t in range(4):
    A(f's_waitcnt lgkmcnt({12-4*t})')
    for ks in range(4): mfma(96+4*t, 80+4*ks, 16+16*t+4*ks, ks==0)
A('s_nop 7')
for h in range(2): A(f'v_cndmask_b32 v{16+h}, v{96+h}, v{100+h}, s[64:65]')
for h in range(2): A(f'v_cndmask_b32 v{16+h}, v{16+h}, v{104+h}, s[66:67]')
for h in range(2): A(f'v_cndmask_b32 v{16+h}, v{16+h}, v{108+h}, s[68:69]')
if RND:
    A('v_cvt_pk_bf16_f32 v18, v16, v17','v_lshlrev_b32 v16, 16, v18','v_and_b32 v17, 0xffff0000, v18','v_mul_f32 v16, s74, v16','v_mul_f32 v17, s74, v17')
    A('v_cvt_pk_bf16_f32 v18, v16, v17','v_lshlrev_b32 v16, 16, v18','v_and_b32 v17, 0xffff0000, v18')
A('v_mov_b32 v18, v16','v_mov_b32 v19, v17')
allreduce('v_max_f32',[18,19],['x1','x2','hm','m','r16','r32'],tmp=20)
A('v_mul_f32 v18, s43, v18','v_mul_f32 v19, s43, v19','v_fma_f32 v16, v16, s43, -v18','v_fma_f32 v17, v17, s43, -v19')
A('v_exp_f32 v16, v16','v_exp_f32 v17, v17','s_nop 0','v_cvt_pk_bf16_f32 v22, v16, v17')
A('ds_write_b16 v6, v22','ds_write_b16_d16_hi v6, v22 offset:128','ds_read_b128 v[80:83], v123','ds_read_b128 v[84:87], v123 offset:16')
allreduce('v_add_f32',[16,17],['x1','x2','hm','m','r16','r32'],tmp=20)
A('s_lshl_b32 s8, s15, 2',f's_add_u32 s8, s8, {hex(ML)}','v_mov_b32 v5, s8','s_mov_b32 s70, -1','s_mov_b32 s71, 0')
A('v_cndmask_b32 v96, v19, v18, s[70:71]')
A('s_mov_b64 exec, 1','ds_write2_b32 v5, v18, v19 offset0:0 offset1:4','ds_write2_b32 v5, v16, v17 offset0:8 offset1:12')
A('v_mov_b32 v6, 1',f'v_mov_b32 v5, {hex(PF)}','ds_add_u32 v5, v6','s_mov_b64 exec, -1')
stamp(4,'C')
def factors():
    lds_spin(PF,4,104,'pf')
    A('ds_read_b128 v[88:91], v124','ds_read_b128 v[92:95], v124 offset:32','s_waitcnt lgkmcnt(0)')
    A('v_max3_f32 v97, v88, v89, v90','v_max_f32 v97, v97, v91','v_and_b32 v97, 0xfffff000, v97')
    for k in range(4): A(f'v_sub_f32 v{88+k}, v{88+k}, v97')
    A('v_sub_f32 v96, v96, v97')
    for k in range(4): A(f'v_exp_f32 v{88+k}, v{88+k}')
    A('v_exp_f32 v96, v96','v_mul_f32 v99, v88, v92')
    for k in range(1,4): A(f'v_fmac_f32 v99, v{88+k}, v{92+k}')
    A('v_or_b32 v100, v97, v7','v_bfi_b32 v101, s41, v7, v99','v_mov_b32 v102, v100','v_mov_b32 v103, v101')
    A('v_mov_b32 v106, 1',f'v_mov_b32 v107, {hex(OC)}')
A('s_waitcnt lgkmcnt(0)')
for tau in range(4):
    for u in range(4): buildA(32+4*u, 80+(4*tau+u)//2, u&1)
    if tau==3: factors()
    sk=newlab('vsk')
    A(f's_add_u32 s13, s15, {17+4*tau}','s_cmp_ge_u32 s72, s13',f's_cbranch_scc1 {sk}')
    lds_spin(LD,'s13',104,'vl',sleep=0)
    A('s_mov_b32 s72, s63',f'{sk}:')
    for u in range(4): A(f'ds_read_b128 v[{16+4*u}:{19+4*u}], v3 offset:{tau*16384+u*1024}')
    for u in range(4):
        A(f's_waitcnt lgkmcnt({3-u})')
        mfma(112,32+4*u,16+4*u,tau==0 and u==0)
A('s_nop 7')
for r in range(4): A(f'v_mul_f32 v{112+r}, v96, v{112+r}')
A('ds_write_b128 v125, v[112:115]','s_mov_b64 exec, 1','ds_add_rtn_u32 v106, v107, v106','s_mov_b64 exec, -1')
if SPEC:
    for w in range(4): A(f'ds_read_b128 v[{16+4*w}:{19+4*w}], v122 offset:{1024*w}')
A(f's_waitcnt lgkmcnt({4 if SPEC else 0})')
A('v_readfirstlane_b32 s8, v106','s_cmp_lg_u32 s8, 3','s_cbranch_scc1 L_Cnopub')
if not SPEC:
    for w in range(4): A(f'ds_read_b128 v[{16+4*w}:{19+4*w}], v122 offset:{1024*w}')
A('s_setprio 3','s_waitcnt lgkmcnt(2)')
pkadd(16,16,20)
A('s_waitcnt lgkmcnt(0)')
pkadd(24,24,28); pkadd(112,16,24)
for r in range(4): A(f'v_bfi_b32 v{112+r}, s41, v7, v{112+r}')
A('s_cmp_eq_u32 s73, 2','s_cbranch_scc1 L_Cfast')
A('buffer_store_dwordx4 v[112:115], v120, s[52:55], s12 offen sc1')
A('s_mov_b32 exec_lo, 0x5555','s_mov_b32 exec_hi, 0x5555','buffer_store_dwordx4 v[100:103], v121, s[52:55], s12 offen offset:64 sc1','s_branch L_Cpubd')
A('L_Cfast:','buffer_store_dwordx4 v[112:115], v120, s[52:55], s12 offen')
A('s_mov_b32 exec_lo, 0x5555','s_mov_b32 exec_hi, 0x5555','buffer_store_dwordx4 v[100:103], v121, s[52:55], s12 offen offset:64')
A('L_Cpubd:','s_mov_b64 exec, -1',f'ds_write_b32 v107, v107 offset:{PB-OC}')
stamp_now(6)
A('L_Cnopub:','s_waitcnt lgkmcnt(0)')
stamp(5,'C')
reducer('C')

A('.p2align 6','L_X:')
A('v_and_b32 v9, 31, v0','v_mul_u32_u24 v9, 36, v9','v_lshrrev_b32 v10, 5, v0','v_mul_u32_u24 v10, 1152, v10','v_add_u32 v10, v10, v9')
A('s_waitcnt lgkmcnt(0)')
epoch_load()
srd(44,16,2304); srd(48,32,1152)
tag_ready()
A(*BB)
for k in range(3): A(f'buffer_load_dwordx3 v[{64+4*k}:{66+4*k}], v10, s[44:47], 0 offen offset:{12*k}')
for k in range(3): A(f'buffer_load_dwordx3 v[{80+4*k}:{82+4*k}], v9, s[48:51], 0 offen offset:{12*k}')
if PTO:
    A('v_mov_b32 v4, 0','s_mov_b64 exec, 1')
    if PTO&1:
        srd(56,34,2304); A('buffer_load_dword v102, v4, s[56:59], 0 offen')
    if PTO&2:
        A('s_mul_i32 s8, s2, 4608',f's_add_u32 s8, s8, {hex(FP)}','buffer_load_dword v103, v4, s[52:55], s8 offen')
    if PTO&4:
        A('s_lshl_b32 s12, s5, 4','s_add_u32 s12, s12, s4','s_lshl_b32 s12, s12, 21','s_add_u32 s12, s12, 0x180000')
        srd(56,20,0x4000000); A('buffer_load_dword v104, v4, s[56:59], s12 offen')
        A('s_lshl_b32 s12, s4, 4','s_add_u32 s12, s12, s7',f's_mul_i32 s12, s12, {16*1152}')
        srd(56,24,4096*1152); A('buffer_load_dword v105, v4, s[56:59], s12 offen')
        A(f's_mul_i32 s12, s2, {18*1152}')
        srd(56,30,4608*1152); A('buffer_load_dword v106, v4, s[56:59], s12 offen')
    A('s_mov_b64 exec, -1')
A('v_mov_b32 v100, 0','s_waitcnt vmcnt(0)')
for k in range(3):
    for i in range(3):
        x=64+4*k+i; w=80+4*k+i
        A(f'v_lshlrev_b32 v96, 16, v{x}',f'v_lshlrev_b32 v97, 16, v{w}',f'v_and_b32 v98, 0xffff0000, v{x}',f'v_and_b32 v99, 0xffff0000, v{w}')
        A('v_mul_f32 v96, v96, v97','v_mul_f32 v98, v98, v99','v_cvt_pk_bf16_f32 v96, v96, v98','v_lshlrev_b32 v97, 16, v96','v_and_b32 v98, 0xffff0000, v96')
        A('v_add_f32 v100, v100, v97','v_add_f32 v100, v100, v98')
allreduce('v_add_f32',[100],['x1','x2','hm','m','r16'],tmp=101)
A('v_cvt_pk_bf16_f32 v100, v100, v100','v_and_b32 v100, 0xffff0000, v100',f'v_mul_f32 v100, {hex(f2u(-1.4426950408889634))}, v100')
A('v_exp_f32 v100, v100','s_nop 0','v_add_f32 v100, 1.0, v100','v_rcp_f32 v100, v100','s_nop 0')
A('v_cvt_pk_bf16_f32 v100, v100, v100','v_and_b32 v100, 0xffff0000, v100')
A('v_sub_f32 v101, 1.0, v100','v_cvt_pk_bf16_f32 v101, v101, v101','v_and_b32 v101, 0xffff0000, v101')
A('v_lshrrev_b32 v9, 5, v0','v_lshlrev_b32 v9, 3, v9',f'v_add_u32 v9, {hex(GL)}, v9','ds_write_b64 v9, v[100:101]')
A('v_mov_b32 v9, 1',f'v_mov_b32 v10, {hex(GF)}','ds_write_b32 v10, v9')
reducer('X')

A('.p2align 6','L_W:')
A('s_sub_u32 s15, s3, 8')
A('v_lshlrev_b32 v3, 4, v1',f'v_mov_b32 v9, {hex(OOB)}','s_cmp_eq_u32 s15, 4','s_cselect_b32 s60, 0xff00ff00, 0','s_mov_b32 s61, s60')
A('v_cndmask_b32 v3, v3, v9, s[60:61]')
A(f'v_mul_u32_u24 v4, {4*1152}, v2','v_add_u32 v4, v4, v3')
A('v_mul_u32_u24 v5, 1152, v2','v_add_u32 v5, v5, v3','s_mov_b32 s62, 0','s_mov_b32 s63, -1','v_cndmask_b32 v5, v5, v9, s[62:63]')
A('s_lshl_b32 s8, s15, 8',f's_mul_i32 s10, s2, {18*1152}','s_add_u32 s10, s10, s8',f's_add_u32 s13, s10, {16*1152}')
A('s_lshl_b32 s12, s4, 4','s_add_u32 s12, s12, s7',f's_mul_i32 s12, s12, {16*1152}','s_add_u32 s12, s12, s8')
A('v_lshrrev_b32 v120, 5, v0','v_lshlrev_b32 v121, 3, v120',f'v_add_u32 v121, {hex(GL)}, v121')
A('v_mul_u32_u24 v120, 576, v120','v_lshl_add_u32 v120, v1, 3, v120','v_and_b32 v122, 1, v2','v_lshl_add_u32 v120, v122, 2, v120')
A('s_lshl_b32 s8, s15, 7','v_add_u32 v120, s8, v120')
if FLAY=='t': A('v_and_b32 v122, 15, v120','v_lshrrev_b32 v120, 4, v120','v_lshlrev_b32 v120, 14, v120','v_lshl_add_u32 v120, v122, 2, v120')
else: A('v_lshlrev_b32 v120, 2, v120')
A('v_cndmask_b32 v120, v120, v9, s[60:61]')
if PSW: A('s_and_b32 s14, s2, 7','s_lshl_b32 s14, s14, 5','s_lshr_b32 s8, s2, 3','s_add_u32 s14, s14, s8','s_lshl_b32 s14, s14, 6')
else: A('s_lshl_b32 s14, s2, 6')
if FLAY=='c': A('s_mul_i32 s14, s14, 72')
A(f's_add_u32 s14, s14, {hex(FP)}')
A('v_lshlrev_b32 v122, 4, v0',f'v_add_u32 v122, {hex(YH)}, v122','v_lshlrev_b32 v123, 3, v0',f'v_add_u32 v123, {hex(YO)}, v123')
A('s_waitcnt lgkmcnt(0)')
epoch_load()
srd(44,24,4096*1152); srd(48,30,4608*1152)
tag_ready()
A(*BB)
selectors(8,104)
thr=sum(t<<(6*i) for i,t in enumerate(THR))
A(f's_mov_b32 s8, {hex(thr)}','s_mul_i32 s9, s15, 6','s_lshr_b32 s8, s8, s9','s_and_b32 s64, s8, 63')
if PT:
    lds_spin(LD,8,104,'pt',sleep=4)
    A('buffer_load_dwordx4 v[76:79], v120, s[52:55], s14 offen')
lds_spin(GF,1,104,'gl',sleep=4)
A('ds_read_b64 v[72:73], v121')
lds_spin(LD,'s64',104,'wg',sleep=WGS)
if WPB<5:
    A(f's_cmp_lt_u32 s15, {WPB}','s_cbranch_scc1 L_Wnopb')
    lds_spin(QI if WQI else PB,1,104,'wpb',sleep=0)
    A('L_Wnopb:')
A('s_setprio 1')
for t in range(4): A(f'buffer_load_dwordx4 v[{16+4*t}:{19+4*t}], v4, s[48:51], s10 offen offset:{t*1152}{PW}')
A(f'buffer_load_dwordx4 v[32:35], v5, s[48:51], s13 offen{PW}')
for t in range(4): A(f'buffer_load_dwordx4 v[{36+4*t}:{39+4*t}], v4, s[44:47], s12 offen offset:{t*1152}{PW}')
stamp(15,'W')
lds_spin(YHF,1,104,'yh',sleep=1)
A('ds_read_b128 v[64:67], v122','s_waitcnt lgkmcnt(0)')
for t in range(5):
    a=104+4*(t&1)
    buildA(a, 64+t//2, t&1)
    A(f's_waitcnt vmcnt({8-t})','s_nop 0')
    mfma(116,a,16+4*t,t==0)
A('s_nop 7')
if WDK: A('v_mov_b32 v104, 1',f'v_mov_b32 v105, {hex(WD)}','s_mov_b64 exec, 1','ds_add_u32 v105, v104','s_mov_b64 exec, -1')
for r in range(4): A(f'v_mul_f32 v{116+r}, v73, v{116+r}')
A('s_setprio 3')
if FINE in (2,4):
    A('s_waitcnt vmcnt(0)'); stamp(8,'W')
lds_spin(YOF,1,104,'yo',sleep=0)
A('ds_read_b64 v[64:65], v123','s_waitcnt vmcnt(0) lgkmcnt(0)')
if not FINE: stamp(8,'W')
for t in range(4):
    buildA(80+4*t, 64+t//2, t&1)
    if t>0: mfma(112,80+4*(t-1),36+4*(t-1),t==1)
A('s_nop 0')
mfma(112,92,48,False)
A('s_nop 7')
for r in range(4): A(f'v_fma_f32 v{112+r}, v72, v{112+r}, v{116+r}')
for r in range(4): A(f'v_bfi_b32 v{112+r}, s41, v7, v{112+r}')
A('buffer_store_dwordx4 v[112:115], v120, s[52:55], s14 offen sc1')
stamp(9,'W')
A(f's_cmp_ge_u32 s2, {NRED}','s_cbranch_scc1 L_Wend')
if ACK: A('s_waitcnt vmcnt(0)')
A('s_barrier','L_Wend:')
flush_stamps('W')
A('L_end:','s_endpgm','L_code_end:')
A('.section .rodata,"a"','.p2align 6',f'.amdhsa_kernel {KNAME}')
A('  .amdhsa_next_free_vgpr 128','  .amdhsa_next_free_sgpr 102','  .amdhsa_accum_offset 128')
A('  .amdhsa_group_segment_fixed_size 0','  .amdhsa_kernarg_size 96','  .amdhsa_user_sgpr_count 2','  .amdhsa_user_sgpr_kernarg_segment_ptr 1','  .amdhsa_system_sgpr_workgroup_id_x 1')
A('  .amdhsa_float_denorm_mode_32 3','.end_amdhsa_kernel')
import subprocess, re, os
def emit(nl):
    t='\n'.join(L)+'\n'
    return t.replace('PFSTEP',hex(0x100+0) if nl is None else f'{(nl+31)//32:#x}').replace('NLINES',hex(0x100) if nl is None else f'{nl:#x}')
def size_of(txt):
    open(out+'.tmp.s','w').write(txt)
    subprocess.run(['clang','-x','assembler','-target','amdgcn-amd-amdhsa','-mcpu=gfx950','-c',out+'.tmp.s','-o',out+'.tmp.o'],check=True)
    o=subprocess.run(['llvm-readelf','-S',out+'.tmp.o'],capture_output=True,text=True).stdout
    os.remove(out+'.tmp.s'); os.remove(out+'.tmp.o')
    m=re.search(r'\.text\s+PROGBITS\s+\w+\s+\w+\s+(\w+)',o)
    return int(m.group(1),16)
sz=size_of(emit(None)); nl=sz//128
txt=emit(nl); sz2=size_of(txt); assert nl*128<=sz2, (sz,sz2)
open(out,'w').write(txt)
print('code bytes',sz2,end=' ')
print('lines',len(L),'lds',LDS,'ws end',hex(WS_END))
```

```python
import sys, struct
KNAME='gated_mix__sliding_block_cached__dense_activation_relu__decode_kernel'
opts=dict(a.split('=') for a in sys.argv[2:])
out=sys.argv[1]
def I(n,d): return int(opts.get(n,d))
STAMPS=I('stamps',0); PROBE=I('probe',-1); PMUL=I('pmul',2); FINE=I('fine',0)
SPIN=I('spin',1<<17); GSPIN=I('gspin',1<<17); WIN=I('win',32)
THR=[int(x) for x in opts.get('thr','26,29,28,28,28').split(',')]
RP=opts.get('ramp','20').split(',')
RAMPC={int(x.split(':')[0]):int(x.split(':')[1]) for x in RP[:-1]}; RAMPN=int(RP[-1])
SLP=I('slp',1); WIN2=I('win2',0); N2=I('n2',64); FLD=opts.get('fld','sc1').replace('+',' '); FSLP=I('fslp',0); FLAY=opts.get('flay','c'); FDL=I('fdl',0); PR=I('pr',1); PSL=I('psl',6); ACK=I('ack',1); WPB=I('wpb',2); CPF=I('cpf',24); CSZ=I('csz',0); SPEC=I('spec',1); WGS=I('wgs',2); RND=I('rnd',1); PTO=I('pto',0); QB=I('qb',4); WQI=I('wqi',1); OCS=I('ocs',0); DV=I('dv',0); DVT=I('dvt',21); B0=I('b0',0); PIPE=I('pipe',0); PGAP=I('pgap',0); CG=I('cg',1); FAST=I('fast',1); NOQ=I('noq',0); NOH=I('noh',0); QFAST=I('qfast',0); WDK=I('wdk',0); HTH=I('hth',20); PSW=I('psw',1); QSL=I('qsl',4); PT=I('pt',0); NOST=I('nostore',0); NOPOLL=I('nopoll',0)
NRED=72
def pol(n):
    p=opts.get(n,'nt').replace('+',' ')
    return '' if p=='none' else ' '+p
PKV=pol('pkv'); PW=pol('pw')
def f2u(f): return struct.unpack('<I',struct.pack('<f',f))[0]
EPOCH=0x0
QP=0x1000
OP=QP+0x40000
HP=OP+0x80000
FP=HP+7*2*4608*4
QA=FP+256*4608
FL=QA+0x40000
WS_END=FL+256*128
WS_SIZE=0x10000000 if STAMPS else WS_END
STAMP_OFF=0x8000000
OOB=0x7f000000
VL=0x10000; SB=0x20000
QL=SB+0x000; PL=SB+0x200; ML=SB+0x600; QF=SB+0x640; PF=SB+0x644; OC=SB+0x648; FC=SB+0x64c; LD=SB+0x650; CR=SB+0x654; YHF=SB+0x658; YOF=SB+0x65c; WD=SB+0x660; PB=SB+0x664; QI=SB+0x668
GL=SB+0x680; GF=SB+0x690; OACC=SB+0x800; FSL=SB+0x1800; STL=SB+0x1A00; YH=SB+0x1C00; YO=SB+0x2000
LDS=SB+0x2200
SC=0.08838834764831845*1.4426950408889634
L=[]
def A(*ss):
    for s in ss:
        if NOST and s.startswith('buffer_store') and s.endswith(' sc1'): s='s_nop 0'
        if NOPOLL and s.startswith('buffer_load') and s.endswith(' sc1'): s='s_nop 0'
        L.append(s)
lab=[0]
def newlab(p):
    lab[0]+=1; return f'L_{p}{lab[0]}'
FIRST={'C':7 if FINE else 4,'L':2,'Q':0,'H':1,'X':3,'W':11 if FINE==2 else (12 if FINE==4 else 8)}
def srd(d,p,n):
    A(f's_mov_b32 s{d}, s{p}', f's_mov_b32 s{d+1}, s{p+1}', f's_mov_b32 s{d+2}, {hex(n)}', f's_mov_b32 s{d+3}, 0x20000')
stamp_regs={}
CUR=['']
def stamp(k, role):
    if FINE==5 and not (k in (9,) or (role=='L' and k in (12,13))): return
    if FINE in (3,4) and k in (4,5,13,15) and role!='Q': return
    if PROBE==k:
        sk=newlab('pk')
        A(f's_cmp_lg_u32 s3, {FIRST[role]}', f's_cbranch_scc1 {sk}')
        A('s_memrealtime s[84:85]','s_waitcnt lgkmcnt(0)','v_mov_b32 v30, s84',f'v_mov_b32 v31, {STL}','ds_write_b32 v31, v30','s_waitcnt lgkmcnt(0)')
        A(f'{sk}:')
    if not STAMPS or k>=16: return
    lst=stamp_regs.setdefault(role,[])
    i=len(lst); lst.append(k); assert i<8
    A(f's_memrealtime s[{84+2*i}:{85+2*i}]')
def stamp_now(k):
    if not STAMPS: return
    if FINE==5 and k==6: return
    A('s_memrealtime s[80:81]','s_waitcnt lgkmcnt(0)','v_mov_b32 v20, s80','v_mov_b32 v21, s81','v_mov_b32 v22, 0')
    A('s_lshl_b32 s8, s2, 7', f's_add_u32 s8, s8, {hex(STAMP_OFF)}')
    A(f'buffer_store_dwordx2 v[20:21], v22, s[52:55], s8 offen offset:{8*k}')
S2=[]
def stamp_now2(k):
    if not STAMPS or FINE==5: return
    A(f's_memrealtime s[{96+2*len(S2)}:{97+2*len(S2)}]'); S2.append(k)
def stamp_flush2():
    if not S2: return
    A('s_waitcnt lgkmcnt(0)','v_mov_b32 v22, 0','s_lshl_b32 s8, s2, 7', f's_add_u32 s8, s8, {hex(STAMP_OFF)}')
    for i,k in enumerate(S2): A(f'v_mov_b32 v20, s{96+2*i}',f'v_mov_b32 v21, s{97+2*i}',f'buffer_store_dwordx2 v[20:21], v22, s[52:55], s8 offen offset:{8*k}','s_nop 1')
def flush_stamps(role):
    if not STAMPS: return
    lst=stamp_regs.get(role,[])
    skip=newlab('nost')
    A('s_mov_b64 exec, -1', f's_cmp_lg_u32 s3, {FIRST[role]}', f's_cbranch_scc1 {skip}', 's_waitcnt lgkmcnt(0)')
    A('s_lshl_b32 s8, s2, 7', f's_add_u32 s8, s8, {hex(STAMP_OFF)}', 'v_mov_b32 v3, 0')
    for i,k in enumerate(lst):
        A(f'v_mov_b32 v4, s{84+2*i}', f'v_mov_b32 v5, s{85+2*i}', f'buffer_store_dwordx2 v[4:5], v3, s[52:55], s8 offen offset:{k*8}', 's_waitcnt vmcnt(0)')
    A(f'{skip}:')
def epoch_load():
    A(f's_load_dword s40, s[38:39], {EPOCH}')
    srd(52,38,WS_SIZE)
    A('s_mov_b32 s41, 0xfff')
def tag_ready():
    A('s_waitcnt lgkmcnt(0)','s_add_u32 s42, s40, 1','s_and_b32 s40, s42, s41','v_mov_b32 v7, s40')
def selectors(base, tmp):
    A(f'v_mov_b32 v{tmp}, 0x0c0c0100', f'v_mov_b32 v{tmp+1}, 0x01000c0c', 's_mov_b32 s60, 0xaaaaaaaa', 's_mov_b32 s61, 0xaaaaaaaa')
    A(f'v_cndmask_b32 v{tmp}, v{tmp}, v{tmp+1}, s[60:61]')
    A(f'v_mov_b32 v{tmp+1}, 0x0c0c0302', f'v_mov_b32 v{tmp+2}, 0x03020c0c')
    A(f'v_cndmask_b32 v{tmp+1}, v{tmp+1}, v{tmp+2}, s[60:61]')
    A(f'v_mov_b32 v{tmp+2}, 0x0c0c0c0c')
    for d in range(4):
        m=(0x03030303<<(2*d))&0xffffffff
        A(f's_mov_b32 s60, {hex(m)}', f's_mov_b32 s61, {hex(m)}')
        A(f'v_cndmask_b32 v{base+d}, v{tmp+2}, v{tmp}, s[60:61]', f'v_cndmask_b32 v{base+4+d}, v{tmp+2}, v{tmp+1}, s[60:61]')
def buildA(dst, src, odd, sel=8):
    for d in range(4): A(f'v_perm_b32 v{dst+d}, v{src}, v{src}, v{sel+(4 if odd else 0)+d}')
def mfma(d,a,b,first):
    c='0' if first else f'v[{d}:{d+3}]'
    A(f'v_mfma_f32_16x16x32_bf16 v[{d}:{d+3}], v[{a}:{a+3}], v[{b}:{b+3}], {c}')
def lds_spin(addr, val, vt, name, sleep=1):
    l=newlab(name); d=newlab(name+'d')
    A(f'v_mov_b32 v{vt}, {hex(addr)}', f's_mov_b32 s62, {SPIN}', f'{l}:', f'ds_read_b32 v{vt+1}, v{vt}', 's_sub_u32 s62, s62, 1', 's_waitcnt lgkmcnt(0)')
    A(f'v_readfirstlane_b32 s63, v{vt+1}', f's_cbranch_scc1 {d}', f's_cmp_ge_u32 s63, {val}')
    if sleep: A(f's_cbranch_scc1 {d}', f's_sleep {sleep*SLP}', f's_branch {l}')
    else: A(f's_cbranch_scc0 {l}')
    A(f'{d}:')
def mpoll(loads, name, chk, init='-1', slp=0):
    lp=newlab(name); go=newlab(name+'go')
    for i,_ in enumerate(loads): A(f's_mov_b64 s[{72+2*i}:{73+2*i}], {init}')
    A(f's_mov_b32 s62, {GSPIN}', f'{lp}:')
    if slp: A(f's_sleep {slp}')
    for i,(d,n,t) in enumerate(loads):
        sk=newlab('sk')
        A(f's_mov_b64 exec, s[{72+2*i}:{73+2*i}]', f's_cbranch_execz {sk}', t, f'{sk}:')
    A('s_sub_u32 s62, s62, 1', f's_cbranch_scc1 {go}', 's_waitcnt vmcnt(0)')
    if FINE==5 and name=='fp' and CUR[0]=='L':
        A(f's_cmp_lg_u32 s62, {GSPIN-1}','s_cbranch_scc1 L_nf5'); stamp(13,'L'); A('L_nf5:')
    if FINE==4 and name=='op':
        A(f's_cmp_lg_u32 s62, {GSPIN-1}','s_cbranch_scc1 L_nf4'); stamp(5,'Q'); A('L_nf4:')
    for i,(d,n,t) in enumerate(loads):
        A(f's_mov_b64 exec, s[{72+2*i}:{73+2*i}]')
        for k in range(n): A(f'v_xor_b32 v{d+k}, v7, v{d+k}')
        if n==4: A(f'v_or3_b32 v{chk}, v{d}, v{d+1}, v{d+2}', f'v_or_b32 v{chk}, v{chk}, v{d+3}', f'v_and_b32 v{chk}, s41, v{chk}')
        else: A(f'v_and_b32 v{chk}, s41, v{d}')
        A(f'v_cmp_ne_u32 s[{72+2*i}:{73+2*i}], 0, v{chk}')
    A('s_nop 0', 's_or_b64 s[76:77], s[72:73], s[74:75]', f's_cbranch_scc1 {lp}', f'{go}:', 's_mov_b64 exec, -1', 's_waitcnt vmcnt(0)')
def ppoll(res, stage, addr, name, chk, depth):
    go=newlab(name+'go'); lp=newlab(name)
    n=len(res)
    def issue(k, first=False):
        for i in range(n):
            if first: A('s_mov_b64 exec, -1')
            else: A(f's_or_b64 exec, s[{72+2*i}:{73+2*i}], 1')
            A(f'buffer_load_dwordx4 v[{stage[k][i]}:{stage[k][i]+3}], {addr[i]}')
    def check(k):
        for i in range(n):
            d=res[i]
            A(f's_mov_b64 exec, s[{72+2*i}:{73+2*i}]')
            for q in range(4): A(f'v_xor_b32 v{d+q}, v7, v{stage[k][i]+q}')
            A(f'v_or3_b32 v{chk}, v{d}, v{d+1}, v{d+2}', f'v_or_b32 v{chk}, v{chk}, v{d+3}', f'v_and_b32 v{chk}, s41, v{chk}', f'v_cmp_ne_u32 s[{72+2*i}:{73+2*i}], 0, v{chk}')
        A('s_nop 0','s_or_b64 s[76:77], s[72:73], s[74:75]',f's_cbranch_scc0 {go}')
    for i in range(n): A(f's_mov_b64 s[{72+2*i}:{73+2*i}], -1')
    A(f's_mov_b32 s62, {GSPIN}')
    issue(0,True)
    A('s_waitcnt vmcnt(0)'); check(0)
    for k in range(depth-1):
        issue(k)
        if PGAP: A(f's_sleep {PGAP}')
    A(f'{lp}:')
    for k in range(depth):
        issue((k+depth-1)%depth)
        A(f's_waitcnt vmcnt({n*(depth-1)})')
        check(k)
    A('s_sub_u32 s62, s62, 1',f's_cbranch_scc0 {lp}',f'{go}:','s_mov_b64 exec, -1')
DPP=' row_mask:0xf bank_mask:0xf'
def allreduce(op, regs, steps, tmp=None):
    n=len(regs); pad=max(0,2-(n-1))
    ctl={'x1':'quad_perm:[1,0,3,2]','x2':'quad_perm:[2,3,0,1]','hm':'row_half_mirror','m':'row_mirror','ror4':'row_ror:4','ror8':'row_ror:8'}
    for s in steps:
        if s in ctl:
            if pad: A(f's_nop {pad-1}')
            for r in regs: A(f'{op}_dpp v{r}, v{r}, v{r} {ctl[s]}{DPP}')
        else:
            ins='v_permlane16_swap_b32' if s=='r16' else 'v_permlane32_swap_b32'
            for i,r in enumerate(regs): A(f'v_mov_b32 v{tmp+i}, v{r}')
            A('s_nop 1')
            for i,r in enumerate(regs): A(f'{ins} v{r}, v{tmp+i}')
            A('s_nop 0')
            for i,r in enumerate(regs): A(f'{op} v{r}, v{r}, v{tmp+i}')
def pkadd(d,a,b):
    for k in (0,2): A(f'v_pk_add_f32 v[{d+k}:{d+k+1}], v[{a+k}:{a+k+1}], v[{b+k}:{b+k+1}]')
BB=('s_barrier',)

for c in """Fused decode step in one launch: out = g*attn(x)@wo + (1-g)*relu(x@w1)@w2, g = sigmoid(x.gate_w).
Kernarg: x, k_cache, v_cache, wq, wo, B_x (unused), w1, w2, gate_w, out, debug, ws (8-byte pointers).
256 workgroups (one per CU), wg = xcd(3b) | kvh&1 | batch | split(3b); 13 role-specialised waves:
  0 Q: 72x128 slab of wq -> q partial, gathers q    1 H: slab of w1 -> h partial, gathers h
  2 L: streams the 256-key K and V slices into LDS (windowed LDS-DMA)   3 X: gate, code prefetch
  4-7 C: QK^T, softmax (true running max), PV, publish o partial, gather + combine o
  8-12 W: 16 rows of wo + 18 rows of w2, one column block each -> output partial
  waves 0-7 of workgroups 0..71: sum the 256 output partials, 16 outputs per workgroup.
GEMVs use 16x16x32 bf16 MFMA with the vector spread on a diagonal A operand (weights stay row-major).
Hand-offs go through ws as 16-byte granules whose low mantissa bits carry a per-launch tag (epoch+1);
every reader verifies the tag of every word, so results do not depend on placement or stale ws data.
Generated by gen/gen8.py.""".split('\n'): A('; '+c)
A(f'; @launch grid=(256,1,1) block=(832,1,1) lds={LDS}')
A('.amdgcn_target "amdgcn-amd-amdhsa--gfx950"','.text',f'.globl {KNAME}','.p2align 8',f'.type {KNAME},@function',f'{KNAME}:')
if STAMPS or PROBE>=0: A('s_memrealtime s[82:83]')
A('s_cmp_ge_u32 s2, 256','s_cbranch_scc1 L_end')
A('s_load_dwordx16 s[16:31], s[0:1], 0','s_load_dwordx8 s[32:39], s[0:1], 64')
A('v_lshrrev_b32 v1, 6, v0','v_and_b32 v0, 63, v0','s_and_b32 s4, s2, 7','v_readfirstlane_b32 s3, v1')
A('s_lshl_b32 s4, s4, 1','s_bfe_u32 s5, s2, 0x10003','s_add_u32 s4, s4, s5')
A('s_bfe_u32 s5, s2, 0x10004','s_lshr_b32 s6, s2, 5','s_lshr_b32 s7, s2, 4')
A('v_and_b32 v1, 15, v0','v_lshrrev_b32 v2, 4, v0')
if CPF:
    A('s_cmp_lg_u32 s3, 3','s_cbranch_scc1 L_nopf')
    A('s_getpc_b64 s[10:11]','s_and_b32 s10, s10, 0xffffff00','s_lshr_b32 s8, s2, 3','s_mul_i32 s8, s8, PFSTEP','v_add_u32 v3, s8, v0')
    A('v_subrev_u32 v4, NLINES, v3','v_min_u32 v3, v3, v4','v_lshlrev_b32 v3, 7, v3',f's_mov_b32 exec_lo, {hex(((1<<CPF)-1)&0xffffffff)}',f's_mov_b32 exec_hi, {hex(((1<<CPF)-1)>>32)}','global_load_dword v127, v3, s[10:11]','s_mov_b64 exec, -1','L_nopf:')
A('s_cmp_gt_u32 s3, 1','s_cbranch_scc1 L_disp')
QPOS=len(L)

RED_EMITTED=[0]
def reducer(role):
    CUR[0]=role
    if not STAMPS:
        if RED_EMITTED[0]:
            A('s_branch L_red'); return
        RED_EMITTED[0]=1; A('L_red:')
    fin=newlab('fin')
    A(f's_cmp_ge_u32 s2, {NRED}', f's_cbranch_scc1 {fin}', 's_setprio 0')
    A('v_lshlrev_b32 v5, 4, v0','v_and_b32 v6, 3, v0')
    if FLAY=='t': A('s_lshl_b32 s8, s2, 14','s_lshl_b32 s9, s3, 11','s_add_u32 s8, s8, s9',f's_add_u32 s8, s8, {hex(FP)}','s_add_u32 s11, s8, 1024')
    else: A('v_lshrrev_b32 v5, 2, v0','v_mul_u32_u24 v5, 4608, v5','v_lshl_add_u32 v5, v6, 4, v5',f's_mul_i32 s8, s3, {32*4608}','s_lshl_b32 s9, s2, 6','s_add_u32 s8, s8, s9',f's_add_u32 s8, s8, {hex(FP)}',f's_add_u32 s11, s8, {16*4608}')
    A('v_bfe_u32 v8, v0, 2, 2','v_lshl_add_u32 v8, v6, 2, v8','v_lshlrev_b32 v8, 5, v8','s_lshl_b32 s10, s3, 2',f's_add_u32 s10, s10, {hex(FSL)}','v_add_u32 v8, s10, v8')
    A('v_mov_b32 v11, 1',f'v_mov_b32 v10, {hex(FC)}','v_lshlrev_b32 v12, 5, v0',f'v_add_u32 v12, {hex(FSL)}, v12','v_lshlrev_b32 v13, 1, v0')
    srd(44,34,2304)
    A('s_lshl_b32 s10, s2, 5')
    A('s_mov_b32 s64, 0x00f000f0','s_mov_b32 s65, 0x00f000f0','s_mov_b32 s66, 0x0f000f00','s_mov_b32 s67, 0x0f000f00','s_mov_b32 s68, 0xf000f000','s_mov_b32 s69, 0xf000f000')
    A('s_barrier')
    if FDL: A(f's_sleep {FDL}')
    if role=='L' and FINE==5: stamp(12,'L')
    if PIPE: ppoll([16,20],[[32+8*k,36+8*k] for k in range(PIPE)],[f'v5, s[52:55], s8 offen {FLD}',f'v5, s[52:55], s11 offen {FLD}'],'fp',9,PIPE)
    else: mpoll([(16,4,f'buffer_load_dwordx4 v[16:19], v5, s[52:55], s8 offen {FLD}'),(20,4,f'buffer_load_dwordx4 v[20:23], v5, s[52:55], s11 offen {FLD}')],'fp',9,slp=FSLP)
    if role=='C': stamp(10, role)
    if FINE==5:
        A('s_memrealtime s[80:81]','s_waitcnt lgkmcnt(0)','v_mov_b32 v24, s80','v_mov_b32 v25, s81','v_mov_b32 v26, 0','s_lshl_b32 s8, s2, 7', f's_add_u32 s8, s8, {hex(STAMP_OFF+8)}','s_lshl_b32 s9, s3, 3','s_add_u32 s8, s8, s9','buffer_store_dwordx2 v[24:25], v26, s[52:55], s8 offen')
    for k in range(4): A(f'v_add_f32 v{16+k}, v{16+k}, v{20+k}')
    allreduce('v_add_f32',[16,17,18,19],['ror4','ror8'])
    A('v_cndmask_b32 v16, v16, v17, s[64:65]','v_cndmask_b32 v16, v16, v18, s[66:67]','v_cndmask_b32 v16, v16, v19, s[68:69]')
    allreduce('v_add_f32',[16],['r16','r32'],tmp=17)
    A('s_mov_b64 exec, 0xffff','ds_write_b32 v8, v16','s_mov_b64 exec, 1','ds_add_rtn_u32 v9, v10, v11','s_mov_b64 exec, 0xffff')
    if SPEC: A('ds_read_b128 v[16:19], v12','ds_read_b128 v[20:23], v12 offset:16','s_waitcnt lgkmcnt(2)')
    else: A('s_waitcnt lgkmcnt(0)')
    A('v_readfirstlane_b32 s8, v9','s_cmp_lg_u32 s8, 7',f's_cbranch_scc1 {fin}')
    if not SPEC: A('ds_read_b128 v[16:19], v12','ds_read_b128 v[20:23], v12 offset:16')
    A('s_waitcnt lgkmcnt(0)')
    pkadd(16,16,20)
    A('v_pk_add_f32 v[16:17], v[16:17], v[18:19]','v_add_f32 v16, v16, v17','v_cvt_pk_bf16_f32 v16, v16, v16')
    A('buffer_store_short v16, v13, s[44:47], s10 offen')
    stamp_now(11)
    A('s_mov_b64 exec, 1','s_cmp_lg_u32 s2, 0',f's_cbranch_scc1 {fin}')
    if PROBE>=0:
        pl=newlab('pl')
        A('s_memrealtime s[80:81]',f'v_mov_b32 v31, {STL}','ds_read_b32 v30, v31','s_waitcnt lgkmcnt(0)','v_readfirstlane_b32 s84, v30')
        if PROBE==11: A('s_mov_b32 s84, s80')
        A('s_sub_u32 s84, s84, s82','s_min_u32 s84, s84, 10000',f's_mul_i32 s84, s84, {PMUL}')
        A(f'{pl}:','s_memrealtime s[86:87]','s_waitcnt lgkmcnt(0)','s_sub_u32 s86, s86, s80','s_cmp_lt_u32 s86, s84',f's_cbranch_scc1 {pl}')
    A('v_mov_b32 v9, s42','v_mov_b32 v8, 0',f'buffer_store_dword v9, v8, s[52:55], 0 offen offset:{EPOCH}')
    A(f'{fin}:')
    flush_stamps(role)
    A('s_endpgm')

def gemv_loop(n, credits):
    A(f's_waitcnt vmcnt({n})')
    for t in range(n):
        a=(28,120)[t&1]
        buildA(a, 16+t//2, t&1)
        A(f's_waitcnt vmcnt({n-1-t})')
        A('s_memrealtime s[98:99]' if (FINE==3 and t==0) else 's_nop 0')
        mfma(124,a,32+4*t,t==0)
        if t in credits: A('s_mov_b64 exec, 1','ds_add_u32 v6, v3','s_mov_b64 exec, -1')
    A('s_nop 7')
    for r in range(4): A(f'v_bfi_b32 v{124+r}, s56, v7, v{124+r}')
    A('buffer_store_dwordx4 v[124:127], v5, s[52:55], s13 offen sc1')

A('s_setprio 3')
A('s_mul_i32 s9, s2, 293','s_lshr_b32 s9, s9, 11','s_mul_i32 s10, s9, 7','s_sub_u32 s10, s2, s10')
A('s_mul_i32 s11, s10, 88','s_mul_i32 s12, s10, 80','s_add_u32 s12, s12, 16','s_min_u32 s11, s11, s12')
A('s_cmp_lt_u32 s10, 2','s_cselect_b32 s14, 22, 20',f's_cselect_b32 s57, 0, {hex(OOB)}')
A('s_lshl_b32 s15, s9, 8','s_cmp_ge_u32 s2, 252',f's_cselect_b32 s15, {hex(OOB)}, s15')
A('s_lshr_b32 s12, s7, 1','s_mul_i32 s13, s12, 72','s_and_b32 s8, s7, 1','s_lshl_b32 s58, s4, 1','s_add_u32 s58, s58, s8','s_lshl_b32 s59, s58, 8')
A('s_lshl_b32 s43, s3, 10','s_add_u32 s43, s43, 8192')
A('s_cmp_eq_u32 s3, 0','s_cselect_b32 s11, s13, s11','s_cselect_b32 s14, 18, s14','s_cselect_b32 s15, s59, s15',f's_cselect_b32 s56, {hex(OOB)}, 0','s_cselect_b32 s57, 0, s57')
A('s_mul_i32 s8, s14, s43','v_mul_u32_u24 v3, s8, v2','v_lshl_add_u32 v3, v1, 4, v3')
A('v_bfe_u32 v4, v0, 3, 1','v_mul_u32_u24 v4, 1152, v4','s_lshl_b32 s8, s14, 1','v_mul_u32_u24 v5, s8, v2','v_add_u32 v4, v4, v5')
A('s_lshl_b32 s8, s11, 1','s_mul_i32 s11, s11, s43','s_add_u32 s11, s11, s15','s_mul_i32 s50, s43, 576','s_mov_b32 s51, 0x20000','s_mov_b32 s46, 2304','s_mov_b32 s47, 0x20000','s_cmp_eq_u32 s3, 0')
A('s_waitcnt lgkmcnt(0)')
if FINE==3: A('s_memrealtime s[94:95]')
A(f's_load_dword s40, s[38:39], {EPOCH}')
A('s_mov_b32 s44, s16','s_mov_b32 s45, s17','s_cselect_b32 s48, s22, s28','s_cselect_b32 s49, s23, s29')
if B0: A('s_cbranch_scc1 L_nb0','s_barrier','L_nb0:')
stamp(22,'Q')
A('buffer_load_dwordx4 v[16:19], v4, s[44:47], s8 offen','buffer_load_dwordx4 v[20:23], v4, s[44:47], s8 offen offset:16','buffer_load_dwordx3 v[24:26], v4, s[44:47], s8 offen offset:32')
for t in range(22):
    A(f'buffer_load_dwordx4 v[{32+4*t}:{35+4*t}], v3, s[48:51], s11 offen{PW}')
    if t<21: A('s_add_u32 s11, s11, s43')
    if t==17: A('s_add_u32 s11, s11, s56')
    if t==19: A('s_add_u32 s11, s11, s57')
if B0: A('s_cmp_lg_u32 s3, 0','s_cbranch_scc1 L_nb1','s_barrier','L_nb1:')
if FINE==3: A('s_memrealtime s[96:97]')
stamp(21,'Q')
A('s_barrier')
A('s_branch L_QH2')
A('L_disp:')
A('s_cmp_eq_u32 s3, 2','s_cbranch_scc1 L_L')
A('v_mov_b32 v4, 0','v_lshlrev_b32 v5, 2, v0',f'v_add_u32 v5, {hex(ML)}, v5','ds_write_b32 v5, v4','s_waitcnt lgkmcnt(0)')
epoch_load()
A('s_barrier')
A('s_cmp_eq_u32 s3, 3','s_cbranch_scc1 L_X','s_cmp_ge_u32 s3, 8','s_cbranch_scc1 L_W','s_branch L_C')
A('L_L:','s_setprio 3')
for u in range(4): A(f'v_add_u32 v8, {4*u}, v2','v_xor_b32 v8, v8, v1','v_lshlrev_b32 v8, 4, v8',f'v_lshl_add_u32 v{12+u}, v2, 8, v8')
A('s_lshl_b32 s12, s5, 4','s_add_u32 s12, s12, s4','s_lshl_b32 s12, s12, 21','s_lshl_b32 s13, s6, 16','s_add_u32 s12, s12, s13','s_add_u32 s12, s12, 0x180000')
A('s_lshr_b32 s13, s2, 3','s_add_u32 s13, s13, s2','s_lshl_b32 s13, s13, 12','s_mov_b32 s46, 0x4000000','s_mov_b32 s47, 0x20000','s_mov_b32 s50, 0x4000000','s_mov_b32 s51, 0x20000')
A('v_lshlrev_b32 v3, 4, v0',f'v_mov_b32 v9, {hex(LD)}','s_waitcnt lgkmcnt(0)')
A('s_mov_b32 s44, s18','s_mov_b32 s45, s19','s_mov_b32 s48, s20','s_mov_b32 s49, s21')
epoch_load()
A('s_barrier')
stamp(20,'L')
n=0; sig=0
def signal(upto):
    global sig
    if upto>sig:
        sig=upto
        A(f'v_mov_b32 v10, {upto}','ds_write_b32 v9, v10')
NT=32
for i in range(NT):
    for u in range(4):
        if n in RAMPC: lds_spin(CR,RAMPC[n],16,'cr',sleep=0)
        if n==RAMPN:
            tag_ready(); A('s_barrier')
        if u==0: A('s_and_b32 s14, s13, 0xf000','s_add_u32 s14, s14, s12','s_add_u32 s13, s13, 0x1000',f's_mov_b32 m0, {hex(i*4096)}')
        w = RAMPN if n==RAMPN else (WIN2 if (WIN2 and n>=N2) else WIN)
        if n>=w:
            A(f's_waitcnt vmcnt({w-1})')
            signal((n-w+1)//4)
        elif u==0: A('s_nop 0')
        if i<16: A(f'buffer_load_dwordx4 v{12+u}, s[44:47], s14 offen offset:{u*1024}{PKV} lds')
        else: A(f'buffer_load_dwordx4 v3, s[48:51], s14 offen offset:{u*1024}{PKV} lds')
        n+=1
stamp(14,'L')
while sig<NT:
    A(f's_waitcnt vmcnt({4*NT-4*(sig+1)})')
    signal(sig+1)
stamp(3,'L')
LRED=len(L)
A('s_branch L_Lred')
A('.p2align 6','L_QH2:')
srd(52,38,WS_SIZE); A('s_mov_b32 s41, 0xfff')
A(f's_mul_i32 s13, s10, {2*4608*4}','s_lshl_b32 s8, s15, 1','s_add_u32 s13, s13, s8',f's_add_u32 s13, s13, {hex(HP)}')
A('s_lshl_b32 s8, s4, 14','s_lshl_b32 s9, s12, 10','s_add_u32 s8, s8, s9','s_and_b32 s9, s7, 1','s_lshl_b32 s9, s9, 9','s_add_u32 s8, s8, s9',f's_add_u32 s8, s8, {hex(QP)}')
A('s_cmp_ge_u32 s2, 252',f's_cselect_b32 s13, {hex(OOB)}, s13','s_cmp_eq_u32 s3, 0','s_cselect_b32 s13, s8, s13','s_mul_i32 s8, s3, 10240','s_add_u32 s8, s8, 8192')
A('v_lshrrev_b32 v5, 1, v2','v_mul_u32_u24 v5, s8, v5','v_lshl_add_u32 v5, v1, 5, v5','v_and_b32 v6, 1, v2','v_lshl_add_u32 v5, v6, 4, v5')
tag_ready()
A('s_barrier')
selectors(8, 120)
A(f'v_mov_b32 v6, {hex(CR)}','v_mov_b32 v3, 1','s_cmp_eq_u32 s3, 0',f's_cselect_b32 s56, {hex((1<<QB)-1)}, s41','v_and_b32 v27, s56, v7')
gemv_loop(22,(9,17))
A('s_cmp_lg_u32 s3, 0','s_cbranch_scc1 L_H2')
A('s_getreg_b32 s15, hwreg(HW_REG_XCC_ID, 0, 3)','s_lshl_b32 s8, s42, 3','s_or_b32 s15, s15, s8')
A('v_mov_b32 v25, v27','v_lshlrev_b32 v26, 7, v0','v_mov_b32 v27, s15','s_lshl_b32 s14, s4, 11','s_lshl_b32 s8, s7, 2','s_add_u32 s14, s14, s8',f's_add_u32 s14, s14, {hex(FL)}')
A('s_mov_b64 exec, 0xffff','buffer_store_dword v27, v26, s[52:55], s14 offen sc1','s_mov_b64 exec, -1')
stamp(1,'Q')
if FINE==3:
    A('s_waitcnt lgkmcnt(0)','s_lshl_b32 s8, s2, 7', f's_add_u32 s8, s8, {hex(STAMP_OFF)}','v_mov_b32 v22, 0')
    for sr,k in ((82,4),(94,5),(96,13),(98,15)):
        A(f'v_mov_b32 v20, s{sr}',f'v_mov_b32 v21, s{sr+1}',f'buffer_store_dwordx2 v[20:21], v22, s[52:55], s8 offen offset:{8*k}','s_nop 1')
A('v_lshlrev_b32 v5, 4, v0')
A('s_lshl_b32 s13, s4, 1','s_add_u32 s13, s13, s5','s_lshl_b32 s13, s13, 13',f's_add_u32 s13, s13, {hex(QP)}','s_add_u32 s14, s13, 4096')
A('s_lshl_b32 s8, s4, 4','s_add_u32 s8, s8, s7','s_lshl_b32 s8, s8, 7',f's_add_u32 s8, s8, {hex(FL)}','s_add_u32 s46, s38, s8','s_addc_u32 s47, s39, 0')
A('s_mov_b32 s8, 1',f's_mov_b32 s62, {GSPIN}','L_qprobe:',f's_sleep {QSL}','s_load_dwordx16 s[64:79], s[46:47], 0 glc','s_sub_u32 s62, s62, 1','s_cbranch_scc1 L_qfetch0','s_waitcnt lgkmcnt(0)')
A('s_xor_b32 s8, s64, s15')
for p in range(1,16): A(f's_xor_b32 s9, s{64+p}, s15','s_or_b32 s8, s8, s9')
A('s_lshr_b32 s9, s8, 3')
A('s_cbranch_scc1 L_qprobe','L_qfetch0:',f's_mov_b32 s62, {GSPIN}','s_waitcnt lgkmcnt(0)')
if QFAST: A('s_cmp_eq_u32 s8, 0',f's_cselect_b32 s9, {QA-QP}, 0','s_add_u32 s13, s13, s9','s_add_u32 s14, s14, s9')
if FINE==1: stamp(8,'Q')
A('L_qfetch:')
if NOQ: A('s_branch L_qgo')
for r in range(8): A(f'buffer_load_dwordx4 v[{32+4*r}:{35+4*r}], v5, s[52:55], s{13 if r<4 else 14} offen offset:{(r&3)*1024} sc1')
A('s_sub_u32 s62, s62, 1','s_cbranch_scc1 L_qgo','v_mov_b32 v6, 0')
for r in range(8):
    A(f's_waitcnt vmcnt({7-r})')
    for k in range(4): A(f'v_xor_b32 v{32+4*r+k}, v25, v{32+4*r+k}')
    A(f'v_or3_b32 v6, v6, v{32+4*r}, v{33+4*r}',f'v_or3_b32 v6, v6, v{34+4*r}, v{35+4*r}')
A('v_and_b32 v6, s56, v6','v_cmp_ne_u32 vcc, 0, v6','s_cbranch_vccnz L_qfetch','L_qgo:','s_waitcnt vmcnt(0)')
for r in (0,2,4,6): pkadd(32+4*r,32+4*r,36+4*r)
pkadd(32,32,40); pkadd(48,48,56); pkadd(32,32,48)
A('v_cvt_pk_bf16_f32 v32, v32, v33','v_cvt_pk_bf16_f32 v33, v34, v35','v_lshlrev_b32 v5, 3, v0',f'v_add_u32 v5, {hex(QL)}, v5','ds_write_b64 v5, v[32:33]')
A('s_cmp_eq_u32 s8, 0',f's_cselect_b32 s9, {1+FAST}, 1','v_mov_b32 v6, s9',f'v_mov_b32 v5, {hex(QF)}','ds_write_b32 v5, v6')
stamp(2,'Q')
if not CG:
    A('v_lshlrev_b32 v123, 11, v1','v_lshl_add_u32 v122, v2, 4, v123')
    A('s_lshl_b32 s43, s4, 15','s_lshl_b32 s8, s7, 7','s_add_u32 s43, s43, s8',f's_add_u32 s43, s43, {hex(OP)}')
    A('v_lshlrev_b32 v121, 3, v0',f'v_add_u32 v121, {hex(YO)}, v121',f'v_mov_b32 v120, {hex(YOF)}','v_mov_b32 v119, 1')
    lds_spin(PB,1,104,'oc',sleep=OCS)
    if WDK: lds_spin(WD,WDK,104,'wd',sleep=0)
    if FINE==4: stamp(4,'Q')
    if PR:
        for k in range(PR):
            if k: A(f's_sleep {PSL}')
            A(f'buffer_load_dwordx4 v[{16+8*k}:{19+8*k}], v122, s[52:55], s43 offen sc1',f'buffer_load_dwordx4 v[{20+8*k}:{23+8*k}], v123, s[52:55], s43 offen offset:64 sc1')
        if WQI: A(f'ds_write_b32 v120, v119 offset:{QI-YOF}')
        for k in range(PR):
            A(f's_waitcnt vmcnt({2*(PR-1-k)})')
            for i in range(8): A(f'v_xor_b32 v{64+i}, v7, v{16+8*k+i}')
            A('v_or3_b32 v74, v64, v65, v66','v_or3_b32 v74, v74, v67, v68','v_or3_b32 v74, v74, v69, v70','v_or_b32 v74, v74, v71','v_and_b32 v74, s41, v74','v_cmp_ne_u32 vcc, 0, v74','s_cbranch_vccz L_odone')
    mpoll([(64,4,'buffer_load_dwordx4 v[64:67], v122, s[52:55], s43 offen sc1'),(68,4,'buffer_load_dwordx4 v[68:71], v123, s[52:55], s43 offen offset:64 sc1')],'op',74)
    A('L_odone:')
    if FINE==4:
        A(f's_sub_u32 s8, {GSPIN}, s62','s_mul_i32 s8, s8, 100','s_waitcnt lgkmcnt(0)','s_add_u32 s98, s82, s8','s_addc_u32 s99, s83, 0','s_lshl_b32 s8, s2, 7', f's_add_u32 s8, s8, {hex(STAMP_OFF)}','v_mov_b32 v22, 0','v_mov_b32 v20, s98','v_mov_b32 v21, s99','buffer_store_dwordx2 v[20:21], v22, s[52:55], s8 offen offset:120')
    stamp(7,'Q')
    allreduce('v_max_f32',[70],['x1','x2','hm'])
    A('v_sub_f32 v68, v68, v70','v_exp_f32 v68, v68','s_nop 0','v_mul_f32 v69, v68, v69')
    for k in range(4): A(f'v_mul_f32 v{64+k}, v68, v{64+k}')
    allreduce('v_add_f32',[69,64,65,66,67],['x1','x2','hm'])
    A('v_rcp_f32 v69, v69','s_nop 0')
    for k in range(4): A(f'v_mul_f32 v{64+k}, v69, v{64+k}')
    A('v_cvt_pk_bf16_f32 v64, v64, v65','v_cvt_pk_bf16_f32 v65, v66, v67','ds_write_b64 v121, v[64:65]','ds_write_b32 v120, v119')
reducer('Q')

A('.p2align 6')
A('L_H2:')
stamp(12,'H')
A('v_and_b32 v6, 7, v0','v_lshlrev_b32 v6, 1, v6','v_bfe_u32 v9, v0, 3, 1','v_add_u32 v6, v6, v9',f'v_mul_u32_u24 v6, {4608*4}, v6')
A('v_mov_b32 v9, v6','v_lshl_add_u32 v6, v2, 4, v6')
A('s_mul_i32 s11, s2, 72',f's_add_u32 s11, s11, {hex(HP)}','s_and_b32 s8, s2, 1','s_lshl_b32 s8, s8, 3','s_sub_u32 s12, s11, s8')
A('s_cmp_eq_u32 s8, 0','s_cselect_b32 s64, 0, -1','s_mov_b32 s65, s64','s_mov_b32 s66, 0xffff0000','s_mov_b32 s67, 0xffff0000')
A('v_lshlrev_b32 v121, 4, v0',f'v_add_u32 v121, {hex(YH)}, v121',f'v_mov_b32 v120, {hex(YHF)}','v_mov_b32 v119, 1')
for k in range(8): A(f'v_mov_b32 v{64+k}, 0')
A('s_mov_b32 s78, 0x7f7f7f7f','s_mov_b32 s79, 0x7f7f7f7f')
lds_spin(LD,HTH,104,'hl',sleep=4)
if not NOH: mpoll([(64,4,'buffer_load_dwordx4 v[64:67], v6, s[52:55], s11 offen sc1'),(68,4,'buffer_load_dwordx4 v[68:71], v9, s[52:55], s12 offen offset:64 sc1')],'hp',72,init='s[78:79]')
A('v_cndmask_b32 v68, v68, v70, s[64:65]','v_cndmask_b32 v69, v69, v71, s[64:65]','v_cndmask_b32 v68, v68, v69, s[66:67]','s_nop 0')
stamp(13,'H')
allreduce('v_add_f32',[64,65,66,67,68],['x1','x2','hm'])
for k in range(5): A(f'v_max_f32 v{64+k}, 0, v{64+k}')
A('v_cvt_pk_bf16_f32 v64, v64, v65','v_cvt_pk_bf16_f32 v65, v66, v67','v_cvt_pk_bf16_f32 v66, v68, v68','ds_write_b128 v121, v[64:67]','ds_write_b32 v120, v119')
reducer('H')

A('L_Lred:')
reducer('L')
A('.p2align 6','L_C:','s_setprio 2','s_sub_u32 s15, s3, 4')
A('v_lshlrev_b32 v122, 4, v0',f'v_add_u32 v122, {hex(OACC)}, v122','s_lshl_b32 s8, s15, 10','v_add_u32 v125, s8, v122')
tag_ready()
A(*BB)
selectors(8,104)
A('s_lshl_b32 s8, s15, 12')
for ks in range(4): A(f'v_add_u32 v4, {4*ks}, v2','v_xor_b32 v4, v4, v1','v_lshlrev_b32 v4, 4, v4','v_lshl_add_u32 v4, v1, 8, v4',f'v_add_u32 v{116+ks}, s8, v4')
A('v_lshlrev_b32 v3, 4, v0',f's_add_u32 s9, s8, {hex(VL)}','v_add_u32 v3, s9, v3')
A('v_and_b32 v5, 1, v0','v_lshlrev_b32 v5, 8, v5','v_lshl_add_u32 v5, v2, 4, v5',f'v_add_u32 v5, {hex(QL)}, v5')
A('s_lshl_b32 s8, s15, 8',f's_add_u32 s8, s8, {hex(PL)}')
A('v_and_b32 v6, 3, v0','v_lshlrev_b32 v6, 5, v6','v_lshrrev_b32 v4, 2, v0','v_lshl_add_u32 v6, v4, 1, v6','v_add_u32 v6, s8, v6')
A('v_bfe_u32 v4, v0, 3, 1','v_lshl_add_u32 v4, v4, 2, v2','v_lshlrev_b32 v4, 5, v4','v_add_u32 v123, s8, v4')
A('v_lshrrev_b32 v124, 5, v0','v_lshlrev_b32 v124, 4, v124',f'v_add_u32 v124, {hex(ML)}, v124')
A('v_lshrrev_b32 v121, 5, v0','v_lshlrev_b32 v121, 3, v121','v_lshrrev_b32 v4, 1, v1','v_add_u32 v121, v121, v4','v_lshlrev_b32 v121, 7, v121')
A('v_and_b32 v4, 1, v1','v_lshl_add_u32 v120, v4, 5, v121','v_and_b32 v4, 1, v2','v_lshl_add_u32 v120, v4, 4, v120')
A('s_lshl_b32 s12, s4, 1','s_add_u32 s12, s12, s5','s_lshl_b32 s12, s12, 3','s_add_u32 s12, s12, s6','s_lshl_b32 s12, s12, 11',f's_add_u32 s12, s12, {hex(OP)}')
if DV:
    srd(44,20,0x4000000)
    A('s_lshl_b32 s14, s5, 4','s_add_u32 s14, s14, s4','s_lshl_b32 s14, s14, 21','s_lshl_b32 s8, s6, 16','s_add_u32 s14, s14, s8','s_add_u32 s14, s14, 0x180000')
    A('s_lshr_b32 s8, s2, 3','s_add_u32 s8, s8, s2','s_add_u32 s8, s8, s15','s_add_u32 s8, s8, 12','s_and_b32 s8, s8, 15','s_lshl_b32 s8, s8, 12','s_add_u32 s14, s14, s8','v_lshlrev_b32 v126, 4, v0')
A(f's_mov_b32 s43, {hex(f2u(1.4426950408889634 if RND else SC))}',f's_mov_b32 s74, {hex(f2u(0.08838834764831845))}')
A('s_mov_b32 s64, 0xffff0000','s_mov_b32 s65, 0','s_mov_b32 s66, 0','s_mov_b32 s67, 0xffff','s_mov_b32 s68, 0','s_mov_b32 s69, 0xffff0000')
if STAMPS:
    stamp_regs['C']=[0]; A('s_mov_b64 s[84:85], s[82:83]')
if PT:
    lds_spin(LD,4,16,'pt',sleep=4)
    A('s_cmp_lg_u32 s15, 0','s_cbranch_scc1 L_Cnopt','buffer_load_dwordx4 v[76:79], v120, s[52:55], s12 offen','L_Cnopt:')
lds_spin(QF,1,16,'qf',sleep=2)
A('s_mov_b32 s73, s63')
for ks in range(4): A(f'ds_read_b128 v[{80+4*ks}:{83+4*ks}], v5 offset:{ks*64}')
A('s_add_u32 s13, s15, 13')
lds_spin(LD,'s13',16,'kl')
A('s_mov_b32 s72, s63','s_waitcnt vmcnt(0)')
for t in range(4):
    for ks in range(4): A(f'ds_read_b128 v[{16+16*t+4*ks}:{19+16*t+4*ks}], v{116+ks} offset:{t*16384}')
for t in range(4):
    A(f's_waitcnt lgkmcnt({12-4*t})')
    for ks in range(4): mfma(96+4*t, 80+4*ks, 16+16*t+4*ks, ks==0)
A('s_nop 7')
for h in range(2): A(f'v_cndmask_b32 v{16+h}, v{96+h}, v{100+h}, s[64:65]')
for h in range(2): A(f'v_cndmask_b32 v{16+h}, v{16+h}, v{104+h}, s[66:67]')
for h in range(2): A(f'v_cndmask_b32 v{16+h}, v{16+h}, v{108+h}, s[68:69]')
if RND:
    A('v_cvt_pk_bf16_f32 v18, v16, v17','v_lshlrev_b32 v16, 16, v18','v_and_b32 v17, 0xffff0000, v18','v_mul_f32 v16, s74, v16','v_mul_f32 v17, s74, v17')
    A('v_cvt_pk_bf16_f32 v18, v16, v17','v_lshlrev_b32 v16, 16, v18','v_and_b32 v17, 0xffff0000, v18')
A('v_mov_b32 v18, v16','v_mov_b32 v19, v17')
allreduce('v_max_f32',[18,19],['x1','x2','hm','m','r16','r32'],tmp=20)
A('v_mul_f32 v18, s43, v18','v_mul_f32 v19, s43, v19','v_fma_f32 v16, v16, s43, -v18','v_fma_f32 v17, v17, s43, -v19')
A('v_exp_f32 v16, v16','v_exp_f32 v17, v17','s_nop 0','v_cvt_pk_bf16_f32 v22, v16, v17')
A('ds_write_b16 v6, v22','ds_write_b16_d16_hi v6, v22 offset:128','ds_read_b128 v[80:83], v123','ds_read_b128 v[84:87], v123 offset:16')
allreduce('v_add_f32',[16,17],['x1','x2','hm','m','r16','r32'],tmp=20)
A('s_lshl_b32 s8, s15, 2',f's_add_u32 s8, s8, {hex(ML)}','v_mov_b32 v5, s8','s_mov_b32 s70, -1','s_mov_b32 s71, 0')
A('v_cndmask_b32 v96, v19, v18, s[70:71]')
A('s_mov_b64 exec, 1','ds_write2_b32 v5, v18, v19 offset0:0 offset1:4','ds_write2_b32 v5, v16, v17 offset0:8 offset1:12')
A('v_mov_b32 v6, 1',f'v_mov_b32 v5, {hex(PF)}','ds_add_u32 v5, v6','s_mov_b64 exec, -1')
stamp(4,'C')
def cg_setup():
    A('v_lshlrev_b32 v117, 11, v1','v_lshl_add_u32 v116, v2, 4, v117')
    A('s_lshl_b32 s75, s4, 15','s_lshl_b32 s8, s7, 7','s_add_u32 s75, s75, s8',f's_add_u32 s75, s75, {hex(OP)}')
    A('v_lshlrev_b32 v118, 3, v0',f'v_add_u32 v118, {hex(YO)}, v118',f'v_mov_b32 v119, {hex(YOF)}')
def factors():
    if CG: cg_setup()
    lds_spin(PF,4,104,'pf')
    A('ds_read_b128 v[88:91], v124','ds_read_b128 v[92:95], v124 offset:32','s_waitcnt lgkmcnt(0)')
    A('v_max3_f32 v97, v88, v89, v90','v_max_f32 v97, v97, v91','v_and_b32 v97, 0xfffff000, v97')
    for k in range(4): A(f'v_sub_f32 v{88+k}, v{88+k}, v97')
    A('v_sub_f32 v96, v96, v97')
    for k in range(4): A(f'v_exp_f32 v{88+k}, v{88+k}')
    A('v_exp_f32 v96, v96','v_mul_f32 v99, v88, v92')
    for k in range(1,4): A(f'v_fmac_f32 v99, v{88+k}, v{92+k}')
    A('v_or_b32 v100, v97, v7','v_bfi_b32 v101, s41, v7, v99','v_mov_b32 v102, v100','v_mov_b32 v103, v101')
    A('v_mov_b32 v106, 1',f'v_mov_b32 v107, {hex(OC)}')
A('s_waitcnt lgkmcnt(0)')
for tau in range(4):
    for u in range(4): buildA(32+4*u, 80+(4*tau+u)//2, u&1)
    if tau==3: factors()
    sk=newlab('vsk')
    A(f's_add_u32 s13, s15, {17+4*tau}','s_cmp_ge_u32 s72, s13',f's_cbranch_scc1 {sk}')
    lds_spin(LD,'s13',104,'vl',sleep=0)
    A('s_mov_b32 s72, s63',f'{sk}:')
    for u in range(4): A(f'ds_read_b128 v[{16+4*u}:{19+4*u}], v3 offset:{tau*16384+u*1024}')
    for u in range(4):
        A(f's_waitcnt lgkmcnt({3-u})')
        mfma(112,32+4*u,16+4*u,tau==0 and u==0)
A('s_nop 7')
for r in range(4): A(f'v_mul_f32 v{112+r}, v96, v{112+r}')
A('ds_write_b128 v125, v[112:115]','s_mov_b64 exec, 1','ds_add_rtn_u32 v106, v107, v106','s_mov_b64 exec, -1')
if SPEC:
    for w in range(4): A(f'ds_read_b128 v[{16+4*w}:{19+4*w}], v122 offset:{1024*w}')
A(f's_waitcnt lgkmcnt({4 if SPEC else 0})')
A('v_readfirstlane_b32 s8, v106','s_cmp_lg_u32 s8, 3','s_cbranch_scc1 L_Cnopub')
if not SPEC:
    for w in range(4): A(f'ds_read_b128 v[{16+4*w}:{19+4*w}], v122 offset:{1024*w}')
A('s_setprio 3','s_waitcnt lgkmcnt(2)')
pkadd(16,16,20)
A('s_waitcnt lgkmcnt(0)')
pkadd(24,24,28); pkadd(112,16,24)
for r in range(4): A(f'v_bfi_b32 v{112+r}, s41, v7, v{112+r}')
A('s_cmp_eq_u32 s73, 2','s_cbranch_scc1 L_Cfast')
A('buffer_store_dwordx4 v[112:115], v120, s[52:55], s12 offen sc1')
A('s_mov_b32 exec_lo, 0x5555','s_mov_b32 exec_hi, 0x5555','buffer_store_dwordx4 v[100:103], v121, s[52:55], s12 offen offset:64 sc1','s_branch L_Cpubd')
A('L_Cfast:','buffer_store_dwordx4 v[112:115], v120, s[52:55], s12 offen')
A('s_mov_b32 exec_lo, 0x5555','s_mov_b32 exec_hi, 0x5555','buffer_store_dwordx4 v[100:103], v121, s[52:55], s12 offen offset:64')
A('L_Cpubd:','s_mov_b64 exec, -1')
if CG:
    A('s_mov_b32 s43, s75')
    A('buffer_load_dwordx4 v[16:19], v116, s[52:55], s43 offen sc1','buffer_load_dwordx4 v[20:23], v117, s[52:55], s43 offen offset:64 sc1',f'ds_write_b32 v119, v119 offset:{QI-YOF}')
    stamp_now2(6)
    A('s_waitcnt vmcnt(0)')
    for i in range(8): A(f'v_xor_b32 v{64+i}, v7, v{16+i}')
    A('v_or3_b32 v74, v64, v65, v66','v_or3_b32 v74, v74, v67, v68','v_or3_b32 v74, v74, v69, v70','v_or_b32 v74, v74, v71','v_and_b32 v74, s41, v74','v_cmp_ne_u32 vcc, 0, v74','s_cbranch_vccz L_codone')
    mpoll([(64,4,'buffer_load_dwordx4 v[64:67], v116, s[52:55], s43 offen sc1'),(68,4,'buffer_load_dwordx4 v[68:71], v117, s[52:55], s43 offen offset:64 sc1')],'op',74)
    A('L_codone:')
    stamp_now2(7)
    allreduce('v_max_f32',[70],['x1','x2','hm'])
    A('v_sub_f32 v68, v68, v70','v_exp_f32 v68, v68','s_nop 0','v_mul_f32 v69, v68, v69')
    for k in range(4): A(f'v_mul_f32 v{64+k}, v68, v{64+k}')
    allreduce('v_add_f32',[69,64,65,66,67],['x1','x2','hm'])
    A('v_rcp_f32 v69, v69','s_nop 0')
    for k in range(4): A(f'v_mul_f32 v{64+k}, v69, v{64+k}')
    A('v_cvt_pk_bf16_f32 v64, v64, v65','v_cvt_pk_bf16_f32 v65, v66, v67','ds_write_b64 v118, v[64:65]','ds_write_b32 v119, v119')
    stamp_flush2()
else:
    A(f'ds_write_b32 v107, v107 offset:{PB-OC}')
    stamp_now(6)
A('L_Cnopub:','s_waitcnt lgkmcnt(0)')
stamp(5,'C')
reducer('C')

A('.p2align 6','L_X:')
A('v_and_b32 v9, 31, v0','v_mul_u32_u24 v9, 36, v9','v_lshrrev_b32 v10, 5, v0','v_mul_u32_u24 v10, 1152, v10','v_add_u32 v10, v10, v9')
srd(44,16,2304); srd(48,32,1152)
tag_ready()
A(*BB)
for k in range(3): A(f'buffer_load_dwordx3 v[{64+4*k}:{66+4*k}], v10, s[44:47], 0 offen offset:{12*k}')
for k in range(3): A(f'buffer_load_dwordx3 v[{80+4*k}:{82+4*k}], v9, s[48:51], 0 offen offset:{12*k}')
if PTO:
    A('v_mov_b32 v4, 0','s_mov_b64 exec, 1')
    if PTO&1:
        srd(56,34,2304); A('buffer_load_dword v102, v4, s[56:59], 0 offen')
    if PTO&2:
        A('s_mul_i32 s8, s2, 4608',f's_add_u32 s8, s8, {hex(FP)}','buffer_load_dword v103, v4, s[52:55], s8 offen')
    if PTO&4:
        A('s_lshl_b32 s12, s5, 4','s_add_u32 s12, s12, s4','s_lshl_b32 s12, s12, 21','s_add_u32 s12, s12, 0x180000')
        srd(56,20,0x4000000); A('buffer_load_dword v104, v4, s[56:59], s12 offen')
        A('s_lshl_b32 s12, s4, 4','s_add_u32 s12, s12, s7',f's_mul_i32 s12, s12, {16*1152}')
        srd(56,24,4096*1152); A('buffer_load_dword v105, v4, s[56:59], s12 offen')
        A(f's_mul_i32 s12, s2, {18*1152}')
        srd(56,30,4608*1152); A('buffer_load_dword v106, v4, s[56:59], s12 offen')
    A('s_mov_b64 exec, -1')
A('v_mov_b32 v100, 0','s_waitcnt vmcnt(0)')
for k in range(3):
    for i in range(3):
        x=64+4*k+i; w=80+4*k+i
        A(f'v_lshlrev_b32 v96, 16, v{x}',f'v_lshlrev_b32 v97, 16, v{w}',f'v_and_b32 v98, 0xffff0000, v{x}',f'v_and_b32 v99, 0xffff0000, v{w}')
        A('v_mul_f32 v96, v96, v97','v_mul_f32 v98, v98, v99','v_cvt_pk_bf16_f32 v96, v96, v98','v_lshlrev_b32 v97, 16, v96','v_and_b32 v98, 0xffff0000, v96')
        A('v_add_f32 v100, v100, v97','v_add_f32 v100, v100, v98')
allreduce('v_add_f32',[100],['x1','x2','hm','m','r16'],tmp=101)
A('v_cvt_pk_bf16_f32 v100, v100, v100','v_and_b32 v100, 0xffff0000, v100',f'v_mul_f32 v100, {hex(f2u(-1.4426950408889634))}, v100')
A('v_exp_f32 v100, v100','s_nop 0','v_add_f32 v100, 1.0, v100','v_rcp_f32 v100, v100','s_nop 0')
A('v_cvt_pk_bf16_f32 v100, v100, v100','v_and_b32 v100, 0xffff0000, v100')
A('v_sub_f32 v101, 1.0, v100','v_cvt_pk_bf16_f32 v101, v101, v101','v_and_b32 v101, 0xffff0000, v101')
A('v_lshrrev_b32 v9, 5, v0','v_lshlrev_b32 v9, 3, v9',f'v_add_u32 v9, {hex(GL)}, v9','ds_write_b64 v9, v[100:101]')
A('v_mov_b32 v9, 1',f'v_mov_b32 v10, {hex(GF)}','ds_write_b32 v10, v9')
reducer('X')

A('.p2align 6','L_W:')
A('s_sub_u32 s15, s3, 8')
A('v_lshlrev_b32 v3, 4, v1',f'v_mov_b32 v9, {hex(OOB)}','s_cmp_eq_u32 s15, 4','s_cselect_b32 s60, 0xff00ff00, 0','s_mov_b32 s61, s60')
A('v_cndmask_b32 v3, v3, v9, s[60:61]')
A(f'v_mul_u32_u24 v4, {4*1152}, v2','v_add_u32 v4, v4, v3')
A('v_mul_u32_u24 v5, 1152, v2','v_add_u32 v5, v5, v3','s_mov_b32 s62, 0','s_mov_b32 s63, -1','v_cndmask_b32 v5, v5, v9, s[62:63]')
A('s_lshl_b32 s8, s15, 8',f's_mul_i32 s10, s2, {18*1152}','s_add_u32 s10, s10, s8',f's_add_u32 s13, s10, {16*1152}')
A('s_lshl_b32 s12, s4, 4','s_add_u32 s12, s12, s7',f's_mul_i32 s12, s12, {16*1152}','s_add_u32 s12, s12, s8')
A('v_lshrrev_b32 v120, 5, v0','v_lshlrev_b32 v121, 3, v120',f'v_add_u32 v121, {hex(GL)}, v121')
A('v_mul_u32_u24 v120, 576, v120','v_lshl_add_u32 v120, v1, 3, v120','v_and_b32 v122, 1, v2','v_lshl_add_u32 v120, v122, 2, v120')
A('s_lshl_b32 s8, s15, 7','v_add_u32 v120, s8, v120')
if FLAY=='t': A('v_and_b32 v122, 15, v120','v_lshrrev_b32 v120, 4, v120','v_lshlrev_b32 v120, 14, v120','v_lshl_add_u32 v120, v122, 2, v120')
else: A('v_lshlrev_b32 v120, 2, v120')
A('v_cndmask_b32 v120, v120, v9, s[60:61]')
if PSW: A('s_and_b32 s14, s2, 7','s_lshl_b32 s14, s14, 5','s_lshr_b32 s8, s2, 3','s_add_u32 s14, s14, s8','s_lshl_b32 s14, s14, 6')
else: A('s_lshl_b32 s14, s2, 6')
if FLAY=='c': A('s_mul_i32 s14, s14, 72')
A(f's_add_u32 s14, s14, {hex(FP)}')
A('v_lshlrev_b32 v122, 4, v0',f'v_add_u32 v122, {hex(YH)}, v122','v_lshlrev_b32 v123, 3, v0',f'v_add_u32 v123, {hex(YO)}, v123')
srd(44,24,4096*1152); srd(48,30,4608*1152)
tag_ready()
A(*BB)
selectors(8,104)
thr=sum(t<<(6*i) for i,t in enumerate(THR))
A(f's_mov_b32 s8, {hex(thr)}','s_mul_i32 s9, s15, 6','s_lshr_b32 s8, s8, s9','s_and_b32 s64, s8, 63')
if PT:
    lds_spin(LD,8,104,'pt',sleep=4)
    A('buffer_load_dwordx4 v[76:79], v120, s[52:55], s14 offen')
lds_spin(GF,1,104,'gl',sleep=4)
A('ds_read_b64 v[72:73], v121')
lds_spin(LD,'s64',104,'wg',sleep=WGS)
if WPB<5:
    A(f's_cmp_lt_u32 s15, {WPB}','s_cbranch_scc1 L_Wnopb')
    lds_spin(QI if WQI else PB,1,104,'wpb',sleep=0)
    A('L_Wnopb:')
A('s_setprio 1')
for t in range(4): A(f'buffer_load_dwordx4 v[{16+4*t}:{19+4*t}], v4, s[48:51], s10 offen offset:{t*1152}{PW}')
A(f'buffer_load_dwordx4 v[32:35], v5, s[48:51], s13 offen{PW}')
for t in range(4): A(f'buffer_load_dwordx4 v[{36+4*t}:{39+4*t}], v4, s[44:47], s12 offen offset:{t*1152}{PW}')
stamp(15,'W')
lds_spin(YHF,1,104,'yh',sleep=1)
A('ds_read_b128 v[64:67], v122','s_waitcnt lgkmcnt(0)')
for t in range(5):
    a=104+4*(t&1)
    buildA(a, 64+t//2, t&1)
    A(f's_waitcnt vmcnt({8-t})','s_nop 0')
    mfma(116,a,16+4*t,t==0)
A('s_nop 7')
if WDK: A('v_mov_b32 v104, 1',f'v_mov_b32 v105, {hex(WD)}','s_mov_b64 exec, 1','ds_add_u32 v105, v104','s_mov_b64 exec, -1')
for r in range(4): A(f'v_mul_f32 v{116+r}, v73, v{116+r}')
A('s_setprio 3')
if FINE in (2,4):
    A('s_waitcnt vmcnt(0)'); stamp(8,'W')
lds_spin(YOF,1,104,'yo',sleep=0)
A('ds_read_b64 v[64:65], v123','s_waitcnt lgkmcnt(0)')
for t in range(4):
    buildA(80+4*t, 64+t//2, t&1)
    if t>0:
        A(f's_waitcnt vmcnt({4-t})')
        mfma(112,80+4*(t-1),36+4*(t-1),t==1)
A('s_waitcnt vmcnt(0)')
mfma(112,92,48,False)
A('s_nop 7')
for r in range(4): A(f'v_fma_f32 v{112+r}, v72, v{112+r}, v{116+r}')
for r in range(4): A(f'v_bfi_b32 v{112+r}, s41, v7, v{112+r}')
A('buffer_store_dwordx4 v[112:115], v120, s[52:55], s14 offen sc1')
stamp(9,'W')
A(f's_cmp_ge_u32 s2, {NRED}','s_cbranch_scc1 L_Wend')
if ACK: A('s_waitcnt vmcnt(0)')
A('s_barrier','L_Wend:')
flush_stamps('W')
A('L_end:','s_endpgm','L_code_end:')
A('.section .rodata,"a"','.p2align 6',f'.amdhsa_kernel {KNAME}')
A('  .amdhsa_next_free_vgpr 128','  .amdhsa_next_free_sgpr 102','  .amdhsa_accum_offset 128')
A('  .amdhsa_group_segment_fixed_size 0','  .amdhsa_kernarg_size 96','  .amdhsa_user_sgpr_count 2','  .amdhsa_user_sgpr_kernarg_segment_ptr 1','  .amdhsa_system_sgpr_workgroup_id_x 1')
A('  .amdhsa_float_denorm_mode_32 3','.end_amdhsa_kernel')
import subprocess, re, os
def emit(nl):
    t='\n'.join(L)+'\n'
    return t.replace('PFSTEP',hex(0x100+0) if nl is None else f'{(nl+31)//32:#x}').replace('NLINES',hex(0x100) if nl is None else f'{nl:#x}')
def size_of(txt):
    open(out+'.tmp.s','w').write(txt)
    subprocess.run(['clang','-x','assembler','-target','amdgcn-amd-amdhsa','-mcpu=gfx950','-c',out+'.tmp.s','-o',out+'.tmp.o'],check=True)
    o=subprocess.run(['llvm-readelf','-S',out+'.tmp.o'],capture_output=True,text=True).stdout
    os.remove(out+'.tmp.s'); os.remove(out+'.tmp.o')
    m=re.search(r'\.text\s+PROGBITS\s+\w+\s+\w+\s+(\w+)',o)
    return int(m.group(1),16)
sz=size_of(emit(None)); nl=sz//128
txt=emit(nl); sz2=size_of(txt)
while nl*128>sz2:
    nl-=1; txt=emit(nl); sz2=size_of(txt)
open(out,'w').write(txt)
print('code bytes',sz2,end=' ')
print('lines',len(L),'lds',LDS,'ws end',hex(WS_END))
```

```python
import sys, struct
KNAME='gated_mix__sliding_block_cached__dense_activation_relu__decode_kernel'
opts=dict(a.split('=') for a in sys.argv[2:])
out=sys.argv[1]
def I(n,d): return int(opts.get(n,d))
STAMPS=I('stamps',0); PROBE=I('probe',-1); PMUL=I('pmul',2); FINE=I('fine',0)
SPIN=I('spin',1<<17); GSPIN=I('gspin',1<<17); WIN=I('win',32)
THR=[int(x) for x in opts.get('thr','26,29,28,28,28').split(',')]
RP=opts.get('ramp','20').split(',')
RAMPC={int(x.split(':')[0]):int(x.split(':')[1]) for x in RP[:-1]}; RAMPN=int(RP[-1])
SLP=I('slp',1); WIN2=I('win2',0); N2=I('n2',64); FLD=opts.get('fld','sc1').replace('+',' '); FSLP=I('fslp',0); FLAY=opts.get('flay','c'); FDL=I('fdl',0); PR=I('pr',1); PSL=I('psl',6); ACK=I('ack',1); WPB=I('wpb',2); CPF=I('cpf',24); CSZ=I('csz',0); SPEC=I('spec',1); WGS=I('wgs',2); RND=I('rnd',1); PTO=I('pto',0); QB=I('qb',4); WQI=I('wqi',1); OCS=I('ocs',0); DV=I('dv',0); DVT=I('dvt',21); B0=I('b0',0); PIPE=I('pipe',0); PGAP=I('pgap',0); CG=I('cg',1); RM=I('rm',1); FAST=I('fast',1); NOQ=I('noq',0); NOH=I('noh',0); QFAST=I('qfast',0); WDK=I('wdk',0); HTH=I('hth',20); PSW=I('psw',1); QSL=I('qsl',4); PT=I('pt',0); NOST=I('nostore',0); NOPOLL=I('nopoll',0)
NRED=72
def pol(n):
    p=opts.get(n,'nt').replace('+',' ')
    return '' if p=='none' else ' '+p
PKV=pol('pkv'); PW=pol('pw')
def f2u(f): return struct.unpack('<I',struct.pack('<f',f))[0]
EPOCH=0x0
QP=0x1000
OP=QP+0x40000
HP=OP+0x80000
FP=HP+7*2*4608*4
QA=FP+256*4608
FL=QA+0x40000
WS_END=FL+256*128
WS_SIZE=0x10000000 if STAMPS else WS_END
STAMP_OFF=0x8000000
OOB=0x7f000000
VL=0x10000; SB=0x20000
QL=SB+0x000; PL=SB+0x200; ML=SB+0x600; QF=SB+0x640; PF=SB+0x644; OC=SB+0x648; FC=SB+0x64c; LD=SB+0x650; CR=SB+0x654; YHF=SB+0x658; YOF=SB+0x65c; WD=SB+0x660; PB=SB+0x664; QI=SB+0x668
GL=SB+0x680; GF=SB+0x690; OACC=SB+0x800; FSL=SB+0x1800; STL=SB+0x1A00; YH=SB+0x1C00; YO=SB+0x2000
LDS=SB+0x2200
SC=0.08838834764831845*1.4426950408889634
L=[]
def A(*ss):
    for s in ss:
        if NOST and s.startswith('buffer_store') and s.endswith(' sc1'): s='s_nop 0'
        if NOPOLL and s.startswith('buffer_load') and s.endswith(' sc1'): s='s_nop 0'
        L.append(s)
lab=[0]
def newlab(p):
    lab[0]+=1; return f'L_{p}{lab[0]}'
FIRST={'C':7 if FINE else 4,'L':2,'Q':0,'H':1,'X':3,'W':11 if FINE==2 else (12 if FINE==4 else 8)}
def srd(d,p,n):
    A(f's_mov_b32 s{d}, s{p}', f's_mov_b32 s{d+1}, s{p+1}', f's_mov_b32 s{d+2}, {hex(n)}', f's_mov_b32 s{d+3}, 0x20000')
stamp_regs={}
CUR=['']
def stamp(k, role):
    if FINE==5 and not (k in (9,) or (role=='L' and k in (12,13))): return
    if FINE in (3,4) and k in (4,5,13,15) and role!='Q': return
    if PROBE==k:
        sk=newlab('pk')
        A(f's_cmp_lg_u32 s3, {FIRST[role]}', f's_cbranch_scc1 {sk}')
        A('s_memrealtime s[84:85]','s_waitcnt lgkmcnt(0)','v_mov_b32 v30, s84',f'v_mov_b32 v31, {STL}','ds_write_b32 v31, v30','s_waitcnt lgkmcnt(0)')
        A(f'{sk}:')
    if not STAMPS or k>=16: return
    lst=stamp_regs.setdefault(role,[])
    i=len(lst); lst.append(k); assert i<8
    A(f's_memrealtime s[{84+2*i}:{85+2*i}]')
def stamp_now(k):
    if not STAMPS: return
    if FINE==5 and k==6: return
    A('s_memrealtime s[80:81]','s_waitcnt lgkmcnt(0)','v_mov_b32 v20, s80','v_mov_b32 v21, s81','v_mov_b32 v22, 0')
    A('s_lshl_b32 s8, s2, 7', f's_add_u32 s8, s8, {hex(STAMP_OFF)}')
    A(f'buffer_store_dwordx2 v[20:21], v22, s[52:55], s8 offen offset:{8*k}')
S2=[]
def stamp_now2(k):
    if not STAMPS or FINE==5: return
    A(f's_memrealtime s[{96+2*len(S2)}:{97+2*len(S2)}]'); S2.append(k)
def stamp_flush2():
    if not S2: return
    A('s_waitcnt lgkmcnt(0)','v_mov_b32 v22, 0','s_lshl_b32 s8, s2, 7', f's_add_u32 s8, s8, {hex(STAMP_OFF)}')
    for i,k in enumerate(S2): A(f'v_mov_b32 v20, s{96+2*i}',f'v_mov_b32 v21, s{97+2*i}',f'buffer_store_dwordx2 v[20:21], v22, s[52:55], s8 offen offset:{8*k}','s_nop 1')
def flush_stamps(role):
    if not STAMPS: return
    lst=stamp_regs.get(role,[])
    skip=newlab('nost')
    A('s_mov_b64 exec, -1', f's_cmp_lg_u32 s3, {FIRST[role]}', f's_cbranch_scc1 {skip}', 's_waitcnt lgkmcnt(0)')
    A('s_lshl_b32 s8, s2, 7', f's_add_u32 s8, s8, {hex(STAMP_OFF)}', 'v_mov_b32 v3, 0')
    for i,k in enumerate(lst):
        A(f'v_mov_b32 v4, s{84+2*i}', f'v_mov_b32 v5, s{85+2*i}', f'buffer_store_dwordx2 v[4:5], v3, s[52:55], s8 offen offset:{k*8}', 's_waitcnt vmcnt(0)')
    A(f'{skip}:')
def epoch_load():
    A(f's_load_dword s40, s[38:39], {EPOCH}')
    srd(52,38,WS_SIZE)
    A('s_mov_b32 s41, 0xfff')
def tag_ready():
    A('s_waitcnt lgkmcnt(0)','s_add_u32 s42, s40, 1','s_and_b32 s40, s42, s41','v_mov_b32 v7, s40')
def selectors(base, tmp):
    A(f'v_mov_b32 v{tmp}, 0x0c0c0100', f'v_mov_b32 v{tmp+1}, 0x01000c0c', 's_mov_b32 s60, 0xaaaaaaaa', 's_mov_b32 s61, 0xaaaaaaaa')
    A(f'v_cndmask_b32 v{tmp}, v{tmp}, v{tmp+1}, s[60:61]')
    A(f'v_mov_b32 v{tmp+1}, 0x0c0c0302', f'v_mov_b32 v{tmp+2}, 0x03020c0c')
    A(f'v_cndmask_b32 v{tmp+1}, v{tmp+1}, v{tmp+2}, s[60:61]')
    A(f'v_mov_b32 v{tmp+2}, 0x0c0c0c0c')
    for d in range(4):
        m=(0x03030303<<(2*d))&0xffffffff
        A(f's_mov_b32 s60, {hex(m)}', f's_mov_b32 s61, {hex(m)}')
        A(f'v_cndmask_b32 v{base+d}, v{tmp+2}, v{tmp}, s[60:61]', f'v_cndmask_b32 v{base+4+d}, v{tmp+2}, v{tmp+1}, s[60:61]')
def buildA(dst, src, odd, sel=8):
    for d in range(4): A(f'v_perm_b32 v{dst+d}, v{src}, v{src}, v{sel+(4 if odd else 0)+d}')
def mfma(d,a,b,first):
    c='0' if first else f'v[{d}:{d+3}]'
    A(f'v_mfma_f32_16x16x32_bf16 v[{d}:{d+3}], v[{a}:{a+3}], v[{b}:{b+3}], {c}')
def lds_spin(addr, val, vt, name, sleep=1):
    l=newlab(name); d=newlab(name+'d')
    A(f'v_mov_b32 v{vt}, {hex(addr)}', f's_mov_b32 s62, {SPIN}', f'{l}:', f'ds_read_b32 v{vt+1}, v{vt}', 's_sub_u32 s62, s62, 1', 's_waitcnt lgkmcnt(0)')
    A(f'v_readfirstlane_b32 s63, v{vt+1}', f's_cbranch_scc1 {d}', f's_cmp_ge_u32 s63, {val}')
    if sleep: A(f's_cbranch_scc1 {d}', f's_sleep {sleep*SLP}', f's_branch {l}')
    else: A(f's_cbranch_scc0 {l}')
    A(f'{d}:')
def mpoll(loads, name, chk, init='-1', slp=0):
    lp=newlab(name); go=newlab(name+'go')
    for i,_ in enumerate(loads): A(f's_mov_b64 s[{72+2*i}:{73+2*i}], {init}')
    A(f's_mov_b32 s62, {GSPIN}', f'{lp}:')
    if slp: A(f's_sleep {slp}')
    for i,(d,n,t) in enumerate(loads):
        sk=newlab('sk')
        A(f's_mov_b64 exec, s[{72+2*i}:{73+2*i}]', f's_cbranch_execz {sk}', t, f'{sk}:')
    A('s_sub_u32 s62, s62, 1', f's_cbranch_scc1 {go}', 's_waitcnt vmcnt(0)')
    if FINE==5 and name=='fp' and CUR[0]=='L':
        A(f's_cmp_lg_u32 s62, {GSPIN-1}','s_cbranch_scc1 L_nf5'); stamp(13,'L'); A('L_nf5:')
    if FINE==4 and name=='op':
        A(f's_cmp_lg_u32 s62, {GSPIN-1}','s_cbranch_scc1 L_nf4'); stamp(5,'Q'); A('L_nf4:')
    for i,(d,n,t) in enumerate(loads):
        A(f's_mov_b64 exec, s[{72+2*i}:{73+2*i}]')
        for k in range(n): A(f'v_xor_b32 v{d+k}, v7, v{d+k}')
        if n==4: A(f'v_or3_b32 v{chk}, v{d}, v{d+1}, v{d+2}', f'v_or_b32 v{chk}, v{chk}, v{d+3}', f'v_and_b32 v{chk}, s41, v{chk}')
        else: A(f'v_and_b32 v{chk}, s41, v{d}')
        A(f'v_cmp_ne_u32 s[{72+2*i}:{73+2*i}], 0, v{chk}')
    A('s_nop 0', 's_or_b64 s[76:77], s[72:73], s[74:75]', f's_cbranch_scc1 {lp}', f'{go}:', 's_mov_b64 exec, -1', 's_waitcnt vmcnt(0)')
def ppoll(res, stage, addr, name, chk, depth):
    go=newlab(name+'go'); lp=newlab(name)
    n=len(res)
    def issue(k, first=False):
        for i in range(n):
            if first: A('s_mov_b64 exec, -1')
            else: A(f's_or_b64 exec, s[{72+2*i}:{73+2*i}], 1')
            A(f'buffer_load_dwordx4 v[{stage[k][i]}:{stage[k][i]+3}], {addr[i]}')
    def check(k):
        for i in range(n):
            d=res[i]
            A(f's_mov_b64 exec, s[{72+2*i}:{73+2*i}]')
            for q in range(4): A(f'v_xor_b32 v{d+q}, v7, v{stage[k][i]+q}')
            A(f'v_or3_b32 v{chk}, v{d}, v{d+1}, v{d+2}', f'v_or_b32 v{chk}, v{chk}, v{d+3}', f'v_and_b32 v{chk}, s41, v{chk}', f'v_cmp_ne_u32 s[{72+2*i}:{73+2*i}], 0, v{chk}')
        A('s_nop 0','s_or_b64 s[76:77], s[72:73], s[74:75]',f's_cbranch_scc0 {go}')
    for i in range(n): A(f's_mov_b64 s[{72+2*i}:{73+2*i}], -1')
    A(f's_mov_b32 s62, {GSPIN}')
    issue(0,True)
    A('s_waitcnt vmcnt(0)'); check(0)
    for k in range(depth-1):
        issue(k)
        if PGAP: A(f's_sleep {PGAP}')
    A(f'{lp}:')
    for k in range(depth):
        issue((k+depth-1)%depth)
        A(f's_waitcnt vmcnt({n*(depth-1)})')
        check(k)
    A('s_sub_u32 s62, s62, 1',f's_cbranch_scc0 {lp}',f'{go}:','s_mov_b64 exec, -1')
DPP=' row_mask:0xf bank_mask:0xf'
def allreduce(op, regs, steps, tmp=None):
    n=len(regs); pad=max(0,2-(n-1))
    ctl={'x1':'quad_perm:[1,0,3,2]','x2':'quad_perm:[2,3,0,1]','hm':'row_half_mirror','m':'row_mirror','ror4':'row_ror:4','ror8':'row_ror:8'}
    for s in steps:
        if s in ctl:
            if pad: A(f's_nop {pad-1}')
            for r in regs: A(f'{op}_dpp v{r}, v{r}, v{r} {ctl[s]}{DPP}')
        else:
            ins='v_permlane16_swap_b32' if s=='r16' else 'v_permlane32_swap_b32'
            for i,r in enumerate(regs): A(f'v_mov_b32 v{tmp+i}, v{r}')
            A('s_nop 1')
            for i,r in enumerate(regs): A(f'{ins} v{r}, v{tmp+i}')
            A('s_nop 0')
            for i,r in enumerate(regs): A(f'{op} v{r}, v{r}, v{tmp+i}')
def pkadd(d,a,b):
    for k in (0,2): A(f'v_pk_add_f32 v[{d+k}:{d+k+1}], v[{a+k}:{a+k+1}], v[{b+k}:{b+k+1}]')
BB=('s_barrier',)

for c in """Fused decode step in one launch: out = g*attn(x)@wo + (1-g)*relu(x@w1)@w2, g = sigmoid(x.gate_w).
Kernarg: x, k_cache, v_cache, wq, wo, B_x (unused), w1, w2, gate_w, out, debug, ws (8-byte pointers).
256 workgroups (one per CU), wg = xcd(3b) | kvh&1 | batch | split(3b); 13 role-specialised waves:
  0 Q: 72x128 slab of wq -> q partial, gathers q    1 H: slab of w1 -> h partial, gathers h
  2 L: streams the 256-key K and V slices into LDS (windowed LDS-DMA)   3 X: gate, code prefetch
  4-7 C: QK^T, softmax (true running max), PV, publish o partial, gather + combine o
  8-12 W: 16 rows of wo + 18 rows of w2, one column block each -> output partial
  waves 0-7 of workgroups 0..71: sum the 256 output partials, 16 outputs per workgroup.
GEMVs use 16x16x32 bf16 MFMA with the vector spread on a diagonal A operand (weights stay row-major).
Hand-offs go through ws as 16-byte granules whose low mantissa bits carry a per-launch tag (epoch+1);
every reader verifies the tag of every word, so results do not depend on placement or stale ws data.
Generated by gen/gen8.py.""".split('\n'): A('; '+c)
A(f'; @launch grid=(256,1,1) block=(832,1,1) lds={LDS}')
A('.amdgcn_target "amdgcn-amd-amdhsa--gfx950"','.text',f'.globl {KNAME}','.p2align 8',f'.type {KNAME},@function',f'{KNAME}:')
if STAMPS or PROBE>=0: A('s_memrealtime s[82:83]')
A('s_cmp_ge_u32 s2, 256','s_cbranch_scc1 L_end')
A('s_load_dwordx16 s[16:31], s[0:1], 0','s_load_dwordx8 s[32:39], s[0:1], 64')
A('v_lshrrev_b32 v1, 6, v0','v_and_b32 v0, 63, v0','s_and_b32 s4, s2, 7','v_readfirstlane_b32 s3, v1')
A('s_lshl_b32 s4, s4, 1','s_bfe_u32 s5, s2, 0x10003','s_add_u32 s4, s4, s5')
A('s_bfe_u32 s5, s2, 0x10004','s_lshr_b32 s6, s2, 5','s_lshr_b32 s7, s2, 4')
A('v_and_b32 v1, 15, v0','v_lshrrev_b32 v2, 4, v0')
if CPF:
    A('s_cmp_lg_u32 s3, 3','s_cbranch_scc1 L_nopf')
    A('s_getpc_b64 s[10:11]','s_and_b32 s10, s10, 0xffffff00','s_lshr_b32 s8, s2, 3','s_mul_i32 s8, s8, PFSTEP','v_add_u32 v3, s8, v0')
    A('v_subrev_u32 v4, NLINES, v3','v_min_u32 v3, v3, v4','v_lshlrev_b32 v3, 7, v3',f's_mov_b32 exec_lo, {hex(((1<<CPF)-1)&0xffffffff)}',f's_mov_b32 exec_hi, {hex(((1<<CPF)-1)>>32)}','global_load_dword v127, v3, s[10:11]','s_mov_b64 exec, -1','L_nopf:')
A('s_cmp_gt_u32 s3, 1','s_cbranch_scc1 L_disp')
QPOS=len(L)

def red_id():
    if RM: A('s_lshr_b32 s14, s2, 4','s_lshl_b32 s14, s14, 3','s_and_b32 s8, s2, 7','s_add_u32 s14, s14, s8','s_lshl_b32 s14, s14, 1','s_bfe_u32 s8, s2, 0x10003','s_add_u32 s14, s14, s8')
    else: A('s_mov_b32 s14, s2')
RED_EMITTED=[0]
def reducer(role):
    CUR[0]=role
    if not STAMPS:
        if RED_EMITTED[0]:
            A('s_branch L_red'); return
        RED_EMITTED[0]=1; A('L_red:')
    fin=newlab('fin')
    red_id()
    A(f's_cmp_ge_u32 s14, {NRED}', f's_cbranch_scc1 {fin}', 's_setprio 0')
    A('v_lshlrev_b32 v5, 4, v0','v_and_b32 v6, 3, v0')
    if FLAY=='t': A('s_lshl_b32 s8, s14, 14','s_lshl_b32 s9, s3, 11','s_add_u32 s8, s8, s9',f's_add_u32 s8, s8, {hex(FP)}','s_add_u32 s11, s8, 1024')
    else: A('v_lshrrev_b32 v5, 2, v0','v_mul_u32_u24 v5, 4608, v5','v_lshl_add_u32 v5, v6, 4, v5',f's_mul_i32 s8, s3, {32*4608}','s_lshl_b32 s9, s14, 6','s_add_u32 s8, s8, s9',f's_add_u32 s8, s8, {hex(FP)}',f's_add_u32 s11, s8, {16*4608}')
    A('v_bfe_u32 v8, v0, 2, 2','v_lshl_add_u32 v8, v6, 2, v8','v_lshlrev_b32 v8, 5, v8','s_lshl_b32 s10, s3, 2',f's_add_u32 s10, s10, {hex(FSL)}','v_add_u32 v8, s10, v8')
    A('v_mov_b32 v11, 1',f'v_mov_b32 v10, {hex(FC)}','v_lshlrev_b32 v12, 5, v0',f'v_add_u32 v12, {hex(FSL)}, v12','v_lshlrev_b32 v13, 1, v0')
    srd(44,34,2304)
    A('s_lshl_b32 s10, s14, 5')
    A('s_mov_b32 s64, 0x00f000f0','s_mov_b32 s65, 0x00f000f0','s_mov_b32 s66, 0x0f000f00','s_mov_b32 s67, 0x0f000f00','s_mov_b32 s68, 0xf000f000','s_mov_b32 s69, 0xf000f000')
    A('s_barrier')
    if FDL: A(f's_sleep {FDL}')
    if role=='L' and FINE==5: stamp(12,'L')
    if PIPE: ppoll([16,20],[[32+8*k,36+8*k] for k in range(PIPE)],[f'v5, s[52:55], s8 offen {FLD}',f'v5, s[52:55], s11 offen {FLD}'],'fp',9,PIPE)
    else: mpoll([(16,4,f'buffer_load_dwordx4 v[16:19], v5, s[52:55], s8 offen {FLD}'),(20,4,f'buffer_load_dwordx4 v[20:23], v5, s[52:55], s11 offen {FLD}')],'fp',9,slp=FSLP)
    if role=='C': stamp(10, role)
    if FINE==5:
        A('s_memrealtime s[80:81]','s_waitcnt lgkmcnt(0)','v_mov_b32 v24, s80','v_mov_b32 v25, s81','v_mov_b32 v26, 0','s_lshl_b32 s8, s2, 7', f's_add_u32 s8, s8, {hex(STAMP_OFF+8)}','s_lshl_b32 s9, s3, 3','s_add_u32 s8, s8, s9','buffer_store_dwordx2 v[24:25], v26, s[52:55], s8 offen')
    for k in range(4): A(f'v_add_f32 v{16+k}, v{16+k}, v{20+k}')
    allreduce('v_add_f32',[16,17,18,19],['ror4','ror8'])
    A('v_cndmask_b32 v16, v16, v17, s[64:65]','v_cndmask_b32 v16, v16, v18, s[66:67]','v_cndmask_b32 v16, v16, v19, s[68:69]')
    allreduce('v_add_f32',[16],['r16','r32'],tmp=17)
    A('s_mov_b64 exec, 0xffff','ds_write_b32 v8, v16','s_mov_b64 exec, 1','ds_add_rtn_u32 v9, v10, v11','s_mov_b64 exec, 0xffff')
    if SPEC: A('ds_read_b128 v[16:19], v12','ds_read_b128 v[20:23], v12 offset:16','s_waitcnt lgkmcnt(2)')
    else: A('s_waitcnt lgkmcnt(0)')
    A('v_readfirstlane_b32 s8, v9','s_cmp_lg_u32 s8, 7',f's_cbranch_scc1 {fin}')
    if not SPEC: A('ds_read_b128 v[16:19], v12','ds_read_b128 v[20:23], v12 offset:16')
    A('s_waitcnt lgkmcnt(0)')
    pkadd(16,16,20)
    A('v_pk_add_f32 v[16:17], v[16:17], v[18:19]','v_add_f32 v16, v16, v17','v_cvt_pk_bf16_f32 v16, v16, v16')
    A('buffer_store_short v16, v13, s[44:47], s10 offen')
    stamp_now(11)
    A('s_mov_b64 exec, 1','s_cmp_lg_u32 s2, 0',f's_cbranch_scc1 {fin}')
    if PROBE>=0:
        pl=newlab('pl')
        A('s_memrealtime s[80:81]',f'v_mov_b32 v31, {STL}','ds_read_b32 v30, v31','s_waitcnt lgkmcnt(0)','v_readfirstlane_b32 s84, v30')
        if PROBE==11: A('s_mov_b32 s84, s80')
        A('s_sub_u32 s84, s84, s82','s_min_u32 s84, s84, 10000',f's_mul_i32 s84, s84, {PMUL}')
        A(f'{pl}:','s_memrealtime s[86:87]','s_waitcnt lgkmcnt(0)','s_sub_u32 s86, s86, s80','s_cmp_lt_u32 s86, s84',f's_cbranch_scc1 {pl}')
    A('v_mov_b32 v9, s42','v_mov_b32 v8, 0',f'buffer_store_dword v9, v8, s[52:55], 0 offen offset:{EPOCH}')
    A(f'{fin}:')
    flush_stamps(role)
    A('s_endpgm')

def gemv_loop(n, credits):
    A(f's_waitcnt vmcnt({n})')
    for t in range(n):
        a=(28,120)[t&1]
        buildA(a, 16+t//2, t&1)
        A(f's_waitcnt vmcnt({n-1-t})')
        A('s_memrealtime s[98:99]' if (FINE==3 and t==0) else 's_nop 0')
        mfma(124,a,32+4*t,t==0)
        if t in credits: A('s_mov_b64 exec, 1','ds_add_u32 v6, v3','s_mov_b64 exec, -1')
    A('s_nop 7')
    for r in range(4): A(f'v_bfi_b32 v{124+r}, s56, v7, v{124+r}')
    A('buffer_store_dwordx4 v[124:127], v5, s[52:55], s13 offen sc1')

A('s_setprio 3')
A('s_mul_i32 s9, s2, 293','s_lshr_b32 s9, s9, 11','s_mul_i32 s10, s9, 7','s_sub_u32 s10, s2, s10')
A('s_mul_i32 s11, s10, 88','s_mul_i32 s12, s10, 80','s_add_u32 s12, s12, 16','s_min_u32 s11, s11, s12')
A('s_cmp_lt_u32 s10, 2','s_cselect_b32 s14, 22, 20',f's_cselect_b32 s57, 0, {hex(OOB)}')
A('s_lshl_b32 s15, s9, 8','s_cmp_ge_u32 s2, 252',f's_cselect_b32 s15, {hex(OOB)}, s15')
A('s_lshr_b32 s12, s7, 1','s_mul_i32 s13, s12, 72','s_and_b32 s8, s7, 1','s_lshl_b32 s58, s4, 1','s_add_u32 s58, s58, s8','s_lshl_b32 s59, s58, 8')
A('s_lshl_b32 s43, s3, 10','s_add_u32 s43, s43, 8192')
A('s_cmp_eq_u32 s3, 0','s_cselect_b32 s11, s13, s11','s_cselect_b32 s14, 18, s14','s_cselect_b32 s15, s59, s15',f's_cselect_b32 s56, {hex(OOB)}, 0','s_cselect_b32 s57, 0, s57')
A('s_mul_i32 s8, s14, s43','v_mul_u32_u24 v3, s8, v2','v_lshl_add_u32 v3, v1, 4, v3')
A('v_bfe_u32 v4, v0, 3, 1','v_mul_u32_u24 v4, 1152, v4','s_lshl_b32 s8, s14, 1','v_mul_u32_u24 v5, s8, v2','v_add_u32 v4, v4, v5')
A('s_lshl_b32 s8, s11, 1','s_mul_i32 s11, s11, s43','s_add_u32 s11, s11, s15','s_mul_i32 s50, s43, 576','s_mov_b32 s51, 0x20000','s_mov_b32 s46, 2304','s_mov_b32 s47, 0x20000','s_cmp_eq_u32 s3, 0')
A('s_waitcnt lgkmcnt(0)')
if FINE==3: A('s_memrealtime s[94:95]')
A(f's_load_dword s40, s[38:39], {EPOCH}')
A('s_mov_b32 s44, s16','s_mov_b32 s45, s17','s_cselect_b32 s48, s22, s28','s_cselect_b32 s49, s23, s29')
if B0: A('s_cbranch_scc1 L_nb0','s_barrier','L_nb0:')
stamp(22,'Q')
A('buffer_load_dwordx4 v[16:19], v4, s[44:47], s8 offen','buffer_load_dwordx4 v[20:23], v4, s[44:47], s8 offen offset:16','buffer_load_dwordx3 v[24:26], v4, s[44:47], s8 offen offset:32')
for t in range(22):
    A(f'buffer_load_dwordx4 v[{32+4*t}:{35+4*t}], v3, s[48:51], s11 offen{PW}')
    if t<21: A('s_add_u32 s11, s11, s43')
    if t==17: A('s_add_u32 s11, s11, s56')
    if t==19: A('s_add_u32 s11, s11, s57')
if B0: A('s_cmp_lg_u32 s3, 0','s_cbranch_scc1 L_nb1','s_barrier','L_nb1:')
if FINE==3: A('s_memrealtime s[96:97]')
stamp(21,'Q')
A('s_barrier')
A('s_branch L_QH2')
A('L_disp:')
A('s_cmp_eq_u32 s3, 2','s_cbranch_scc1 L_L')
A('v_mov_b32 v4, 0','v_lshlrev_b32 v5, 2, v0',f'v_add_u32 v5, {hex(ML)}, v5','ds_write_b32 v5, v4','s_waitcnt lgkmcnt(0)')
epoch_load()
A('s_barrier')
A('s_cmp_eq_u32 s3, 3','s_cbranch_scc1 L_X','s_cmp_ge_u32 s3, 8','s_cbranch_scc1 L_W','s_branch L_C')
A('L_L:','s_setprio 3')
for u in range(4): A(f'v_add_u32 v8, {4*u}, v2','v_xor_b32 v8, v8, v1','v_lshlrev_b32 v8, 4, v8',f'v_lshl_add_u32 v{12+u}, v2, 8, v8')
A('s_lshl_b32 s12, s5, 4','s_add_u32 s12, s12, s4','s_lshl_b32 s12, s12, 21','s_lshl_b32 s13, s6, 16','s_add_u32 s12, s12, s13','s_add_u32 s12, s12, 0x180000')
A('s_lshr_b32 s13, s2, 3','s_add_u32 s13, s13, s2','s_lshl_b32 s13, s13, 12','s_mov_b32 s46, 0x4000000','s_mov_b32 s47, 0x20000','s_mov_b32 s50, 0x4000000','s_mov_b32 s51, 0x20000')
A('v_lshlrev_b32 v3, 4, v0',f'v_mov_b32 v9, {hex(LD)}','s_waitcnt lgkmcnt(0)')
A('s_mov_b32 s44, s18','s_mov_b32 s45, s19','s_mov_b32 s48, s20','s_mov_b32 s49, s21')
epoch_load()
A('s_barrier')
stamp(20,'L')
n=0; sig=0
def signal(upto):
    global sig
    if upto>sig:
        sig=upto
        A(f'v_mov_b32 v10, {upto}','ds_write_b32 v9, v10')
NT=32
for i in range(NT):
    for u in range(4):
        if n in RAMPC: lds_spin(CR,RAMPC[n],16,'cr',sleep=0)
        if n==RAMPN:
            tag_ready(); A('s_barrier')
        if u==0: A('s_and_b32 s14, s13, 0xf000','s_add_u32 s14, s14, s12','s_add_u32 s13, s13, 0x1000',f's_mov_b32 m0, {hex(i*4096)}')
        w = RAMPN if n==RAMPN else (WIN2 if (WIN2 and n>=N2) else WIN)
        if n>=w:
            A(f's_waitcnt vmcnt({w-1})')
            signal((n-w+1)//4)
        elif u==0: A('s_nop 0')
        if i<16: A(f'buffer_load_dwordx4 v{12+u}, s[44:47], s14 offen offset:{u*1024}{PKV} lds')
        else: A(f'buffer_load_dwordx4 v3, s[48:51], s14 offen offset:{u*1024}{PKV} lds')
        n+=1
stamp(14,'L')
while sig<NT:
    A(f's_waitcnt vmcnt({4*NT-4*(sig+1)})')
    signal(sig+1)
stamp(3,'L')
LRED=len(L)
A('s_branch L_Lred')
A('.p2align 6','L_QH2:')
srd(52,38,WS_SIZE); A('s_mov_b32 s41, 0xfff')
A(f's_mul_i32 s13, s10, {2*4608*4}','s_lshl_b32 s8, s15, 1','s_add_u32 s13, s13, s8',f's_add_u32 s13, s13, {hex(HP)}')
A('s_lshl_b32 s8, s4, 14','s_lshl_b32 s9, s12, 10','s_add_u32 s8, s8, s9','s_and_b32 s9, s7, 1','s_lshl_b32 s9, s9, 9','s_add_u32 s8, s8, s9',f's_add_u32 s8, s8, {hex(QP)}')
A('s_cmp_ge_u32 s2, 252',f's_cselect_b32 s13, {hex(OOB)}, s13','s_cmp_eq_u32 s3, 0','s_cselect_b32 s13, s8, s13','s_mul_i32 s8, s3, 10240','s_add_u32 s8, s8, 8192')
A('v_lshrrev_b32 v5, 1, v2','v_mul_u32_u24 v5, s8, v5','v_lshl_add_u32 v5, v1, 5, v5','v_and_b32 v6, 1, v2','v_lshl_add_u32 v5, v6, 4, v5')
tag_ready()
A('s_barrier')
selectors(8, 120)
A(f'v_mov_b32 v6, {hex(CR)}','v_mov_b32 v3, 1','s_cmp_eq_u32 s3, 0',f's_cselect_b32 s56, {hex((1<<QB)-1)}, s41','v_and_b32 v27, s56, v7')
gemv_loop(22,(9,17))
A('s_cmp_lg_u32 s3, 0','s_cbranch_scc1 L_H2')
A('s_getreg_b32 s15, hwreg(HW_REG_XCC_ID, 0, 3)','s_lshl_b32 s8, s42, 3','s_or_b32 s15, s15, s8')
A('v_mov_b32 v25, v27','v_lshlrev_b32 v26, 7, v0','v_mov_b32 v27, s15','s_lshl_b32 s14, s4, 11','s_lshl_b32 s8, s7, 2','s_add_u32 s14, s14, s8',f's_add_u32 s14, s14, {hex(FL)}')
A('s_mov_b64 exec, 0xffff','buffer_store_dword v27, v26, s[52:55], s14 offen sc1','s_mov_b64 exec, -1')
stamp(1,'Q')
if FINE==3:
    A('s_waitcnt lgkmcnt(0)','s_lshl_b32 s8, s2, 7', f's_add_u32 s8, s8, {hex(STAMP_OFF)}','v_mov_b32 v22, 0')
    for sr,k in ((82,4),(94,5),(96,13),(98,15)):
        A(f'v_mov_b32 v20, s{sr}',f'v_mov_b32 v21, s{sr+1}',f'buffer_store_dwordx2 v[20:21], v22, s[52:55], s8 offen offset:{8*k}','s_nop 1')
A('v_lshlrev_b32 v5, 4, v0')
A('s_lshl_b32 s13, s4, 1','s_add_u32 s13, s13, s5','s_lshl_b32 s13, s13, 13',f's_add_u32 s13, s13, {hex(QP)}','s_add_u32 s14, s13, 4096')
A('s_lshl_b32 s8, s4, 4','s_add_u32 s8, s8, s7','s_lshl_b32 s8, s8, 7',f's_add_u32 s8, s8, {hex(FL)}','s_add_u32 s46, s38, s8','s_addc_u32 s47, s39, 0')
A('s_mov_b32 s8, 1',f's_mov_b32 s62, {GSPIN}','L_qprobe:',f's_sleep {QSL}','s_load_dwordx16 s[64:79], s[46:47], 0 glc','s_sub_u32 s62, s62, 1','s_cbranch_scc1 L_qfetch0','s_waitcnt lgkmcnt(0)')
A('s_xor_b32 s8, s64, s15')
for p in range(1,16): A(f's_xor_b32 s9, s{64+p}, s15','s_or_b32 s8, s8, s9')
A('s_lshr_b32 s9, s8, 3')
A('s_cbranch_scc1 L_qprobe','L_qfetch0:',f's_mov_b32 s62, {GSPIN}','s_waitcnt lgkmcnt(0)')
if QFAST: A('s_cmp_eq_u32 s8, 0',f's_cselect_b32 s9, {QA-QP}, 0','s_add_u32 s13, s13, s9','s_add_u32 s14, s14, s9')
if FINE==1: stamp(8,'Q')
A('L_qfetch:')
if NOQ: A('s_branch L_qgo')
for r in range(8): A(f'buffer_load_dwordx4 v[{32+4*r}:{35+4*r}], v5, s[52:55], s{13 if r<4 else 14} offen offset:{(r&3)*1024} sc1')
A('s_sub_u32 s62, s62, 1','s_cbranch_scc1 L_qgo','v_mov_b32 v6, 0')
for r in range(8):
    A(f's_waitcnt vmcnt({7-r})')
    for k in range(4): A(f'v_xor_b32 v{32+4*r+k}, v25, v{32+4*r+k}')
    A(f'v_or3_b32 v6, v6, v{32+4*r}, v{33+4*r}',f'v_or3_b32 v6, v6, v{34+4*r}, v{35+4*r}')
A('v_and_b32 v6, s56, v6','v_cmp_ne_u32 vcc, 0, v6','s_cbranch_vccnz L_qfetch','L_qgo:','s_waitcnt vmcnt(0)')
for r in (0,2,4,6): pkadd(32+4*r,32+4*r,36+4*r)
pkadd(32,32,40); pkadd(48,48,56); pkadd(32,32,48)
A('v_cvt_pk_bf16_f32 v32, v32, v33','v_cvt_pk_bf16_f32 v33, v34, v35','v_lshlrev_b32 v5, 3, v0',f'v_add_u32 v5, {hex(QL)}, v5','ds_write_b64 v5, v[32:33]')
A('s_cmp_eq_u32 s8, 0',f's_cselect_b32 s9, {1+FAST}, 1','v_mov_b32 v6, s9',f'v_mov_b32 v5, {hex(QF)}','ds_write_b32 v5, v6')
stamp(2,'Q')
if not CG:
    A('v_lshlrev_b32 v123, 11, v1','v_lshl_add_u32 v122, v2, 4, v123')
    A('s_lshl_b32 s43, s4, 15','s_lshl_b32 s8, s7, 7','s_add_u32 s43, s43, s8',f's_add_u32 s43, s43, {hex(OP)}')
    A('v_lshlrev_b32 v121, 3, v0',f'v_add_u32 v121, {hex(YO)}, v121',f'v_mov_b32 v120, {hex(YOF)}','v_mov_b32 v119, 1')
    lds_spin(PB,1,104,'oc',sleep=OCS)
    if WDK: lds_spin(WD,WDK,104,'wd',sleep=0)
    if FINE==4: stamp(4,'Q')
    if PR:
        for k in range(PR):
            if k: A(f's_sleep {PSL}')
            A(f'buffer_load_dwordx4 v[{16+8*k}:{19+8*k}], v122, s[52:55], s43 offen sc1',f'buffer_load_dwordx4 v[{20+8*k}:{23+8*k}], v123, s[52:55], s43 offen offset:64 sc1')
        if WQI: A(f'ds_write_b32 v120, v119 offset:{QI-YOF}')
        for k in range(PR):
            A(f's_waitcnt vmcnt({2*(PR-1-k)})')
            for i in range(8): A(f'v_xor_b32 v{64+i}, v7, v{16+8*k+i}')
            A('v_or3_b32 v74, v64, v65, v66','v_or3_b32 v74, v74, v67, v68','v_or3_b32 v74, v74, v69, v70','v_or_b32 v74, v74, v71','v_and_b32 v74, s41, v74','v_cmp_ne_u32 vcc, 0, v74','s_cbranch_vccz L_odone')
    mpoll([(64,4,'buffer_load_dwordx4 v[64:67], v122, s[52:55], s43 offen sc1'),(68,4,'buffer_load_dwordx4 v[68:71], v123, s[52:55], s43 offen offset:64 sc1')],'op',74)
    A('L_odone:')
    if FINE==4:
        A(f's_sub_u32 s8, {GSPIN}, s62','s_mul_i32 s8, s8, 100','s_waitcnt lgkmcnt(0)','s_add_u32 s98, s82, s8','s_addc_u32 s99, s83, 0','s_lshl_b32 s8, s2, 7', f's_add_u32 s8, s8, {hex(STAMP_OFF)}','v_mov_b32 v22, 0','v_mov_b32 v20, s98','v_mov_b32 v21, s99','buffer_store_dwordx2 v[20:21], v22, s[52:55], s8 offen offset:120')
    stamp(7,'Q')
    allreduce('v_max_f32',[70],['x1','x2','hm'])
    A('v_sub_f32 v68, v68, v70','v_exp_f32 v68, v68','s_nop 0','v_mul_f32 v69, v68, v69')
    for k in range(4): A(f'v_mul_f32 v{64+k}, v68, v{64+k}')
    allreduce('v_add_f32',[69,64,65,66,67],['x1','x2','hm'])
    A('v_rcp_f32 v69, v69','s_nop 0')
    for k in range(4): A(f'v_mul_f32 v{64+k}, v69, v{64+k}')
    A('v_cvt_pk_bf16_f32 v64, v64, v65','v_cvt_pk_bf16_f32 v65, v66, v67','ds_write_b64 v121, v[64:65]','ds_write_b32 v120, v119')
reducer('Q')

A('.p2align 6')
A('L_H2:')
stamp(12,'H')
A('v_and_b32 v6, 7, v0','v_lshlrev_b32 v6, 1, v6','v_bfe_u32 v9, v0, 3, 1','v_add_u32 v6, v6, v9',f'v_mul_u32_u24 v6, {4608*4}, v6')
A('v_mov_b32 v9, v6','v_lshl_add_u32 v6, v2, 4, v6')
A('s_mul_i32 s11, s2, 72',f's_add_u32 s11, s11, {hex(HP)}','s_and_b32 s8, s2, 1','s_lshl_b32 s8, s8, 3','s_sub_u32 s12, s11, s8')
A('s_cmp_eq_u32 s8, 0','s_cselect_b32 s64, 0, -1','s_mov_b32 s65, s64','s_mov_b32 s66, 0xffff0000','s_mov_b32 s67, 0xffff0000')
A('v_lshlrev_b32 v121, 4, v0',f'v_add_u32 v121, {hex(YH)}, v121',f'v_mov_b32 v120, {hex(YHF)}','v_mov_b32 v119, 1')
for k in range(8): A(f'v_mov_b32 v{64+k}, 0')
A('s_mov_b32 s78, 0x7f7f7f7f','s_mov_b32 s79, 0x7f7f7f7f')
lds_spin(LD,HTH,104,'hl',sleep=4)
if not NOH: mpoll([(64,4,'buffer_load_dwordx4 v[64:67], v6, s[52:55], s11 offen sc1'),(68,4,'buffer_load_dwordx4 v[68:71], v9, s[52:55], s12 offen offset:64 sc1')],'hp',72,init='s[78:79]')
A('v_cndmask_b32 v68, v68, v70, s[64:65]','v_cndmask_b32 v69, v69, v71, s[64:65]','v_cndmask_b32 v68, v68, v69, s[66:67]','s_nop 0')
stamp(13,'H')
allreduce('v_add_f32',[64,65,66,67,68],['x1','x2','hm'])
for k in range(5): A(f'v_max_f32 v{64+k}, 0, v{64+k}')
A('v_cvt_pk_bf16_f32 v64, v64, v65','v_cvt_pk_bf16_f32 v65, v66, v67','v_cvt_pk_bf16_f32 v66, v68, v68','ds_write_b128 v121, v[64:67]','ds_write_b32 v120, v119')
reducer('H')

A('L_Lred:')
reducer('L')
A('.p2align 6','L_C:','s_setprio 2','s_sub_u32 s15, s3, 4')
A('v_lshlrev_b32 v122, 4, v0',f'v_add_u32 v122, {hex(OACC)}, v122','s_lshl_b32 s8, s15, 10','v_add_u32 v125, s8, v122')
tag_ready()
A(*BB)
selectors(8,104)
A('s_lshl_b32 s8, s15, 12')
for ks in range(4): A(f'v_add_u32 v4, {4*ks}, v2','v_xor_b32 v4, v4, v1','v_lshlrev_b32 v4, 4, v4','v_lshl_add_u32 v4, v1, 8, v4',f'v_add_u32 v{116+ks}, s8, v4')
A('v_lshlrev_b32 v3, 4, v0',f's_add_u32 s9, s8, {hex(VL)}','v_add_u32 v3, s9, v3')
A('v_and_b32 v5, 1, v0','v_lshlrev_b32 v5, 8, v5','v_lshl_add_u32 v5, v2, 4, v5',f'v_add_u32 v5, {hex(QL)}, v5')
A('s_lshl_b32 s8, s15, 8',f's_add_u32 s8, s8, {hex(PL)}')
A('v_and_b32 v6, 3, v0','v_lshlrev_b32 v6, 5, v6','v_lshrrev_b32 v4, 2, v0','v_lshl_add_u32 v6, v4, 1, v6','v_add_u32 v6, s8, v6')
A('v_bfe_u32 v4, v0, 3, 1','v_lshl_add_u32 v4, v4, 2, v2','v_lshlrev_b32 v4, 5, v4','v_add_u32 v123, s8, v4')
A('v_lshrrev_b32 v124, 5, v0','v_lshlrev_b32 v124, 4, v124',f'v_add_u32 v124, {hex(ML)}, v124')
A('v_lshrrev_b32 v121, 5, v0','v_lshlrev_b32 v121, 3, v121','v_lshrrev_b32 v4, 1, v1','v_add_u32 v121, v121, v4','v_lshlrev_b32 v121, 7, v121')
A('v_and_b32 v4, 1, v1','v_lshl_add_u32 v120, v4, 5, v121','v_and_b32 v4, 1, v2','v_lshl_add_u32 v120, v4, 4, v120')
A('s_lshl_b32 s12, s4, 1','s_add_u32 s12, s12, s5','s_lshl_b32 s12, s12, 3','s_add_u32 s12, s12, s6','s_lshl_b32 s12, s12, 11',f's_add_u32 s12, s12, {hex(OP)}')
if DV:
    srd(44,20,0x4000000)
    A('s_lshl_b32 s14, s5, 4','s_add_u32 s14, s14, s4','s_lshl_b32 s14, s14, 21','s_lshl_b32 s8, s6, 16','s_add_u32 s14, s14, s8','s_add_u32 s14, s14, 0x180000')
    A('s_lshr_b32 s8, s2, 3','s_add_u32 s8, s8, s2','s_add_u32 s8, s8, s15','s_add_u32 s8, s8, 12','s_and_b32 s8, s8, 15','s_lshl_b32 s8, s8, 12','s_add_u32 s14, s14, s8','v_lshlrev_b32 v126, 4, v0')
A(f's_mov_b32 s43, {hex(f2u(1.4426950408889634 if RND else SC))}',f's_mov_b32 s74, {hex(f2u(0.08838834764831845))}')
A('s_mov_b32 s64, 0xffff0000','s_mov_b32 s65, 0','s_mov_b32 s66, 0','s_mov_b32 s67, 0xffff','s_mov_b32 s68, 0','s_mov_b32 s69, 0xffff0000')
if STAMPS:
    stamp_regs['C']=[0]; A('s_mov_b64 s[84:85], s[82:83]')
if PT:
    lds_spin(LD,4,16,'pt',sleep=4)
    A('s_cmp_lg_u32 s15, 0','s_cbranch_scc1 L_Cnopt','buffer_load_dwordx4 v[76:79], v120, s[52:55], s12 offen','L_Cnopt:')
lds_spin(QF,1,16,'qf',sleep=2)
A('s_mov_b32 s73, s63')
for ks in range(4): A(f'ds_read_b128 v[{80+4*ks}:{83+4*ks}], v5 offset:{ks*64}')
A('s_add_u32 s13, s15, 13')
lds_spin(LD,'s13',16,'kl')
A('s_mov_b32 s72, s63','s_waitcnt vmcnt(0)')
for t in range(4):
    for ks in range(4): A(f'ds_read_b128 v[{16+16*t+4*ks}:{19+16*t+4*ks}], v{116+ks} offset:{t*16384}')
for t in range(4):
    A(f's_waitcnt lgkmcnt({12-4*t})')
    for ks in range(4): mfma(96+4*t, 80+4*ks, 16+16*t+4*ks, ks==0)
A('s_nop 7')
for h in range(2): A(f'v_cndmask_b32 v{16+h}, v{96+h}, v{100+h}, s[64:65]')
for h in range(2): A(f'v_cndmask_b32 v{16+h}, v{16+h}, v{104+h}, s[66:67]')
for h in range(2): A(f'v_cndmask_b32 v{16+h}, v{16+h}, v{108+h}, s[68:69]')
if RND:
    A('v_cvt_pk_bf16_f32 v18, v16, v17','v_lshlrev_b32 v16, 16, v18','v_and_b32 v17, 0xffff0000, v18','v_mul_f32 v16, s74, v16','v_mul_f32 v17, s74, v17')
    A('v_cvt_pk_bf16_f32 v18, v16, v17','v_lshlrev_b32 v16, 16, v18','v_and_b32 v17, 0xffff0000, v18')
A('v_mov_b32 v18, v16','v_mov_b32 v19, v17')
allreduce('v_max_f32',[18,19],['x1','x2','hm','m','r16','r32'],tmp=20)
A('v_mul_f32 v18, s43, v18','v_mul_f32 v19, s43, v19','v_fma_f32 v16, v16, s43, -v18','v_fma_f32 v17, v17, s43, -v19')
A('v_exp_f32 v16, v16','v_exp_f32 v17, v17','s_nop 0','v_cvt_pk_bf16_f32 v22, v16, v17')
A('ds_write_b16 v6, v22','ds_write_b16_d16_hi v6, v22 offset:128','ds_read_b128 v[80:83], v123','ds_read_b128 v[84:87], v123 offset:16')
allreduce('v_add_f32',[16,17],['x1','x2','hm','m','r16','r32'],tmp=20)
A('s_lshl_b32 s8, s15, 2',f's_add_u32 s8, s8, {hex(ML)}','v_mov_b32 v5, s8','s_mov_b32 s70, -1','s_mov_b32 s71, 0')
A('v_cndmask_b32 v96, v19, v18, s[70:71]')
A('s_mov_b64 exec, 1','ds_write2_b32 v5, v18, v19 offset0:0 offset1:4','ds_write2_b32 v5, v16, v17 offset0:8 offset1:12')
A('v_mov_b32 v6, 1',f'v_mov_b32 v5, {hex(PF)}','ds_add_u32 v5, v6','s_mov_b64 exec, -1')
stamp(4,'C')
def cg_setup():
    A('v_lshlrev_b32 v117, 11, v1','v_lshl_add_u32 v116, v2, 4, v117')
    A('s_lshl_b32 s75, s4, 15','s_lshl_b32 s8, s7, 7','s_add_u32 s75, s75, s8',f's_add_u32 s75, s75, {hex(OP)}')
    A('v_lshlrev_b32 v118, 3, v0',f'v_add_u32 v118, {hex(YO)}, v118',f'v_mov_b32 v119, {hex(YOF)}')
def factors():
    if CG: cg_setup()
    lds_spin(PF,4,104,'pf')
    A('ds_read_b128 v[88:91], v124','ds_read_b128 v[92:95], v124 offset:32','s_waitcnt lgkmcnt(0)')
    A('v_max3_f32 v97, v88, v89, v90','v_max_f32 v97, v97, v91','v_and_b32 v97, 0xfffff000, v97')
    for k in range(4): A(f'v_sub_f32 v{88+k}, v{88+k}, v97')
    A('v_sub_f32 v96, v96, v97')
    for k in range(4): A(f'v_exp_f32 v{88+k}, v{88+k}')
    A('v_exp_f32 v96, v96','v_mul_f32 v99, v88, v92')
    for k in range(1,4): A(f'v_fmac_f32 v99, v{88+k}, v{92+k}')
    A('v_or_b32 v100, v97, v7','v_bfi_b32 v101, s41, v7, v99','v_mov_b32 v102, v100','v_mov_b32 v103, v101')
    A('v_mov_b32 v106, 1',f'v_mov_b32 v107, {hex(OC)}')
A('s_waitcnt lgkmcnt(0)')
for tau in range(4):
    for u in range(4): buildA(32+4*u, 80+(4*tau+u)//2, u&1)
    if tau==3: factors()
    sk=newlab('vsk')
    A(f's_add_u32 s13, s15, {17+4*tau}','s_cmp_ge_u32 s72, s13',f's_cbranch_scc1 {sk}')
    lds_spin(LD,'s13',104,'vl',sleep=0)
    A('s_mov_b32 s72, s63',f'{sk}:')
    for u in range(4): A(f'ds_read_b128 v[{16+4*u}:{19+4*u}], v3 offset:{tau*16384+u*1024}')
    for u in range(4):
        A(f's_waitcnt lgkmcnt({3-u})')
        mfma(112,32+4*u,16+4*u,tau==0 and u==0)
A('s_nop 7')
for r in range(4): A(f'v_mul_f32 v{112+r}, v96, v{112+r}')
A('ds_write_b128 v125, v[112:115]','s_mov_b64 exec, 1','ds_add_rtn_u32 v106, v107, v106','s_mov_b64 exec, -1')
if SPEC:
    for w in range(4): A(f'ds_read_b128 v[{16+4*w}:{19+4*w}], v122 offset:{1024*w}')
A(f's_waitcnt lgkmcnt({4 if SPEC else 0})')
A('v_readfirstlane_b32 s8, v106','s_cmp_lg_u32 s8, 3','s_cbranch_scc1 L_Cnopub')
if not SPEC:
    for w in range(4): A(f'ds_read_b128 v[{16+4*w}:{19+4*w}], v122 offset:{1024*w}')
A('s_setprio 3','s_waitcnt lgkmcnt(2)')
pkadd(16,16,20)
A('s_waitcnt lgkmcnt(0)')
pkadd(24,24,28); pkadd(112,16,24)
for r in range(4): A(f'v_bfi_b32 v{112+r}, s41, v7, v{112+r}')
A('s_cmp_eq_u32 s73, 2','s_cbranch_scc1 L_Cfast')
A('buffer_store_dwordx4 v[112:115], v120, s[52:55], s12 offen sc1')
A('s_mov_b32 exec_lo, 0x5555','s_mov_b32 exec_hi, 0x5555','buffer_store_dwordx4 v[100:103], v121, s[52:55], s12 offen offset:64 sc1','s_branch L_Cpubd')
A('L_Cfast:','buffer_store_dwordx4 v[112:115], v120, s[52:55], s12 offen')
A('s_mov_b32 exec_lo, 0x5555','s_mov_b32 exec_hi, 0x5555','buffer_store_dwordx4 v[100:103], v121, s[52:55], s12 offen offset:64')
A('L_Cpubd:','s_mov_b64 exec, -1')
if CG:
    A('s_mov_b32 s43, s75')
    A('buffer_load_dwordx4 v[16:19], v116, s[52:55], s43 offen sc1','buffer_load_dwordx4 v[20:23], v117, s[52:55], s43 offen offset:64 sc1',f'ds_write_b32 v119, v119 offset:{QI-YOF}')
    stamp_now2(6)
    A('s_waitcnt vmcnt(0)')
    for i in range(8): A(f'v_xor_b32 v{64+i}, v7, v{16+i}')
    A('v_or3_b32 v74, v64, v65, v66','v_or3_b32 v74, v74, v67, v68','v_or3_b32 v74, v74, v69, v70','v_or_b32 v74, v74, v71','v_and_b32 v74, s41, v74','v_cmp_ne_u32 vcc, 0, v74','s_cbranch_vccz L_codone')
    mpoll([(64,4,'buffer_load_dwordx4 v[64:67], v116, s[52:55], s43 offen sc1'),(68,4,'buffer_load_dwordx4 v[68:71], v117, s[52:55], s43 offen offset:64 sc1')],'op',74)
    A('L_codone:')
    stamp_now2(7)
    allreduce('v_max_f32',[70],['x1','x2','hm'])
    A('v_sub_f32 v68, v68, v70','v_exp_f32 v68, v68','s_nop 0','v_mul_f32 v69, v68, v69')
    for k in range(4): A(f'v_mul_f32 v{64+k}, v68, v{64+k}')
    allreduce('v_add_f32',[69,64,65,66,67],['x1','x2','hm'])
    A('v_rcp_f32 v69, v69','s_nop 0')
    for k in range(4): A(f'v_mul_f32 v{64+k}, v69, v{64+k}')
    A('v_cvt_pk_bf16_f32 v64, v64, v65','v_cvt_pk_bf16_f32 v65, v66, v67','ds_write_b64 v118, v[64:65]','ds_write_b32 v119, v119')
    stamp_flush2()
else:
    A(f'ds_write_b32 v107, v107 offset:{PB-OC}')
    stamp_now(6)
A('L_Cnopub:','s_waitcnt lgkmcnt(0)')
stamp(5,'C')
reducer('C')

A('.p2align 6','L_X:')
A('v_and_b32 v9, 31, v0','v_mul_u32_u24 v9, 36, v9','v_lshrrev_b32 v10, 5, v0','v_mul_u32_u24 v10, 1152, v10','v_add_u32 v10, v10, v9')
srd(44,16,2304); srd(48,32,1152)
tag_ready()
A(*BB)
for k in range(3): A(f'buffer_load_dwordx3 v[{64+4*k}:{66+4*k}], v10, s[44:47], 0 offen offset:{12*k}')
for k in range(3): A(f'buffer_load_dwordx3 v[{80+4*k}:{82+4*k}], v9, s[48:51], 0 offen offset:{12*k}')
if PTO:
    A('v_mov_b32 v4, 0','s_mov_b64 exec, 1')
    if PTO&1:
        srd(56,34,2304); A('buffer_load_dword v102, v4, s[56:59], 0 offen')
    if PTO&2:
        A('s_mul_i32 s8, s2, 4608',f's_add_u32 s8, s8, {hex(FP)}','buffer_load_dword v103, v4, s[52:55], s8 offen')
    if PTO&4:
        A('s_lshl_b32 s12, s5, 4','s_add_u32 s12, s12, s4','s_lshl_b32 s12, s12, 21','s_add_u32 s12, s12, 0x180000')
        srd(56,20,0x4000000); A('buffer_load_dword v104, v4, s[56:59], s12 offen')
        A('s_lshl_b32 s12, s4, 4','s_add_u32 s12, s12, s7',f's_mul_i32 s12, s12, {16*1152}')
        srd(56,24,4096*1152); A('buffer_load_dword v105, v4, s[56:59], s12 offen')
        A(f's_mul_i32 s12, s2, {18*1152}')
        srd(56,30,4608*1152); A('buffer_load_dword v106, v4, s[56:59], s12 offen')
    A('s_mov_b64 exec, -1')
A('v_mov_b32 v100, 0','s_waitcnt vmcnt(0)')
for k in range(3):
    for i in range(3):
        x=64+4*k+i; w=80+4*k+i
        A(f'v_lshlrev_b32 v96, 16, v{x}',f'v_lshlrev_b32 v97, 16, v{w}',f'v_and_b32 v98, 0xffff0000, v{x}',f'v_and_b32 v99, 0xffff0000, v{w}')
        A('v_mul_f32 v96, v96, v97','v_mul_f32 v98, v98, v99','v_cvt_pk_bf16_f32 v96, v96, v98','v_lshlrev_b32 v97, 16, v96','v_and_b32 v98, 0xffff0000, v96')
        A('v_add_f32 v100, v100, v97','v_add_f32 v100, v100, v98')
allreduce('v_add_f32',[100],['x1','x2','hm','m','r16'],tmp=101)
A('v_cvt_pk_bf16_f32 v100, v100, v100','v_and_b32 v100, 0xffff0000, v100',f'v_mul_f32 v100, {hex(f2u(-1.4426950408889634))}, v100')
A('v_exp_f32 v100, v100','s_nop 0','v_add_f32 v100, 1.0, v100','v_rcp_f32 v100, v100','s_nop 0')
A('v_cvt_pk_bf16_f32 v100, v100, v100','v_and_b32 v100, 0xffff0000, v100')
A('v_sub_f32 v101, 1.0, v100','v_cvt_pk_bf16_f32 v101, v101, v101','v_and_b32 v101, 0xffff0000, v101')
A('v_lshrrev_b32 v9, 5, v0','v_lshlrev_b32 v9, 3, v9',f'v_add_u32 v9, {hex(GL)}, v9','ds_write_b64 v9, v[100:101]')
A('v_mov_b32 v9, 1',f'v_mov_b32 v10, {hex(GF)}','ds_write_b32 v10, v9')
reducer('X')

A('.p2align 6','L_W:')
A('s_sub_u32 s15, s3, 8')
A('v_lshlrev_b32 v3, 4, v1',f'v_mov_b32 v9, {hex(OOB)}','s_cmp_eq_u32 s15, 4','s_cselect_b32 s60, 0xff00ff00, 0','s_mov_b32 s61, s60')
A('v_cndmask_b32 v3, v3, v9, s[60:61]')
A(f'v_mul_u32_u24 v4, {4*1152}, v2','v_add_u32 v4, v4, v3')
A('v_mul_u32_u24 v5, 1152, v2','v_add_u32 v5, v5, v3','s_mov_b32 s62, 0','s_mov_b32 s63, -1','v_cndmask_b32 v5, v5, v9, s[62:63]')
A('s_lshl_b32 s8, s15, 8',f's_mul_i32 s10, s2, {18*1152}','s_add_u32 s10, s10, s8',f's_add_u32 s13, s10, {16*1152}')
A('s_lshl_b32 s12, s4, 4','s_add_u32 s12, s12, s7',f's_mul_i32 s12, s12, {16*1152}','s_add_u32 s12, s12, s8')
A('v_lshrrev_b32 v120, 5, v0','v_lshlrev_b32 v121, 3, v120',f'v_add_u32 v121, {hex(GL)}, v121')
A('v_mul_u32_u24 v120, 576, v120','v_lshl_add_u32 v120, v1, 3, v120','v_and_b32 v122, 1, v2','v_lshl_add_u32 v120, v122, 2, v120')
A('s_lshl_b32 s8, s15, 7','v_add_u32 v120, s8, v120')
if FLAY=='t': A('v_and_b32 v122, 15, v120','v_lshrrev_b32 v120, 4, v120','v_lshlrev_b32 v120, 14, v120','v_lshl_add_u32 v120, v122, 2, v120')
else: A('v_lshlrev_b32 v120, 2, v120')
A('v_cndmask_b32 v120, v120, v9, s[60:61]')
if PSW: A('s_and_b32 s14, s2, 7','s_lshl_b32 s14, s14, 5','s_lshr_b32 s8, s2, 3','s_add_u32 s14, s14, s8','s_lshl_b32 s14, s14, 6')
else: A('s_lshl_b32 s14, s2, 6')
if FLAY=='c': A('s_mul_i32 s14, s14, 72')
A(f's_add_u32 s14, s14, {hex(FP)}')
A('v_lshlrev_b32 v122, 4, v0',f'v_add_u32 v122, {hex(YH)}, v122','v_lshlrev_b32 v123, 3, v0',f'v_add_u32 v123, {hex(YO)}, v123')
srd(44,24,4096*1152); srd(48,30,4608*1152)
tag_ready()
A(*BB)
selectors(8,104)
thr=sum(t<<(6*i) for i,t in enumerate(THR))
A(f's_mov_b32 s8, {hex(thr)}','s_mul_i32 s9, s15, 6','s_lshr_b32 s8, s8, s9','s_and_b32 s64, s8, 63')
if PT:
    lds_spin(LD,8,104,'pt',sleep=4)
    A('buffer_load_dwordx4 v[76:79], v120, s[52:55], s14 offen')
lds_spin(GF,1,104,'gl',sleep=4)
A('ds_read_b64 v[72:73], v121')
lds_spin(LD,'s64',104,'wg',sleep=WGS)
if WPB<5:
    A(f's_cmp_lt_u32 s15, {WPB}','s_cbranch_scc1 L_Wnopb')
    lds_spin(QI if WQI else PB,1,104,'wpb',sleep=0)
    A('L_Wnopb:')
A('s_setprio 1')
for t in range(4): A(f'buffer_load_dwordx4 v[{16+4*t}:{19+4*t}], v4, s[48:51], s10 offen offset:{t*1152}{PW}')
A(f'buffer_load_dwordx4 v[32:35], v5, s[48:51], s13 offen{PW}')
for t in range(4): A(f'buffer_load_dwordx4 v[{36+4*t}:{39+4*t}], v4, s[44:47], s12 offen offset:{t*1152}{PW}')
stamp(15,'W')
lds_spin(YHF,1,104,'yh',sleep=1)
A('ds_read_b128 v[64:67], v122','s_waitcnt lgkmcnt(0)')
for t in range(5):
    a=104+4*(t&1)
    buildA(a, 64+t//2, t&1)
    A(f's_waitcnt vmcnt({8-t})','s_nop 0')
    mfma(116,a,16+4*t,t==0)
A('s_nop 7')
if WDK: A('v_mov_b32 v104, 1',f'v_mov_b32 v105, {hex(WD)}','s_mov_b64 exec, 1','ds_add_u32 v105, v104','s_mov_b64 exec, -1')
for r in range(4): A(f'v_mul_f32 v{116+r}, v73, v{116+r}')
A('s_setprio 3')
if FINE in (2,4):
    A('s_waitcnt vmcnt(0)'); stamp(8,'W')
lds_spin(YOF,1,104,'yo',sleep=0)
A('ds_read_b64 v[64:65], v123','s_waitcnt lgkmcnt(0)')
for t in range(4):
    buildA(80+4*t, 64+t//2, t&1)
    if t>0:
        A(f's_waitcnt vmcnt({4-t})')
        mfma(112,80+4*(t-1),36+4*(t-1),t==1)
A('s_waitcnt vmcnt(0)')
mfma(112,92,48,False)
A('s_nop 7')
for r in range(4): A(f'v_fma_f32 v{112+r}, v72, v{112+r}, v{116+r}')
for r in range(4): A(f'v_bfi_b32 v{112+r}, s41, v7, v{112+r}')
A('buffer_store_dwordx4 v[112:115], v120, s[52:55], s14 offen sc1')
stamp(9,'W')
red_id()
A(f's_cmp_ge_u32 s14, {NRED}','s_cbranch_scc1 L_Wend')
if ACK: A('s_waitcnt vmcnt(0)')
A('s_barrier','L_Wend:')
flush_stamps('W')
A('L_end:','s_endpgm','L_code_end:')
A('.section .rodata,"a"','.p2align 6',f'.amdhsa_kernel {KNAME}')
A('  .amdhsa_next_free_vgpr 128','  .amdhsa_next_free_sgpr 102','  .amdhsa_accum_offset 128')
A('  .amdhsa_group_segment_fixed_size 0','  .amdhsa_kernarg_size 96','  .amdhsa_user_sgpr_count 2','  .amdhsa_user_sgpr_kernarg_segment_ptr 1','  .amdhsa_system_sgpr_workgroup_id_x 1')
A('  .amdhsa_float_denorm_mode_32 3','.end_amdhsa_kernel')
import subprocess, re, os
def emit(nl):
    t='\n'.join(L)+'\n'
    return t.replace('PFSTEP',hex(0x100+0) if nl is None else f'{(nl+31)//32:#x}').replace('NLINES',hex(0x100) if nl is None else f'{nl:#x}')
def size_of(txt):
    open(out+'.tmp.s','w').write(txt)
    subprocess.run(['clang','-x','assembler','-target','amdgcn-amd-amdhsa','-mcpu=gfx950','-c',out+'.tmp.s','-o',out+'.tmp.o'],check=True)
    o=subprocess.run(['llvm-readelf','-S',out+'.tmp.o'],capture_output=True,text=True).stdout
    os.remove(out+'.tmp.s'); os.remove(out+'.tmp.o')
    m=re.search(r'\.text\s+PROGBITS\s+\w+\s+\w+\s+(\w+)',o)
    return int(m.group(1),16)
sz=size_of(emit(None)); nl=sz//128
txt=emit(nl); sz2=size_of(txt)
while nl*128>sz2:
    nl-=1; txt=emit(nl); sz2=size_of(txt)
open(out,'w').write(txt)
print('code bytes',sz2,end=' ')
print('lines',len(L),'lds',LDS,'ws end',hex(WS_END))
```

```python
import sys, struct
KNAME='gated_mix__sliding_block_cached__dense_activation_relu__decode_kernel'
opts=dict(a.split('=') for a in sys.argv[2:])
out=sys.argv[1]
def I(n,d): return int(opts.get(n,d))
STAMPS=I('stamps',0); PROBE=I('probe',-1); PMUL=I('pmul',2); FINE=I('fine',0)
SPIN=I('spin',1<<17); GSPIN=I('gspin',1<<17); WIN=I('win',32)
THR=[int(x) for x in opts.get('thr','26,29,28,28,28').split(',')]
RP=opts.get('ramp','20').split(',')
RAMPC={int(x.split(':')[0]):int(x.split(':')[1]) for x in RP[:-1]}; RAMPN=int(RP[-1])
SLP=I('slp',1); WIN2=I('win2',0); N2=I('n2',64); FLD=opts.get('fld','sc1').replace('+',' '); FSLP=I('fslp',0); FLAY=opts.get('flay','c'); FDL=I('fdl',0); PR=I('pr',1); PSL=I('psl',6); ACK=I('ack',1); WPB=I('wpb',2); CPF=I('cpf',24); CSZ=I('csz',0); SPEC=I('spec',1); WGS=I('wgs',2); RND=I('rnd',1); PTO=I('pto',0); QB=I('qb',4); WQI=I('wqi',1); OCS=I('ocs',0); DV=I('dv',0); DVT=I('dvt',21); B0=I('b0',0); PIPE=I('pipe',0); PGAP=I('pgap',0); CG=1; RM=I('rm',1); FAST=I('fast',1); NOQ=I('noq',0); NOH=I('noh',0); QFAST=I('qfast',0); WDK=I('wdk',0); HTH=I('hth',20); PSW=I('psw',1); QSL=I('qsl',4); PT=I('pt',0); NOST=I('nostore',0); NOPOLL=I('nopoll',0)
NRED=72
def pol(n):
    p=opts.get(n,'nt').replace('+',' ')
    return '' if p=='none' else ' '+p
PKV=pol('pkv'); PW=pol('pw')
def f2u(f): return struct.unpack('<I',struct.pack('<f',f))[0]
EPOCH=0x0
QP=0x1000
OP=QP+0x40000
HP=OP+0x80000
FP=HP+7*2*4608*4
QA=FP+256*4608
FL=QA+0x40000
WS_END=FL+256*128
WS_SIZE=0x10000000 if STAMPS else WS_END
STAMP_OFF=0x8000000
OOB=0x7f000000
VL=0x10000; SB=0x20000
QL=SB+0x000; PL=SB+0x200; ML=SB+0x600; QF=SB+0x640; PF=SB+0x644; OC=SB+0x648; FC=SB+0x64c; LD=SB+0x650; CR=SB+0x654; YHF=SB+0x658; YOF=SB+0x65c; WD=SB+0x660; PB=SB+0x664; QI=SB+0x668
GL=SB+0x680; GF=SB+0x690; OACC=SB+0x800; FSL=SB+0x1800; STL=SB+0x1A00; YH=SB+0x1C00; YO=SB+0x2000
LDS=SB+0x2200
SC=0.08838834764831845*1.4426950408889634
L=[]
def A(*ss):
    for s in ss:
        if NOST and s.startswith('buffer_store') and s.endswith(' sc1'): s='s_nop 0'
        if NOPOLL and s.startswith('buffer_load') and s.endswith(' sc1'): s='s_nop 0'
        L.append(s)
lab=[0]
def newlab(p):
    lab[0]+=1; return f'L_{p}{lab[0]}'
FIRST={'C':7 if FINE else 4,'L':2,'Q':0,'H':1,'X':3,'W':11 if FINE==2 else (12 if FINE==4 else 8)}
def srd(d,p,n):
    A(f's_mov_b32 s{d}, s{p}', f's_mov_b32 s{d+1}, s{p+1}', f's_mov_b32 s{d+2}, {hex(n)}', f's_mov_b32 s{d+3}, 0x20000')
stamp_regs={}
CUR=['']
def stamp(k, role):
    if FINE==5 and not (k in (9,) or (role=='L' and k in (12,13))): return
    if FINE in (3,4) and k in (4,5,13,15) and role!='Q': return
    if PROBE==k:
        sk=newlab('pk')
        A(f's_cmp_lg_u32 s3, {FIRST[role]}', f's_cbranch_scc1 {sk}')
        A('s_memrealtime s[84:85]','s_waitcnt lgkmcnt(0)','v_mov_b32 v30, s84',f'v_mov_b32 v31, {STL}','ds_write_b32 v31, v30','s_waitcnt lgkmcnt(0)')
        A(f'{sk}:')
    if not STAMPS or k>=16: return
    lst=stamp_regs.setdefault(role,[])
    i=len(lst); lst.append(k); assert i<8
    A(f's_memrealtime s[{84+2*i}:{85+2*i}]')
def stamp_now(k):
    if not STAMPS: return
    if FINE==5 and k==6: return
    A('s_memrealtime s[80:81]','s_waitcnt lgkmcnt(0)','v_mov_b32 v20, s80','v_mov_b32 v21, s81','v_mov_b32 v22, 0')
    A('s_lshl_b32 s8, s2, 7', f's_add_u32 s8, s8, {hex(STAMP_OFF)}')
    A(f'buffer_store_dwordx2 v[20:21], v22, s[52:55], s8 offen offset:{8*k}')
S2=[]
def stamp_now2(k):
    if not STAMPS or FINE==5: return
    A(f's_memrealtime s[{96+2*len(S2)}:{97+2*len(S2)}]'); S2.append(k)
def stamp_flush2():
    if not S2: return
    A('s_waitcnt lgkmcnt(0)','v_mov_b32 v22, 0','s_lshl_b32 s8, s2, 7', f's_add_u32 s8, s8, {hex(STAMP_OFF)}')
    for i,k in enumerate(S2): A(f'v_mov_b32 v20, s{96+2*i}',f'v_mov_b32 v21, s{97+2*i}',f'buffer_store_dwordx2 v[20:21], v22, s[52:55], s8 offen offset:{8*k}','s_nop 1')
def flush_stamps(role):
    if not STAMPS: return
    lst=stamp_regs.get(role,[])
    skip=newlab('nost')
    A('s_mov_b64 exec, -1', f's_cmp_lg_u32 s3, {FIRST[role]}', f's_cbranch_scc1 {skip}', 's_waitcnt lgkmcnt(0)')
    A('s_lshl_b32 s8, s2, 7', f's_add_u32 s8, s8, {hex(STAMP_OFF)}', 'v_mov_b32 v3, 0')
    for i,k in enumerate(lst):
        A(f'v_mov_b32 v4, s{84+2*i}', f'v_mov_b32 v5, s{85+2*i}', f'buffer_store_dwordx2 v[4:5], v3, s[52:55], s8 offen offset:{k*8}', 's_waitcnt vmcnt(0)')
    A(f'{skip}:')
def epoch_load():
    A(f's_load_dword s40, s[38:39], {EPOCH}')
    srd(52,38,WS_SIZE)
    A('s_mov_b32 s41, 0xfff')
def tag_ready():
    A('s_waitcnt lgkmcnt(0)','s_add_u32 s42, s40, 1','s_and_b32 s40, s42, s41','v_mov_b32 v7, s40')
def selectors(base, tmp):
    A(f'v_mov_b32 v{tmp}, 0x0c0c0100', f'v_mov_b32 v{tmp+1}, 0x01000c0c', 's_mov_b32 s60, 0xaaaaaaaa', 's_mov_b32 s61, 0xaaaaaaaa')
    A(f'v_cndmask_b32 v{tmp}, v{tmp}, v{tmp+1}, s[60:61]')
    A(f'v_mov_b32 v{tmp+1}, 0x0c0c0302', f'v_mov_b32 v{tmp+2}, 0x03020c0c')
    A(f'v_cndmask_b32 v{tmp+1}, v{tmp+1}, v{tmp+2}, s[60:61]')
    A(f'v_mov_b32 v{tmp+2}, 0x0c0c0c0c')
    for d in range(4):
        m=(0x03030303<<(2*d))&0xffffffff
        A(f's_mov_b32 s60, {hex(m)}', f's_mov_b32 s61, {hex(m)}')
        A(f'v_cndmask_b32 v{base+d}, v{tmp+2}, v{tmp}, s[60:61]', f'v_cndmask_b32 v{base+4+d}, v{tmp+2}, v{tmp+1}, s[60:61]')
def buildA(dst, src, odd, sel=8):
    for d in range(4): A(f'v_perm_b32 v{dst+d}, v{src}, v{src}, v{sel+(4 if odd else 0)+d}')
def mfma(d,a,b,first):
    c='0' if first else f'v[{d}:{d+3}]'
    A(f'v_mfma_f32_16x16x32_bf16 v[{d}:{d+3}], v[{a}:{a+3}], v[{b}:{b+3}], {c}')
def lds_spin(addr, val, vt, name, sleep=1):
    l=newlab(name); d=newlab(name+'d')
    A(f'v_mov_b32 v{vt}, {hex(addr)}', f's_mov_b32 s62, {SPIN}', f'{l}:', f'ds_read_b32 v{vt+1}, v{vt}', 's_sub_u32 s62, s62, 1', 's_waitcnt lgkmcnt(0)')
    A(f'v_readfirstlane_b32 s63, v{vt+1}', f's_cbranch_scc1 {d}', f's_cmp_ge_u32 s63, {val}')
    if sleep: A(f's_cbranch_scc1 {d}', f's_sleep {sleep*SLP}', f's_branch {l}')
    else: A(f's_cbranch_scc0 {l}')
    A(f'{d}:')
def mpoll(loads, name, chk, init='-1', slp=0):
    lp=newlab(name); go=newlab(name+'go')
    for i,_ in enumerate(loads): A(f's_mov_b64 s[{72+2*i}:{73+2*i}], {init}')
    A(f's_mov_b32 s62, {GSPIN}', f'{lp}:')
    if slp: A(f's_sleep {slp}')
    for i,(d,n,t) in enumerate(loads):
        sk=newlab('sk')
        A(f's_mov_b64 exec, s[{72+2*i}:{73+2*i}]', f's_cbranch_execz {sk}', t, f'{sk}:')
    A('s_sub_u32 s62, s62, 1', f's_cbranch_scc1 {go}', 's_waitcnt vmcnt(0)')
    if FINE==5 and name=='fp' and CUR[0]=='L':
        A(f's_cmp_lg_u32 s62, {GSPIN-1}','s_cbranch_scc1 L_nf5'); stamp(13,'L'); A('L_nf5:')
    if FINE==4 and name=='op':
        A(f's_cmp_lg_u32 s62, {GSPIN-1}','s_cbranch_scc1 L_nf4'); stamp(5,'Q'); A('L_nf4:')
    for i,(d,n,t) in enumerate(loads):
        A(f's_mov_b64 exec, s[{72+2*i}:{73+2*i}]')
        for k in range(n): A(f'v_xor_b32 v{d+k}, v7, v{d+k}')
        if n==4: A(f'v_or3_b32 v{chk}, v{d}, v{d+1}, v{d+2}', f'v_or_b32 v{chk}, v{chk}, v{d+3}', f'v_and_b32 v{chk}, s41, v{chk}')
        else: A(f'v_and_b32 v{chk}, s41, v{d}')
        A(f'v_cmp_ne_u32 s[{72+2*i}:{73+2*i}], 0, v{chk}')
    A('s_nop 0', 's_or_b64 s[76:77], s[72:73], s[74:75]', f's_cbranch_scc1 {lp}', f'{go}:', 's_mov_b64 exec, -1', 's_waitcnt vmcnt(0)')
def ppoll(res, stage, addr, name, chk, depth):
    go=newlab(name+'go'); lp=newlab(name)
    n=len(res)
    def issue(k, first=False):
        for i in range(n):
            if first: A('s_mov_b64 exec, -1')
            else: A(f's_or_b64 exec, s[{72+2*i}:{73+2*i}], 1')
            A(f'buffer_load_dwordx4 v[{stage[k][i]}:{stage[k][i]+3}], {addr[i]}')
    def check(k):
        for i in range(n):
            d=res[i]
            A(f's_mov_b64 exec, s[{72+2*i}:{73+2*i}]')
            for q in range(4): A(f'v_xor_b32 v{d+q}, v7, v{stage[k][i]+q}')
            A(f'v_or3_b32 v{chk}, v{d}, v{d+1}, v{d+2}', f'v_or_b32 v{chk}, v{chk}, v{d+3}', f'v_and_b32 v{chk}, s41, v{chk}', f'v_cmp_ne_u32 s[{72+2*i}:{73+2*i}], 0, v{chk}')
        A('s_nop 0','s_or_b64 s[76:77], s[72:73], s[74:75]',f's_cbranch_scc0 {go}')
    for i in range(n): A(f's_mov_b64 s[{72+2*i}:{73+2*i}], -1')
    A(f's_mov_b32 s62, {GSPIN}')
    issue(0,True)
    A('s_waitcnt vmcnt(0)'); check(0)
    for k in range(depth-1):
        issue(k)
        if PGAP: A(f's_sleep {PGAP}')
    A(f'{lp}:')
    for k in range(depth):
        issue((k+depth-1)%depth)
        A(f's_waitcnt vmcnt({n*(depth-1)})')
        check(k)
    A('s_sub_u32 s62, s62, 1',f's_cbranch_scc0 {lp}',f'{go}:','s_mov_b64 exec, -1')
DPP=' row_mask:0xf bank_mask:0xf'
def allreduce(op, regs, steps, tmp=None):
    n=len(regs); pad=max(0,2-(n-1))
    ctl={'x1':'quad_perm:[1,0,3,2]','x2':'quad_perm:[2,3,0,1]','hm':'row_half_mirror','m':'row_mirror','ror4':'row_ror:4','ror8':'row_ror:8'}
    for s in steps:
        if s in ctl:
            if pad: A(f's_nop {pad-1}')
            for r in regs: A(f'{op}_dpp v{r}, v{r}, v{r} {ctl[s]}{DPP}')
        else:
            ins='v_permlane16_swap_b32' if s=='r16' else 'v_permlane32_swap_b32'
            for i,r in enumerate(regs): A(f'v_mov_b32 v{tmp+i}, v{r}')
            A('s_nop 1')
            for i,r in enumerate(regs): A(f'{ins} v{r}, v{tmp+i}')
            A('s_nop 0')
            for i,r in enumerate(regs): A(f'{op} v{r}, v{r}, v{tmp+i}')
def pkadd(d,a,b):
    for k in (0,2): A(f'v_pk_add_f32 v[{d+k}:{d+k+1}], v[{a+k}:{a+k+1}], v[{b+k}:{b+k+1}]')
BB=('s_barrier',)

for c in """Fused decode step in one launch: out = g*attn(x)@wo + (1-g)*relu(x@w1)@w2, g = sigmoid(x.gate_w).
Kernarg: x, k_cache, v_cache, wq, wo, B_x (unused), w1, w2, gate_w, out, debug, ws (8-byte pointers).
256 workgroups (one per CU), wg = xcd(3b) | kvh&1 | batch | split(3b); 13 role-specialised waves:
  0 Q: 72x128 slab of wq -> q partial, gathers q    1 H: slab of w1 -> h partial, gathers h
  2 L: streams the 256-key K and V slices into LDS (windowed LDS-DMA)   3 X: gate, code prefetch
  4-7 C: QK^T, softmax (true running max), PV, publish o partial, gather + combine o
  8-12 W: 16 rows of wo + 18 rows of w2, one column block each -> output partial
  waves 0-7 of workgroups 0..71: sum the 256 output partials, 16 outputs per workgroup.
GEMVs use 16x16x32 bf16 MFMA with the vector spread on a diagonal A operand (weights stay row-major).
Hand-offs go through ws as 16-byte granules whose low mantissa bits carry a per-launch tag (epoch+1);
every reader verifies the tag of every word, so results do not depend on placement or stale ws data.
Generated by gen/gen8.py.""".split('\n'): A('; '+c)
A(f'; @launch grid=(256,1,1) block=(832,1,1) lds={LDS}')
A('.amdgcn_target "amdgcn-amd-amdhsa--gfx950"','.text',f'.globl {KNAME}','.p2align 8',f'.type {KNAME},@function',f'{KNAME}:')
if STAMPS or PROBE>=0: A('s_memrealtime s[82:83]')
A('s_cmp_ge_u32 s2, 256','s_cbranch_scc1 L_end')
A('s_load_dwordx16 s[16:31], s[0:1], 0','s_load_dwordx8 s[32:39], s[0:1], 64')
A('v_lshrrev_b32 v1, 6, v0','v_and_b32 v0, 63, v0','s_and_b32 s4, s2, 7','v_readfirstlane_b32 s3, v1')
A('s_lshl_b32 s4, s4, 1','s_bfe_u32 s5, s2, 0x10003','s_add_u32 s4, s4, s5')
A('s_bfe_u32 s5, s2, 0x10004','s_lshr_b32 s6, s2, 5','s_lshr_b32 s7, s2, 4')
A('v_and_b32 v1, 15, v0','v_lshrrev_b32 v2, 4, v0')
if CPF:
    A('s_cmp_lg_u32 s3, 3','s_cbranch_scc1 L_nopf')
    A('s_getpc_b64 s[10:11]','s_and_b32 s10, s10, 0xffffff00','s_lshr_b32 s8, s2, 3','s_mul_i32 s8, s8, PFSTEP','v_add_u32 v3, s8, v0')
    A('v_subrev_u32 v4, NLINES, v3','v_min_u32 v3, v3, v4','v_lshlrev_b32 v3, 7, v3',f's_mov_b32 exec_lo, {hex(((1<<CPF)-1)&0xffffffff)}',f's_mov_b32 exec_hi, {hex(((1<<CPF)-1)>>32)}','global_load_dword v127, v3, s[10:11]','s_mov_b64 exec, -1','L_nopf:')
A('s_cmp_gt_u32 s3, 1','s_cbranch_scc1 L_disp')
QPOS=len(L)

def red_id():
    if RM: A('s_lshr_b32 s14, s2, 4','s_lshl_b32 s14, s14, 3','s_and_b32 s8, s2, 7','s_add_u32 s14, s14, s8','s_lshl_b32 s14, s14, 1','s_bfe_u32 s8, s2, 0x10003','s_add_u32 s14, s14, s8')
    else: A('s_mov_b32 s14, s2')
RED_EMITTED=[0]
def reducer(role):
    CUR[0]=role
    if not STAMPS:
        if RED_EMITTED[0]:
            A('s_branch L_red'); return
        RED_EMITTED[0]=1; A('L_red:')
    fin=newlab('fin')
    red_id()
    A(f's_cmp_ge_u32 s14, {NRED}', f's_cbranch_scc1 {fin}', 's_setprio 0')
    A('v_lshlrev_b32 v5, 4, v0','v_and_b32 v6, 3, v0')
    if FLAY=='t': A('s_lshl_b32 s8, s14, 14','s_lshl_b32 s9, s3, 11','s_add_u32 s8, s8, s9',f's_add_u32 s8, s8, {hex(FP)}','s_add_u32 s11, s8, 1024')
    else: A('v_lshrrev_b32 v5, 2, v0','v_mul_u32_u24 v5, 4608, v5','v_lshl_add_u32 v5, v6, 4, v5',f's_mul_i32 s8, s3, {32*4608}','s_lshl_b32 s9, s14, 6','s_add_u32 s8, s8, s9',f's_add_u32 s8, s8, {hex(FP)}',f's_add_u32 s11, s8, {16*4608}')
    A('v_bfe_u32 v8, v0, 2, 2','v_lshl_add_u32 v8, v6, 2, v8','v_lshlrev_b32 v8, 5, v8','s_lshl_b32 s10, s3, 2',f's_add_u32 s10, s10, {hex(FSL)}','v_add_u32 v8, s10, v8')
    A('v_mov_b32 v11, 1',f'v_mov_b32 v10, {hex(FC)}','v_lshlrev_b32 v12, 5, v0',f'v_add_u32 v12, {hex(FSL)}, v12','v_lshlrev_b32 v13, 1, v0')
    srd(44,34,2304)
    A('s_lshl_b32 s10, s14, 5')
    A('s_mov_b32 s64, 0x00f000f0','s_mov_b32 s65, 0x00f000f0','s_mov_b32 s66, 0x0f000f00','s_mov_b32 s67, 0x0f000f00','s_mov_b32 s68, 0xf000f000','s_mov_b32 s69, 0xf000f000')
    A('s_barrier')
    if FDL: A(f's_sleep {FDL}')
    if role=='L' and FINE==5: stamp(12,'L')
    if PIPE: ppoll([16,20],[[32+8*k,36+8*k] for k in range(PIPE)],[f'v5, s[52:55], s8 offen {FLD}',f'v5, s[52:55], s11 offen {FLD}'],'fp',9,PIPE)
    else: mpoll([(16,4,f'buffer_load_dwordx4 v[16:19], v5, s[52:55], s8 offen {FLD}'),(20,4,f'buffer_load_dwordx4 v[20:23], v5, s[52:55], s11 offen {FLD}')],'fp',9,slp=FSLP)
    if role=='C': stamp(10, role)
    if FINE==5:
        A('s_memrealtime s[80:81]','s_waitcnt lgkmcnt(0)','v_mov_b32 v24, s80','v_mov_b32 v25, s81','v_mov_b32 v26, 0','s_lshl_b32 s8, s2, 7', f's_add_u32 s8, s8, {hex(STAMP_OFF+8)}','s_lshl_b32 s9, s3, 3','s_add_u32 s8, s8, s9','buffer_store_dwordx2 v[24:25], v26, s[52:55], s8 offen')
    for k in range(4): A(f'v_add_f32 v{16+k}, v{16+k}, v{20+k}')
    allreduce('v_add_f32',[16,17,18,19],['ror4','ror8'])
    A('v_cndmask_b32 v16, v16, v17, s[64:65]','v_cndmask_b32 v16, v16, v18, s[66:67]','v_cndmask_b32 v16, v16, v19, s[68:69]')
    allreduce('v_add_f32',[16],['r16','r32'],tmp=17)
    A('s_mov_b64 exec, 0xffff','ds_write_b32 v8, v16','s_mov_b64 exec, 1','ds_add_rtn_u32 v9, v10, v11','s_mov_b64 exec, 0xffff')
    if SPEC: A('ds_read_b128 v[16:19], v12','ds_read_b128 v[20:23], v12 offset:16','s_waitcnt lgkmcnt(2)')
    else: A('s_waitcnt lgkmcnt(0)')
    A('v_readfirstlane_b32 s8, v9','s_cmp_lg_u32 s8, 7',f's_cbranch_scc1 {fin}')
    if not SPEC: A('ds_read_b128 v[16:19], v12','ds_read_b128 v[20:23], v12 offset:16')
    A('s_waitcnt lgkmcnt(0)')
    pkadd(16,16,20)
    A('v_pk_add_f32 v[16:17], v[16:17], v[18:19]','v_add_f32 v16, v16, v17','v_cvt_pk_bf16_f32 v16, v16, v16')
    A('buffer_store_short v16, v13, s[44:47], s10 offen')
    stamp_now(11)
    A('s_mov_b64 exec, 1','s_cmp_lg_u32 s2, 0',f's_cbranch_scc1 {fin}')
    if PROBE>=0:
        pl=newlab('pl')
        A('s_memrealtime s[80:81]',f'v_mov_b32 v31, {STL}','ds_read_b32 v30, v31','s_waitcnt lgkmcnt(0)','v_readfirstlane_b32 s84, v30')
        if PROBE==11: A('s_mov_b32 s84, s80')
        A('s_sub_u32 s84, s84, s82','s_min_u32 s84, s84, 10000',f's_mul_i32 s84, s84, {PMUL}')
        A(f'{pl}:','s_memrealtime s[86:87]','s_waitcnt lgkmcnt(0)','s_sub_u32 s86, s86, s80','s_cmp_lt_u32 s86, s84',f's_cbranch_scc1 {pl}')
    A('v_mov_b32 v9, s42','v_mov_b32 v8, 0',f'buffer_store_dword v9, v8, s[52:55], 0 offen offset:{EPOCH}')
    A(f'{fin}:')
    flush_stamps(role)
    A('s_endpgm')

def gemv_loop(n, credits):
    A(f's_waitcnt vmcnt({n})')
    for t in range(n):
        a=(28,120)[t&1]
        buildA(a, 16+t//2, t&1)
        A(f's_waitcnt vmcnt({n-1-t})')
        A('s_memrealtime s[98:99]' if (FINE==3 and t==0) else 's_nop 0')
        mfma(124,a,32+4*t,t==0)
        if t in credits: A('s_mov_b64 exec, 1','ds_add_u32 v6, v3','s_mov_b64 exec, -1')
    A('s_nop 7')
    for r in range(4): A(f'v_bfi_b32 v{124+r}, s56, v7, v{124+r}')
    A('buffer_store_dwordx4 v[124:127], v5, s[52:55], s13 offen sc1')

A('s_setprio 3')
A('s_mul_i32 s9, s2, 293','s_lshr_b32 s9, s9, 11','s_mul_i32 s10, s9, 7','s_sub_u32 s10, s2, s10')
A('s_mul_i32 s11, s10, 88','s_mul_i32 s12, s10, 80','s_add_u32 s12, s12, 16','s_min_u32 s11, s11, s12')
A('s_cmp_lt_u32 s10, 2','s_cselect_b32 s14, 22, 20',f's_cselect_b32 s57, 0, {hex(OOB)}')
A('s_lshl_b32 s15, s9, 8','s_cmp_ge_u32 s2, 252',f's_cselect_b32 s15, {hex(OOB)}, s15')
A('s_lshr_b32 s12, s7, 1','s_mul_i32 s13, s12, 72','s_and_b32 s8, s7, 1','s_lshl_b32 s58, s4, 1','s_add_u32 s58, s58, s8','s_lshl_b32 s59, s58, 8')
A('s_lshl_b32 s43, s3, 10','s_add_u32 s43, s43, 8192')
A('s_cmp_eq_u32 s3, 0','s_cselect_b32 s11, s13, s11','s_cselect_b32 s14, 18, s14','s_cselect_b32 s15, s59, s15',f's_cselect_b32 s56, {hex(OOB)}, 0','s_cselect_b32 s57, 0, s57')
A('s_mul_i32 s8, s14, s43','v_mul_u32_u24 v3, s8, v2','v_lshl_add_u32 v3, v1, 4, v3')
A('v_bfe_u32 v4, v0, 3, 1','v_mul_u32_u24 v4, 1152, v4','s_lshl_b32 s8, s14, 1','v_mul_u32_u24 v5, s8, v2','v_add_u32 v4, v4, v5')
A('s_lshl_b32 s8, s11, 1','s_mul_i32 s11, s11, s43','s_add_u32 s11, s11, s15','s_mul_i32 s50, s43, 576','s_mov_b32 s51, 0x20000','s_mov_b32 s46, 2304','s_mov_b32 s47, 0x20000','s_cmp_eq_u32 s3, 0')
A('s_waitcnt lgkmcnt(0)')
if FINE==3: A('s_memrealtime s[94:95]')
A(f's_load_dword s40, s[38:39], {EPOCH}')
A('s_mov_b32 s44, s16','s_mov_b32 s45, s17','s_cselect_b32 s48, s22, s28','s_cselect_b32 s49, s23, s29')
if B0: A('s_cbranch_scc1 L_nb0','s_barrier','L_nb0:')
stamp(22,'Q')
A('buffer_load_dwordx4 v[16:19], v4, s[44:47], s8 offen','buffer_load_dwordx4 v[20:23], v4, s[44:47], s8 offen offset:16','buffer_load_dwordx3 v[24:26], v4, s[44:47], s8 offen offset:32')
for t in range(22):
    A(f'buffer_load_dwordx4 v[{32+4*t}:{35+4*t}], v3, s[48:51], s11 offen{PW}')
    if t<21: A('s_add_u32 s11, s11, s43')
    if t==17: A('s_add_u32 s11, s11, s56')
    if t==19: A('s_add_u32 s11, s11, s57')
if B0: A('s_cmp_lg_u32 s3, 0','s_cbranch_scc1 L_nb1','s_barrier','L_nb1:')
if FINE==3: A('s_memrealtime s[96:97]')
stamp(21,'Q')
A('s_barrier')
A('s_branch L_QH2')
A('L_disp:')
A('s_cmp_eq_u32 s3, 2','s_cbranch_scc1 L_L')
A('v_mov_b32 v4, 0','v_lshlrev_b32 v5, 2, v0',f'v_add_u32 v5, {hex(ML)}, v5','ds_write_b32 v5, v4','s_waitcnt lgkmcnt(0)')
epoch_load()
A('s_barrier')
A('s_cmp_eq_u32 s3, 3','s_cbranch_scc1 L_X','s_cmp_ge_u32 s3, 8','s_cbranch_scc1 L_W','s_branch L_C')
A('L_L:','s_setprio 3')
for u in range(4): A(f'v_add_u32 v8, {4*u}, v2','v_xor_b32 v8, v8, v1','v_lshlrev_b32 v8, 4, v8',f'v_lshl_add_u32 v{12+u}, v2, 8, v8')
A('s_lshl_b32 s12, s5, 4','s_add_u32 s12, s12, s4','s_lshl_b32 s12, s12, 21','s_lshl_b32 s13, s6, 16','s_add_u32 s12, s12, s13','s_add_u32 s12, s12, 0x180000')
A('s_lshr_b32 s13, s2, 3','s_add_u32 s13, s13, s2','s_lshl_b32 s13, s13, 12','s_mov_b32 s46, 0x4000000','s_mov_b32 s47, 0x20000','s_mov_b32 s50, 0x4000000','s_mov_b32 s51, 0x20000')
A('v_lshlrev_b32 v3, 4, v0',f'v_mov_b32 v9, {hex(LD)}','s_waitcnt lgkmcnt(0)')
A('s_mov_b32 s44, s18','s_mov_b32 s45, s19','s_mov_b32 s48, s20','s_mov_b32 s49, s21')
epoch_load()
A('s_barrier')
stamp(20,'L')
n=0; sig=0
def signal(upto):
    global sig
    if upto>sig:
        sig=upto
        A(f'v_mov_b32 v10, {upto}','ds_write_b32 v9, v10')
NT=32
for i in range(NT):
    for u in range(4):
        if n in RAMPC: lds_spin(CR,RAMPC[n],16,'cr',sleep=0)
        if n==RAMPN:
            tag_ready(); A('s_barrier')
        if u==0: A('s_and_b32 s14, s13, 0xf000','s_add_u32 s14, s14, s12','s_add_u32 s13, s13, 0x1000',f's_mov_b32 m0, {hex(i*4096)}')
        w = RAMPN if n==RAMPN else (WIN2 if (WIN2 and n>=N2) else WIN)
        if n>=w:
            A(f's_waitcnt vmcnt({w-1})')
            signal((n-w+1)//4)
        elif u==0: A('s_nop 0')
        if i<16: A(f'buffer_load_dwordx4 v{12+u}, s[44:47], s14 offen offset:{u*1024}{PKV} lds')
        else: A(f'buffer_load_dwordx4 v3, s[48:51], s14 offen offset:{u*1024}{PKV} lds')
        n+=1
stamp(14,'L')
while sig<NT:
    A(f's_waitcnt vmcnt({4*NT-4*(sig+1)})')
    signal(sig+1)
stamp(3,'L')
LRED=len(L)
A('s_branch L_Lred')
A('.p2align 6','L_QH2:')
srd(52,38,WS_SIZE); A('s_mov_b32 s41, 0xfff')
A(f's_mul_i32 s13, s10, {2*4608*4}','s_lshl_b32 s8, s15, 1','s_add_u32 s13, s13, s8',f's_add_u32 s13, s13, {hex(HP)}')
A('s_lshl_b32 s8, s4, 14','s_lshl_b32 s9, s12, 10','s_add_u32 s8, s8, s9','s_and_b32 s9, s7, 1','s_lshl_b32 s9, s9, 9','s_add_u32 s8, s8, s9',f's_add_u32 s8, s8, {hex(QP)}')
A('s_cmp_ge_u32 s2, 252',f's_cselect_b32 s13, {hex(OOB)}, s13','s_cmp_eq_u32 s3, 0','s_cselect_b32 s13, s8, s13','s_mul_i32 s8, s3, 10240','s_add_u32 s8, s8, 8192')
A('v_lshrrev_b32 v5, 1, v2','v_mul_u32_u24 v5, s8, v5','v_lshl_add_u32 v5, v1, 5, v5','v_and_b32 v6, 1, v2','v_lshl_add_u32 v5, v6, 4, v5')
tag_ready()
A('s_barrier')
selectors(8, 120)
A(f'v_mov_b32 v6, {hex(CR)}','v_mov_b32 v3, 1','s_cmp_eq_u32 s3, 0',f's_cselect_b32 s56, {hex((1<<QB)-1)}, s41','v_and_b32 v27, s56, v7')
gemv_loop(22,(9,17))
A('s_cmp_lg_u32 s3, 0','s_cbranch_scc1 L_H2')
A('s_getreg_b32 s15, hwreg(HW_REG_XCC_ID, 0, 3)','s_lshl_b32 s8, s42, 3','s_or_b32 s15, s15, s8')
A('v_mov_b32 v25, v27','v_lshlrev_b32 v26, 7, v0','v_mov_b32 v27, s15','s_lshl_b32 s14, s4, 11','s_lshl_b32 s8, s7, 2','s_add_u32 s14, s14, s8',f's_add_u32 s14, s14, {hex(FL)}')
A('s_mov_b64 exec, 0xffff','buffer_store_dword v27, v26, s[52:55], s14 offen sc1','s_mov_b64 exec, -1')
stamp(1,'Q')
if FINE==3:
    A('s_waitcnt lgkmcnt(0)','s_lshl_b32 s8, s2, 7', f's_add_u32 s8, s8, {hex(STAMP_OFF)}','v_mov_b32 v22, 0')
    for sr,k in ((82,4),(94,5),(96,13),(98,15)):
        A(f'v_mov_b32 v20, s{sr}',f'v_mov_b32 v21, s{sr+1}',f'buffer_store_dwordx2 v[20:21], v22, s[52:55], s8 offen offset:{8*k}','s_nop 1')
A('v_lshlrev_b32 v5, 4, v0')
A('s_lshl_b32 s13, s4, 1','s_add_u32 s13, s13, s5','s_lshl_b32 s13, s13, 13',f's_add_u32 s13, s13, {hex(QP)}','s_add_u32 s14, s13, 4096')
A('s_lshl_b32 s8, s4, 4','s_add_u32 s8, s8, s7','s_lshl_b32 s8, s8, 7',f's_add_u32 s8, s8, {hex(FL)}','s_add_u32 s46, s38, s8','s_addc_u32 s47, s39, 0')
A('s_mov_b32 s8, 1',f's_mov_b32 s62, {GSPIN}','L_qprobe:',f's_sleep {QSL}','s_load_dwordx16 s[64:79], s[46:47], 0 glc','s_sub_u32 s62, s62, 1','s_cbranch_scc1 L_qfetch0','s_waitcnt lgkmcnt(0)')
A('s_xor_b32 s8, s64, s15')
for p in range(1,16): A(f's_xor_b32 s9, s{64+p}, s15','s_or_b32 s8, s8, s9')
A('s_lshr_b32 s9, s8, 3')
A('s_cbranch_scc1 L_qprobe','L_qfetch0:',f's_mov_b32 s62, {GSPIN}','s_waitcnt lgkmcnt(0)')
if QFAST: A('s_cmp_eq_u32 s8, 0',f's_cselect_b32 s9, {QA-QP}, 0','s_add_u32 s13, s13, s9','s_add_u32 s14, s14, s9')
if FINE==1: stamp(8,'Q')
A('L_qfetch:')
if NOQ: A('s_branch L_qgo')
for r in range(8): A(f'buffer_load_dwordx4 v[{32+4*r}:{35+4*r}], v5, s[52:55], s{13 if r<4 else 14} offen offset:{(r&3)*1024} sc1')
A('s_sub_u32 s62, s62, 1','s_cbranch_scc1 L_qgo','v_mov_b32 v6, 0')
for r in range(8):
    A(f's_waitcnt vmcnt({7-r})')
    for k in range(4): A(f'v_xor_b32 v{32+4*r+k}, v25, v{32+4*r+k}')
    A(f'v_or3_b32 v6, v6, v{32+4*r}, v{33+4*r}',f'v_or3_b32 v6, v6, v{34+4*r}, v{35+4*r}')
A('v_and_b32 v6, s56, v6','v_cmp_ne_u32 vcc, 0, v6','s_cbranch_vccnz L_qfetch','L_qgo:','s_waitcnt vmcnt(0)')
for r in (0,2,4,6): pkadd(32+4*r,32+4*r,36+4*r)
pkadd(32,32,40); pkadd(48,48,56); pkadd(32,32,48)
A('v_cvt_pk_bf16_f32 v32, v32, v33','v_cvt_pk_bf16_f32 v33, v34, v35','v_lshlrev_b32 v5, 3, v0',f'v_add_u32 v5, {hex(QL)}, v5','ds_write_b64 v5, v[32:33]')
A('s_cmp_eq_u32 s8, 0',f's_cselect_b32 s9, {1+FAST}, 1','v_mov_b32 v6, s9',f'v_mov_b32 v5, {hex(QF)}','ds_write_b32 v5, v6')
stamp(2,'Q')
if not CG:
    A('v_lshlrev_b32 v123, 11, v1','v_lshl_add_u32 v122, v2, 4, v123')
    A('s_lshl_b32 s43, s4, 15','s_lshl_b32 s8, s7, 7','s_add_u32 s43, s43, s8',f's_add_u32 s43, s43, {hex(OP)}')
    A('v_lshlrev_b32 v121, 3, v0',f'v_add_u32 v121, {hex(YO)}, v121',f'v_mov_b32 v120, {hex(YOF)}','v_mov_b32 v119, 1')
    lds_spin(PB,1,104,'oc',sleep=OCS)
    if WDK: lds_spin(WD,WDK,104,'wd',sleep=0)
    if FINE==4: stamp(4,'Q')
    if PR:
        for k in range(PR):
            if k: A(f's_sleep {PSL}')
            A(f'buffer_load_dwordx4 v[{16+8*k}:{19+8*k}], v122, s[52:55], s43 offen sc1',f'buffer_load_dwordx4 v[{20+8*k}:{23+8*k}], v123, s[52:55], s43 offen offset:64 sc1')
        if WQI: A(f'ds_write_b32 v120, v119 offset:{QI-YOF}')
        for k in range(PR):
            A(f's_waitcnt vmcnt({2*(PR-1-k)})')
            for i in range(8): A(f'v_xor_b32 v{64+i}, v7, v{16+8*k+i}')
            A('v_or3_b32 v74, v64, v65, v66','v_or3_b32 v74, v74, v67, v68','v_or3_b32 v74, v74, v69, v70','v_or_b32 v74, v74, v71','v_and_b32 v74, s41, v74','v_cmp_ne_u32 vcc, 0, v74','s_cbranch_vccz L_odone')
    mpoll([(64,4,'buffer_load_dwordx4 v[64:67], v122, s[52:55], s43 offen sc1'),(68,4,'buffer_load_dwordx4 v[68:71], v123, s[52:55], s43 offen offset:64 sc1')],'op',74)
    A('L_odone:')
    if FINE==4:
        A(f's_sub_u32 s8, {GSPIN}, s62','s_mul_i32 s8, s8, 100','s_waitcnt lgkmcnt(0)','s_add_u32 s98, s82, s8','s_addc_u32 s99, s83, 0','s_lshl_b32 s8, s2, 7', f's_add_u32 s8, s8, {hex(STAMP_OFF)}','v_mov_b32 v22, 0','v_mov_b32 v20, s98','v_mov_b32 v21, s99','buffer_store_dwordx2 v[20:21], v22, s[52:55], s8 offen offset:120')
    stamp(7,'Q')
    allreduce('v_max_f32',[70],['x1','x2','hm'])
    A('v_sub_f32 v68, v68, v70','v_exp_f32 v68, v68','s_nop 0','v_mul_f32 v69, v68, v69')
    for k in range(4): A(f'v_mul_f32 v{64+k}, v68, v{64+k}')
    allreduce('v_add_f32',[69,64,65,66,67],['x1','x2','hm'])
    A('v_rcp_f32 v69, v69','s_nop 0')
    for k in range(4): A(f'v_mul_f32 v{64+k}, v69, v{64+k}')
    A('v_cvt_pk_bf16_f32 v64, v64, v65','v_cvt_pk_bf16_f32 v65, v66, v67','ds_write_b64 v121, v[64:65]','ds_write_b32 v120, v119')
reducer('Q')

A('.p2align 6')
A('L_H2:')
stamp(12,'H')
A('v_and_b32 v6, 7, v0','v_lshlrev_b32 v6, 1, v6','v_bfe_u32 v9, v0, 3, 1','v_add_u32 v6, v6, v9',f'v_mul_u32_u24 v6, {4608*4}, v6')
A('v_mov_b32 v9, v6','v_lshl_add_u32 v6, v2, 4, v6')
A('s_mul_i32 s11, s2, 72',f's_add_u32 s11, s11, {hex(HP)}','s_and_b32 s8, s2, 1','s_lshl_b32 s8, s8, 3','s_sub_u32 s12, s11, s8')
A('s_cmp_eq_u32 s8, 0','s_cselect_b32 s64, 0, -1','s_mov_b32 s65, s64','s_mov_b32 s66, 0xffff0000','s_mov_b32 s67, 0xffff0000')
A('v_lshlrev_b32 v121, 4, v0',f'v_add_u32 v121, {hex(YH)}, v121',f'v_mov_b32 v120, {hex(YHF)}','v_mov_b32 v119, 1')
for k in range(8): A(f'v_mov_b32 v{64+k}, 0')
A('s_mov_b32 s78, 0x7f7f7f7f','s_mov_b32 s79, 0x7f7f7f7f')
lds_spin(LD,HTH,104,'hl',sleep=4)
if not NOH: mpoll([(64,4,'buffer_load_dwordx4 v[64:67], v6, s[52:55], s11 offen sc1'),(68,4,'buffer_load_dwordx4 v[68:71], v9, s[52:55], s12 offen offset:64 sc1')],'hp',72,init='s[78:79]')
A('v_cndmask_b32 v68, v68, v70, s[64:65]','v_cndmask_b32 v69, v69, v71, s[64:65]','v_cndmask_b32 v68, v68, v69, s[66:67]','s_nop 0')
stamp(13,'H')
allreduce('v_add_f32',[64,65,66,67,68],['x1','x2','hm'])
for k in range(5): A(f'v_max_f32 v{64+k}, 0, v{64+k}')
A('v_cvt_pk_bf16_f32 v64, v64, v65','v_cvt_pk_bf16_f32 v65, v66, v67','v_cvt_pk_bf16_f32 v66, v68, v68','ds_write_b128 v121, v[64:67]','ds_write_b32 v120, v119')
reducer('H')

A('L_Lred:')
reducer('L')
A('.p2align 6','L_C:','s_setprio 2','s_sub_u32 s15, s3, 4')
A('v_lshlrev_b32 v122, 4, v0',f'v_add_u32 v122, {hex(OACC)}, v122','s_lshl_b32 s8, s15, 10','v_add_u32 v125, s8, v122')
tag_ready()
A(*BB)
selectors(8,104)
A('s_lshl_b32 s8, s15, 12')
for ks in range(4): A(f'v_add_u32 v4, {4*ks}, v2','v_xor_b32 v4, v4, v1','v_lshlrev_b32 v4, 4, v4','v_lshl_add_u32 v4, v1, 8, v4',f'v_add_u32 v{116+ks}, s8, v4')
A('v_lshlrev_b32 v3, 4, v0',f's_add_u32 s9, s8, {hex(VL)}','v_add_u32 v3, s9, v3')
A('v_and_b32 v5, 1, v0','v_lshlrev_b32 v5, 8, v5','v_lshl_add_u32 v5, v2, 4, v5',f'v_add_u32 v5, {hex(QL)}, v5')
A('s_lshl_b32 s8, s15, 8',f's_add_u32 s8, s8, {hex(PL)}')
A('v_and_b32 v6, 3, v0','v_lshlrev_b32 v6, 5, v6','v_lshrrev_b32 v4, 2, v0','v_lshl_add_u32 v6, v4, 1, v6','v_add_u32 v6, s8, v6')
A('v_bfe_u32 v4, v0, 3, 1','v_lshl_add_u32 v4, v4, 2, v2','v_lshlrev_b32 v4, 5, v4','v_add_u32 v123, s8, v4')
A('v_lshrrev_b32 v124, 5, v0','v_lshlrev_b32 v124, 4, v124',f'v_add_u32 v124, {hex(ML)}, v124')
A('v_lshrrev_b32 v121, 5, v0','v_lshlrev_b32 v121, 3, v121','v_lshrrev_b32 v4, 1, v1','v_add_u32 v121, v121, v4','v_lshlrev_b32 v121, 7, v121')
A('v_and_b32 v4, 1, v1','v_lshl_add_u32 v120, v4, 5, v121','v_and_b32 v4, 1, v2','v_lshl_add_u32 v120, v4, 4, v120')
A('s_lshl_b32 s12, s4, 1','s_add_u32 s12, s12, s5','s_lshl_b32 s12, s12, 3','s_add_u32 s12, s12, s6','s_lshl_b32 s12, s12, 11',f's_add_u32 s12, s12, {hex(OP)}')
if DV:
    srd(44,20,0x4000000)
    A('s_lshl_b32 s14, s5, 4','s_add_u32 s14, s14, s4','s_lshl_b32 s14, s14, 21','s_lshl_b32 s8, s6, 16','s_add_u32 s14, s14, s8','s_add_u32 s14, s14, 0x180000')
    A('s_lshr_b32 s8, s2, 3','s_add_u32 s8, s8, s2','s_add_u32 s8, s8, s15','s_add_u32 s8, s8, 12','s_and_b32 s8, s8, 15','s_lshl_b32 s8, s8, 12','s_add_u32 s14, s14, s8','v_lshlrev_b32 v126, 4, v0')
A(f's_mov_b32 s43, {hex(f2u(1.4426950408889634 if RND else SC))}',f's_mov_b32 s74, {hex(f2u(0.08838834764831845))}')
A('s_mov_b32 s64, 0xffff0000','s_mov_b32 s65, 0','s_mov_b32 s66, 0','s_mov_b32 s67, 0xffff','s_mov_b32 s68, 0','s_mov_b32 s69, 0xffff0000')
if STAMPS:
    stamp_regs['C']=[0]; A('s_mov_b64 s[84:85], s[82:83]')
if PT:
    lds_spin(LD,4,16,'pt',sleep=4)
    A('s_cmp_lg_u32 s15, 0','s_cbranch_scc1 L_Cnopt','buffer_load_dwordx4 v[76:79], v120, s[52:55], s12 offen','L_Cnopt:')
lds_spin(QF,1,16,'qf',sleep=2)
A('s_mov_b32 s73, s63')
for ks in range(4): A(f'ds_read_b128 v[{80+4*ks}:{83+4*ks}], v5 offset:{ks*64}')
A('s_add_u32 s13, s15, 13')
lds_spin(LD,'s13',16,'kl')
A('s_mov_b32 s72, s63','s_waitcnt vmcnt(0)')
for t in range(4):
    for ks in range(4): A(f'ds_read_b128 v[{16+16*t+4*ks}:{19+16*t+4*ks}], v{116+ks} offset:{t*16384}')
for t in range(4):
    A(f's_waitcnt lgkmcnt({12-4*t})')
    for ks in range(4): mfma(96+4*t, 80+4*ks, 16+16*t+4*ks, ks==0)
A('s_nop 7')
for h in range(2): A(f'v_cndmask_b32 v{16+h}, v{96+h}, v{100+h}, s[64:65]')
for h in range(2): A(f'v_cndmask_b32 v{16+h}, v{16+h}, v{104+h}, s[66:67]')
for h in range(2): A(f'v_cndmask_b32 v{16+h}, v{16+h}, v{108+h}, s[68:69]')
if RND:
    A('v_cvt_pk_bf16_f32 v18, v16, v17','v_lshlrev_b32 v16, 16, v18','v_and_b32 v17, 0xffff0000, v18','v_mul_f32 v16, s74, v16','v_mul_f32 v17, s74, v17')
    A('v_cvt_pk_bf16_f32 v18, v16, v17','v_lshlrev_b32 v16, 16, v18','v_and_b32 v17, 0xffff0000, v18')
A('v_mov_b32 v18, v16','v_mov_b32 v19, v17')
allreduce('v_max_f32',[18,19],['x1','x2','hm','m','r16','r32'],tmp=20)
A('v_sub_f32 v16, v16, v18','v_sub_f32 v17, v17, v19','v_mul_f32 v16, s43, v16','v_mul_f32 v17, s43, v17')
A('v_exp_f32 v16, v16','v_exp_f32 v17, v17','s_nop 0','v_cvt_pk_bf16_f32 v22, v16, v17')
A('ds_write_b16 v6, v22','ds_write_b16_d16_hi v6, v22 offset:128','ds_read_b128 v[80:83], v123','ds_read_b128 v[84:87], v123 offset:16')
allreduce('v_add_f32',[16,17],['x1','x2','hm','m','r16','r32'],tmp=20)
A('s_lshl_b32 s8, s15, 2',f's_add_u32 s8, s8, {hex(ML)}','v_mov_b32 v5, s8','s_mov_b32 s70, -1','s_mov_b32 s71, 0')
A('v_cndmask_b32 v96, v19, v18, s[70:71]')
A('s_mov_b64 exec, 1','ds_write2_b32 v5, v18, v19 offset0:0 offset1:4','ds_write2_b32 v5, v16, v17 offset0:8 offset1:12')
A('v_mov_b32 v6, 1',f'v_mov_b32 v5, {hex(PF)}','ds_add_u32 v5, v6','s_mov_b64 exec, -1')
stamp(4,'C')
def cg_setup():
    A('v_lshlrev_b32 v117, 11, v1','v_lshl_add_u32 v116, v2, 4, v117')
    A('s_lshl_b32 s75, s4, 15','s_lshl_b32 s8, s7, 7','s_add_u32 s75, s75, s8',f's_add_u32 s75, s75, {hex(OP)}')
    A('v_lshlrev_b32 v118, 3, v0',f'v_add_u32 v118, {hex(YO)}, v118',f'v_mov_b32 v119, {hex(YOF)}')
def factors():
    if CG: cg_setup()
    lds_spin(PF,4,104,'pf')
    A('ds_read_b128 v[88:91], v124','ds_read_b128 v[92:95], v124 offset:32','s_waitcnt lgkmcnt(0)')
    A('v_max3_f32 v97, v88, v89, v90','v_max_f32 v97, v97, v91')
    for k in range(4): A(f'v_sub_f32 v{88+k}, v{88+k}, v97')
    A('v_sub_f32 v96, v96, v97')
    for k in range(4): A(f'v_mul_f32 v{88+k}, s43, v{88+k}')
    A('v_mul_f32 v96, s43, v96')
    for k in range(4): A(f'v_exp_f32 v{88+k}, v{88+k}')
    A('v_exp_f32 v96, v96','v_mul_f32 v99, v88, v92')
    for k in range(1,4): A(f'v_fmac_f32 v99, v{88+k}, v{92+k}')
    A('v_bfi_b32 v100, s41, v7, v97','v_bfi_b32 v101, s41, v7, v99','v_and_b32 v102, s41, v97','v_lshl_or_b32 v102, v102, 12, v7','v_mov_b32 v103, v101')
    A('v_mov_b32 v106, 1',f'v_mov_b32 v107, {hex(OC)}')
A('s_waitcnt lgkmcnt(0)')
for tau in range(4):
    for u in range(4): buildA(32+4*u, 80+(4*tau+u)//2, u&1)
    if tau==3: factors()
    sk=newlab('vsk')
    A(f's_add_u32 s13, s15, {17+4*tau}','s_cmp_ge_u32 s72, s13',f's_cbranch_scc1 {sk}')
    lds_spin(LD,'s13',104,'vl',sleep=0)
    A('s_mov_b32 s72, s63',f'{sk}:')
    for u in range(4): A(f'ds_read_b128 v[{16+4*u}:{19+4*u}], v3 offset:{tau*16384+u*1024}')
    for u in range(4):
        A(f's_waitcnt lgkmcnt({3-u})')
        mfma(112,32+4*u,16+4*u,tau==0 and u==0)
A('s_nop 7')
for r in range(4): A(f'v_mul_f32 v{112+r}, v96, v{112+r}')
A('ds_write_b128 v125, v[112:115]','s_mov_b64 exec, 1','ds_add_rtn_u32 v106, v107, v106','s_mov_b64 exec, -1')
if SPEC:
    for w in range(4): A(f'ds_read_b128 v[{16+4*w}:{19+4*w}], v122 offset:{1024*w}')
A(f's_waitcnt lgkmcnt({4 if SPEC else 0})')
A('v_readfirstlane_b32 s8, v106','s_cmp_lg_u32 s8, 3','s_cbranch_scc1 L_Cnopub')
if not SPEC:
    for w in range(4): A(f'ds_read_b128 v[{16+4*w}:{19+4*w}], v122 offset:{1024*w}')
A('s_setprio 3','s_waitcnt lgkmcnt(2)')
pkadd(16,16,20)
A('s_waitcnt lgkmcnt(0)')
pkadd(24,24,28); pkadd(112,16,24)
for r in range(4): A(f'v_bfi_b32 v{112+r}, s41, v7, v{112+r}')
A('s_cmp_eq_u32 s73, 2','s_cbranch_scc1 L_Cfast')
A('buffer_store_dwordx4 v[112:115], v120, s[52:55], s12 offen sc1')
A('s_mov_b32 exec_lo, 0x5555','s_mov_b32 exec_hi, 0x5555','buffer_store_dwordx4 v[100:103], v121, s[52:55], s12 offen offset:64 sc1','s_branch L_Cpubd')
A('L_Cfast:','buffer_store_dwordx4 v[112:115], v120, s[52:55], s12 offen')
A('s_mov_b32 exec_lo, 0x5555','s_mov_b32 exec_hi, 0x5555','buffer_store_dwordx4 v[100:103], v121, s[52:55], s12 offen offset:64')
A('L_Cpubd:','s_mov_b64 exec, -1')
if CG:
    A('s_mov_b32 s78, s43','s_mov_b32 s43, s75')
    A('buffer_load_dwordx4 v[16:19], v116, s[52:55], s43 offen sc1','buffer_load_dwordx4 v[20:23], v117, s[52:55], s43 offen offset:64 sc1',f'ds_write_b32 v119, v119 offset:{QI-YOF}')
    stamp_now2(6)
    A('s_waitcnt vmcnt(0)')
    for i in range(8): A(f'v_xor_b32 v{64+i}, v7, v{16+i}')
    A('v_or3_b32 v74, v64, v65, v66','v_or3_b32 v74, v74, v67, v68','v_or3_b32 v74, v74, v69, v70','v_or_b32 v74, v74, v71','v_and_b32 v74, s41, v74','v_cmp_ne_u32 vcc, 0, v74','s_cbranch_vccz L_codone')
    mpoll([(64,4,'buffer_load_dwordx4 v[64:67], v116, s[52:55], s43 offen sc1'),(68,4,'buffer_load_dwordx4 v[68:71], v117, s[52:55], s43 offen offset:64 sc1')],'op',74)
    A('L_codone:')
    stamp_now2(7)
    A('v_lshrrev_b32 v70, 12, v70','v_or_b32 v68, v68, v70','v_mov_b32 v70, v68')
    allreduce('v_max_f32',[70],['x1','x2','hm'])
    A('v_sub_f32 v68, v68, v70','v_mul_f32 v68, s78, v68','v_exp_f32 v68, v68','s_nop 0','v_mul_f32 v69, v68, v69')
    for k in range(4): A(f'v_mul_f32 v{64+k}, v68, v{64+k}')
    allreduce('v_add_f32',[69,64,65,66,67],['x1','x2','hm'])
    A('v_rcp_f32 v69, v69','s_nop 0')
    for k in range(4): A(f'v_mul_f32 v{64+k}, v69, v{64+k}')
    A('v_cvt_pk_bf16_f32 v64, v64, v65','v_cvt_pk_bf16_f32 v65, v66, v67','ds_write_b64 v118, v[64:65]','ds_write_b32 v119, v119')
    stamp_flush2()
else:
    A(f'ds_write_b32 v107, v107 offset:{PB-OC}')
    stamp_now(6)
A('L_Cnopub:','s_waitcnt lgkmcnt(0)')
stamp(5,'C')
reducer('C')

A('.p2align 6','L_X:')
A('v_and_b32 v9, 31, v0','v_mul_u32_u24 v9, 36, v9','v_lshrrev_b32 v10, 5, v0','v_mul_u32_u24 v10, 1152, v10','v_add_u32 v10, v10, v9')
srd(44,16,2304); srd(48,32,1152)
tag_ready()
A(*BB)
for k in range(3): A(f'buffer_load_dwordx3 v[{64+4*k}:{66+4*k}], v10, s[44:47], 0 offen offset:{12*k}')
for k in range(3): A(f'buffer_load_dwordx3 v[{80+4*k}:{82+4*k}], v9, s[48:51], 0 offen offset:{12*k}')
if PTO:
    A('v_mov_b32 v4, 0','s_mov_b64 exec, 1')
    if PTO&1:
        srd(56,34,2304); A('buffer_load_dword v102, v4, s[56:59], 0 offen')
    if PTO&2:
        A('s_mul_i32 s8, s2, 4608',f's_add_u32 s8, s8, {hex(FP)}','buffer_load_dword v103, v4, s[52:55], s8 offen')
    if PTO&4:
        A('s_lshl_b32 s12, s5, 4','s_add_u32 s12, s12, s4','s_lshl_b32 s12, s12, 21','s_add_u32 s12, s12, 0x180000')
        srd(56,20,0x4000000); A('buffer_load_dword v104, v4, s[56:59], s12 offen')
        A('s_lshl_b32 s12, s4, 4','s_add_u32 s12, s12, s7',f's_mul_i32 s12, s12, {16*1152}')
        srd(56,24,4096*1152); A('buffer_load_dword v105, v4, s[56:59], s12 offen')
        A(f's_mul_i32 s12, s2, {18*1152}')
        srd(56,30,4608*1152); A('buffer_load_dword v106, v4, s[56:59], s12 offen')
    A('s_mov_b64 exec, -1')
A('v_mov_b32 v100, 0','s_waitcnt vmcnt(0)')
for k in range(3):
    for i in range(3):
        x=64+4*k+i; w=80+4*k+i
        A(f'v_lshlrev_b32 v96, 16, v{x}',f'v_lshlrev_b32 v97, 16, v{w}',f'v_and_b32 v98, 0xffff0000, v{x}',f'v_and_b32 v99, 0xffff0000, v{w}')
        A('v_mul_f32 v96, v96, v97','v_mul_f32 v98, v98, v99','v_cvt_pk_bf16_f32 v96, v96, v98','v_lshlrev_b32 v97, 16, v96','v_and_b32 v98, 0xffff0000, v96')
        A('v_add_f32 v100, v100, v97','v_add_f32 v100, v100, v98')
allreduce('v_add_f32',[100],['x1','x2','hm','m','r16'],tmp=101)
A('v_cvt_pk_bf16_f32 v100, v100, v100','v_and_b32 v100, 0xffff0000, v100',f'v_mul_f32 v100, {hex(f2u(-1.4426950408889634))}, v100')
A('v_exp_f32 v100, v100','s_nop 0','v_add_f32 v100, 1.0, v100','v_rcp_f32 v100, v100','s_nop 0')
A('v_cvt_pk_bf16_f32 v100, v100, v100','v_and_b32 v100, 0xffff0000, v100')
A('v_sub_f32 v101, 1.0, v100','v_cvt_pk_bf16_f32 v101, v101, v101','v_and_b32 v101, 0xffff0000, v101')
A('v_lshrrev_b32 v9, 5, v0','v_lshlrev_b32 v9, 3, v9',f'v_add_u32 v9, {hex(GL)}, v9','ds_write_b64 v9, v[100:101]')
A('v_mov_b32 v9, 1',f'v_mov_b32 v10, {hex(GF)}','ds_write_b32 v10, v9')
reducer('X')

A('.p2align 6','L_W:')
A('s_sub_u32 s15, s3, 8')
A('v_lshlrev_b32 v3, 4, v1',f'v_mov_b32 v9, {hex(OOB)}','s_cmp_eq_u32 s15, 4','s_cselect_b32 s60, 0xff00ff00, 0','s_mov_b32 s61, s60')
A('v_cndmask_b32 v3, v3, v9, s[60:61]')
A(f'v_mul_u32_u24 v4, {4*1152}, v2','v_add_u32 v4, v4, v3')
A('v_mul_u32_u24 v5, 1152, v2','v_add_u32 v5, v5, v3','s_mov_b32 s62, 0','s_mov_b32 s63, -1','v_cndmask_b32 v5, v5, v9, s[62:63]')
A('s_lshl_b32 s8, s15, 8',f's_mul_i32 s10, s2, {18*1152}','s_add_u32 s10, s10, s8',f's_add_u32 s13, s10, {16*1152}')
A('s_lshl_b32 s12, s4, 4','s_add_u32 s12, s12, s7',f's_mul_i32 s12, s12, {16*1152}','s_add_u32 s12, s12, s8')
A('v_lshrrev_b32 v120, 5, v0','v_lshlrev_b32 v121, 3, v120',f'v_add_u32 v121, {hex(GL)}, v121')
A('v_mul_u32_u24 v120, 576, v120','v_lshl_add_u32 v120, v1, 3, v120','v_and_b32 v122, 1, v2','v_lshl_add_u32 v120, v122, 2, v120')
A('s_lshl_b32 s8, s15, 7','v_add_u32 v120, s8, v120')
if FLAY=='t': A('v_and_b32 v122, 15, v120','v_lshrrev_b32 v120, 4, v120','v_lshlrev_b32 v120, 14, v120','v_lshl_add_u32 v120, v122, 2, v120')
else: A('v_lshlrev_b32 v120, 2, v120')
A('v_cndmask_b32 v120, v120, v9, s[60:61]')
if PSW: A('s_and_b32 s14, s2, 7','s_lshl_b32 s14, s14, 5','s_lshr_b32 s8, s2, 3','s_add_u32 s14, s14, s8','s_lshl_b32 s14, s14, 6')
else: A('s_lshl_b32 s14, s2, 6')
if FLAY=='c': A('s_mul_i32 s14, s14, 72')
A(f's_add_u32 s14, s14, {hex(FP)}')
A('v_lshlrev_b32 v122, 4, v0',f'v_add_u32 v122, {hex(YH)}, v122','v_lshlrev_b32 v123, 3, v0',f'v_add_u32 v123, {hex(YO)}, v123')
srd(44,24,4096*1152); srd(48,30,4608*1152)
tag_ready()
A(*BB)
selectors(8,104)
thr=sum(t<<(6*i) for i,t in enumerate(THR))
A(f's_mov_b32 s8, {hex(thr)}','s_mul_i32 s9, s15, 6','s_lshr_b32 s8, s8, s9','s_and_b32 s64, s8, 63')
if PT:
    lds_spin(LD,8,104,'pt',sleep=4)
    A('buffer_load_dwordx4 v[76:79], v120, s[52:55], s14 offen')
lds_spin(GF,1,104,'gl',sleep=4)
A('ds_read_b64 v[72:73], v121')
lds_spin(LD,'s64',104,'wg',sleep=WGS)
if WPB<5:
    A(f's_cmp_lt_u32 s15, {WPB}','s_cbranch_scc1 L_Wnopb')
    lds_spin(QI if WQI else PB,1,104,'wpb',sleep=0)
    A('L_Wnopb:')
A('s_setprio 1')
for t in range(4): A(f'buffer_load_dwordx4 v[{16+4*t}:{19+4*t}], v4, s[48:51], s10 offen offset:{t*1152}{PW}')
A(f'buffer_load_dwordx4 v[32:35], v5, s[48:51], s13 offen{PW}')
for t in range(4): A(f'buffer_load_dwordx4 v[{36+4*t}:{39+4*t}], v4, s[44:47], s12 offen offset:{t*1152}{PW}')
stamp(15,'W')
lds_spin(YHF,1,104,'yh',sleep=1)
A('ds_read_b128 v[64:67], v122','s_waitcnt lgkmcnt(0)')
for t in range(5):
    a=104+4*(t&1)
    buildA(a, 64+t//2, t&1)
    A(f's_waitcnt vmcnt({8-t})','s_nop 0')
    mfma(116,a,16+4*t,t==0)
A('s_nop 7')
if WDK: A('v_mov_b32 v104, 1',f'v_mov_b32 v105, {hex(WD)}','s_mov_b64 exec, 1','ds_add_u32 v105, v104','s_mov_b64 exec, -1')
for r in range(4): A(f'v_mul_f32 v{116+r}, v73, v{116+r}')
A('s_setprio 3')
if FINE in (2,4):
    A('s_waitcnt vmcnt(0)'); stamp(8,'W')
lds_spin(YOF,1,104,'yo',sleep=0)
A('ds_read_b64 v[64:65], v123','s_waitcnt lgkmcnt(0)')
for t in range(4):
    buildA(80+4*t, 64+t//2, t&1)
    if t>0:
        A(f's_waitcnt vmcnt({4-t})')
        mfma(112,80+4*(t-1),36+4*(t-1),t==1)
A('s_waitcnt vmcnt(0)')
mfma(112,92,48,False)
A('s_nop 7')
for r in range(4): A(f'v_fma_f32 v{112+r}, v72, v{112+r}, v{116+r}')
for r in range(4): A(f'v_bfi_b32 v{112+r}, s41, v7, v{112+r}')
A('buffer_store_dwordx4 v[112:115], v120, s[52:55], s14 offen sc1')
stamp(9,'W')
red_id()
A(f's_cmp_ge_u32 s14, {NRED}','s_cbranch_scc1 L_Wend')
if ACK: A('s_waitcnt vmcnt(0)')
A('s_barrier','L_Wend:')
flush_stamps('W')
A('L_end:','s_endpgm','L_code_end:')
A('.section .rodata,"a"','.p2align 6',f'.amdhsa_kernel {KNAME}')
A('  .amdhsa_next_free_vgpr 128','  .amdhsa_next_free_sgpr 102','  .amdhsa_accum_offset 128')
A('  .amdhsa_group_segment_fixed_size 0','  .amdhsa_kernarg_size 96','  .amdhsa_user_sgpr_count 2','  .amdhsa_user_sgpr_kernarg_segment_ptr 1','  .amdhsa_system_sgpr_workgroup_id_x 1')
A('  .amdhsa_float_denorm_mode_32 3','.end_amdhsa_kernel')
import subprocess, re, os
def emit(nl):
    t='\n'.join(L)+'\n'
    return t.replace('PFSTEP',hex(0x100+0) if nl is None else f'{(nl+31)//32:#x}').replace('NLINES',hex(0x100) if nl is None else f'{nl:#x}')
def size_of(txt):
    open(out+'.tmp.s','w').write(txt)
    subprocess.run(['clang','-x','assembler','-target','amdgcn-amd-amdhsa','-mcpu=gfx950','-c',out+'.tmp.s','-o',out+'.tmp.o'],check=True)
    o=subprocess.run(['llvm-readelf','-S',out+'.tmp.o'],capture_output=True,text=True).stdout
    os.remove(out+'.tmp.s'); os.remove(out+'.tmp.o')
    m=re.search(r'\.text\s+PROGBITS\s+\w+\s+\w+\s+(\w+)',o)
    return int(m.group(1),16)
sz=size_of(emit(None)); nl=sz//128
txt=emit(nl); sz2=size_of(txt)
while nl*128>sz2:
    nl-=1; txt=emit(nl); sz2=size_of(txt)
open(out,'w').write(txt)
print('code bytes',sz2,end=' ')
print('lines',len(L),'lds',LDS,'ws end',hex(WS_END))
```

```python
import sys, struct
KNAME='gated_mix__sliding_block_cached__dense_activation_relu__decode_kernel'
opts=dict(a.split('=') for a in sys.argv[2:])
out=sys.argv[1]
def I(n,d): return int(opts.get(n,d))
STAMPS=I('stamps',0); PROBE=I('probe',-1); PMUL=I('pmul',2); FINE=I('fine',0)
SPIN=I('spin',1<<17); GSPIN=I('gspin',1<<17); WIN=I('win',32)
THR=[int(x) for x in opts.get('thr','26,29,28,28,28').split(',')]
RP=opts.get('ramp','20').split(',')
RAMPC={int(x.split(':')[0]):int(x.split(':')[1]) for x in RP[:-1]}; RAMPN=int(RP[-1])
SLP=I('slp',1); WIN2=I('win2',0); N2=I('n2',64); FLD=opts.get('fld','sc1').replace('+',' '); FSLP=I('fslp',0); FLAY=opts.get('flay','c'); FDL=I('fdl',0); PR=I('pr',1); PSL=I('psl',6); ACK=I('ack',1); WPB=I('wpb',2); CPF=I('cpf',24); CSZ=I('csz',0); SPEC=I('spec',1); WGS=I('wgs',2); RND=I('rnd',1); PTO=I('pto',0); QB=I('qb',4); WQI=I('wqi',1); OCS=I('ocs',0); DV=I('dv',0); DVT=I('dvt',21); B0=I('b0',0); PIPE=I('pipe',0); PGAP=I('pgap',0); CG=1; RM=I('rm',1); HPF=I('hpf',0); WB=I('wb',0); OSP=opts.get('osp','').replace('+',' '); SPF=I('spf',0); SPG=I('spg',128); PFW=I('pfw',3); FAST=I('fast',1); NOQ=I('noq',0); NOH=I('noh',0); QFAST=I('qfast',0); WDK=I('wdk',0); HTH=I('hth',20); PSW=I('psw',1); QSL=I('qsl',4); PT=I('pt',0); NOST=I('nostore',0); NOPOLL=I('nopoll',0)
NRED=72
def pol(n):
    p=opts.get(n,'nt').replace('+',' ')
    return '' if p=='none' else ' '+p
PKV=pol('pkv'); PW=pol('pw')
def f2u(f): return struct.unpack('<I',struct.pack('<f',f))[0]
EPOCH=0x0
QP=0x1000
OP=QP+0x40000
HP=OP+0x80000
FP=HP+7*2*4608*4
QA=FP+256*4608
FL=QA+0x40000
WS_END=FL+256*128
WS_SIZE=0x10000000 if STAMPS else WS_END
STAMP_OFF=0x8000000
OOB=0x7f000000
VL=0x10000; SB=0x20000
QL=SB+0x000; PL=SB+0x200; ML=SB+0x600; QF=SB+0x640; PF=SB+0x644; OC=SB+0x648; FC=SB+0x64c; LD=SB+0x650; CR=SB+0x654; YHF=SB+0x658; YOF=SB+0x65c; WD=SB+0x660; PB=SB+0x664; QI=SB+0x668
GL=SB+0x680; GF=SB+0x690; OACC=SB+0x800; FSL=SB+0x1800; STL=SB+0x1A00; YH=SB+0x1C00; YO=SB+0x2000
LDS=SB+0x2200
SC=0.08838834764831845*1.4426950408889634
L=[]
def A(*ss):
    for s in ss:
        if NOST and s.startswith('buffer_store') and s.endswith(' sc1'): s='s_nop 0'
        if NOPOLL and s.startswith('buffer_load') and s.endswith(' sc1'): s='s_nop 0'
        L.append(s)
lab=[0]
def newlab(p):
    lab[0]+=1; return f'L_{p}{lab[0]}'
FIRST={'C':7 if FINE else 4,'L':2,'Q':0,'H':1,'X':3,'W':11 if FINE==2 else (12 if FINE==4 else 8)}
def srd(d,p,n):
    A(f's_mov_b32 s{d}, s{p}', f's_mov_b32 s{d+1}, s{p+1}', f's_mov_b32 s{d+2}, {hex(n)}', f's_mov_b32 s{d+3}, 0x20000')
stamp_regs={}
CUR=['']
def stamp(k, role):
    if FINE==5 and not (k in (9,) or (role=='L' and k in (12,13))): return
    if FINE in (3,4) and k in (4,5,13,15) and role!='Q': return
    if PROBE==k:
        sk=newlab('pk')
        A(f's_cmp_lg_u32 s3, {FIRST[role]}', f's_cbranch_scc1 {sk}')
        A('s_memrealtime s[84:85]','s_waitcnt lgkmcnt(0)','v_mov_b32 v30, s84',f'v_mov_b32 v31, {STL}','ds_write_b32 v31, v30','s_waitcnt lgkmcnt(0)')
        A(f'{sk}:')
    if not STAMPS or k>=16: return
    lst=stamp_regs.setdefault(role,[])
    i=len(lst); lst.append(k); assert i<8
    A(f's_memrealtime s[{84+2*i}:{85+2*i}]')
def stamp_now(k):
    if not STAMPS: return
    if FINE==5 and k==6: return
    A('s_memrealtime s[80:81]','s_waitcnt lgkmcnt(0)','v_mov_b32 v20, s80','v_mov_b32 v21, s81','v_mov_b32 v22, 0')
    A('s_lshl_b32 s8, s2, 7', f's_add_u32 s8, s8, {hex(STAMP_OFF)}')
    A(f'buffer_store_dwordx2 v[20:21], v22, s[52:55], s8 offen offset:{8*k}')
S2=[]
def stamp_now2(k):
    if not STAMPS or FINE==5: return
    A(f's_memrealtime s[{96+2*len(S2)}:{97+2*len(S2)}]'); S2.append(k)
def stamp_flush2():
    if not S2: return
    A('s_waitcnt lgkmcnt(0)','v_mov_b32 v22, 0','s_lshl_b32 s8, s2, 7', f's_add_u32 s8, s8, {hex(STAMP_OFF)}')
    for i,k in enumerate(S2): A(f'v_mov_b32 v20, s{96+2*i}',f'v_mov_b32 v21, s{97+2*i}',f'buffer_store_dwordx2 v[20:21], v22, s[52:55], s8 offen offset:{8*k}','s_nop 1')
def flush_stamps(role):
    if not STAMPS: return
    lst=stamp_regs.get(role,[])
    skip=newlab('nost')
    A('s_mov_b64 exec, -1', f's_cmp_lg_u32 s3, {FIRST[role]}', f's_cbranch_scc1 {skip}', 's_waitcnt lgkmcnt(0)')
    A('s_lshl_b32 s8, s2, 7', f's_add_u32 s8, s8, {hex(STAMP_OFF)}', 'v_mov_b32 v3, 0')
    for i,k in enumerate(lst):
        A(f'v_mov_b32 v4, s{84+2*i}', f'v_mov_b32 v5, s{85+2*i}', f'buffer_store_dwordx2 v[4:5], v3, s[52:55], s8 offen offset:{k*8}', 's_waitcnt vmcnt(0)')
    A(f'{skip}:')
def epoch_load():
    A(f's_load_dword s40, s[38:39], {EPOCH}')
    srd(52,38,WS_SIZE)
    A('s_mov_b32 s41, 0xfff')
def tag_ready():
    A('s_waitcnt lgkmcnt(0)','s_add_u32 s42, s40, 1','s_and_b32 s40, s42, s41','v_mov_b32 v7, s40')
def selectors(base, tmp):
    A(f'v_mov_b32 v{tmp}, 0x0c0c0100', f'v_mov_b32 v{tmp+1}, 0x01000c0c', 's_mov_b32 s60, 0xaaaaaaaa', 's_mov_b32 s61, 0xaaaaaaaa')
    A(f'v_cndmask_b32 v{tmp}, v{tmp}, v{tmp+1}, s[60:61]')
    A(f'v_mov_b32 v{tmp+1}, 0x0c0c0302', f'v_mov_b32 v{tmp+2}, 0x03020c0c')
    A(f'v_cndmask_b32 v{tmp+1}, v{tmp+1}, v{tmp+2}, s[60:61]')
    A(f'v_mov_b32 v{tmp+2}, 0x0c0c0c0c')
    for d in range(4):
        m=(0x03030303<<(2*d))&0xffffffff
        A(f's_mov_b32 s60, {hex(m)}', f's_mov_b32 s61, {hex(m)}')
        A(f'v_cndmask_b32 v{base+d}, v{tmp+2}, v{tmp}, s[60:61]', f'v_cndmask_b32 v{base+4+d}, v{tmp+2}, v{tmp+1}, s[60:61]')
def buildA(dst, src, odd, sel=8):
    for d in range(4): A(f'v_perm_b32 v{dst+d}, v{src}, v{src}, v{sel+(4 if odd else 0)+d}')
def mfma(d,a,b,first):
    c='0' if first else f'v[{d}:{d+3}]'
    A(f'v_mfma_f32_16x16x32_bf16 v[{d}:{d+3}], v[{a}:{a+3}], v[{b}:{b+3}], {c}')
def lds_spin(addr, val, vt, name, sleep=1):
    l=newlab(name); d=newlab(name+'d')
    A(f'v_mov_b32 v{vt}, {hex(addr)}', f's_mov_b32 s62, {SPIN}', f'{l}:', f'ds_read_b32 v{vt+1}, v{vt}', 's_sub_u32 s62, s62, 1', 's_waitcnt lgkmcnt(0)')
    A(f'v_readfirstlane_b32 s63, v{vt+1}', f's_cbranch_scc1 {d}', f's_cmp_ge_u32 s63, {val}')
    if sleep: A(f's_cbranch_scc1 {d}', f's_sleep {sleep*SLP}', f's_branch {l}')
    else: A(f's_cbranch_scc0 {l}')
    A(f'{d}:')
def mpoll(loads, name, chk, init='-1', slp=0):
    lp=newlab(name); go=newlab(name+'go')
    for i,_ in enumerate(loads): A(f's_mov_b64 s[{72+2*i}:{73+2*i}], {init}')
    A(f's_mov_b32 s62, {GSPIN}', f'{lp}:')
    if slp: A(f's_sleep {slp}')
    for i,(d,n,t) in enumerate(loads):
        sk=newlab('sk')
        A(f's_mov_b64 exec, s[{72+2*i}:{73+2*i}]', f's_cbranch_execz {sk}', t, f'{sk}:')
    A('s_sub_u32 s62, s62, 1', f's_cbranch_scc1 {go}', 's_waitcnt vmcnt(0)')
    if FINE==5 and name=='fp' and CUR[0]=='L':
        A(f's_cmp_lg_u32 s62, {GSPIN-1}','s_cbranch_scc1 L_nf5'); stamp(13,'L'); A('L_nf5:')
    if FINE==4 and name=='op':
        A(f's_cmp_lg_u32 s62, {GSPIN-1}','s_cbranch_scc1 L_nf4'); stamp(5,'Q'); A('L_nf4:')
    for i,(d,n,t) in enumerate(loads):
        A(f's_mov_b64 exec, s[{72+2*i}:{73+2*i}]')
        for k in range(n): A(f'v_xor_b32 v{d+k}, v7, v{d+k}')
        if n==4: A(f'v_or3_b32 v{chk}, v{d}, v{d+1}, v{d+2}', f'v_or_b32 v{chk}, v{chk}, v{d+3}', f'v_and_b32 v{chk}, s41, v{chk}')
        else: A(f'v_and_b32 v{chk}, s41, v{d}')
        A(f'v_cmp_ne_u32 s[{72+2*i}:{73+2*i}], 0, v{chk}')
    A('s_nop 0', 's_or_b64 s[76:77], s[72:73], s[74:75]', f's_cbranch_scc1 {lp}', f'{go}:', 's_mov_b64 exec, -1', 's_waitcnt vmcnt(0)')
def ppoll(res, stage, addr, name, chk, depth):
    go=newlab(name+'go'); lp=newlab(name)
    n=len(res)
    def issue(k, first=False):
        for i in range(n):
            if first: A('s_mov_b64 exec, -1')
            else: A(f's_or_b64 exec, s[{72+2*i}:{73+2*i}], 1')
            A(f'buffer_load_dwordx4 v[{stage[k][i]}:{stage[k][i]+3}], {addr[i]}')
    def check(k):
        for i in range(n):
            d=res[i]
            A(f's_mov_b64 exec, s[{72+2*i}:{73+2*i}]')
            for q in range(4): A(f'v_xor_b32 v{d+q}, v7, v{stage[k][i]+q}')
            A(f'v_or3_b32 v{chk}, v{d}, v{d+1}, v{d+2}', f'v_or_b32 v{chk}, v{chk}, v{d+3}', f'v_and_b32 v{chk}, s41, v{chk}', f'v_cmp_ne_u32 s[{72+2*i}:{73+2*i}], 0, v{chk}')
        A('s_nop 0','s_or_b64 s[76:77], s[72:73], s[74:75]',f's_cbranch_scc0 {go}')
    for i in range(n): A(f's_mov_b64 s[{72+2*i}:{73+2*i}], -1')
    A(f's_mov_b32 s62, {GSPIN}')
    issue(0,True)
    A('s_waitcnt vmcnt(0)'); check(0)
    for k in range(depth-1):
        issue(k)
        if PGAP: A(f's_sleep {PGAP}')
    A(f'{lp}:')
    for k in range(depth):
        issue((k+depth-1)%depth)
        A(f's_waitcnt vmcnt({n*(depth-1)})')
        check(k)
    A('s_sub_u32 s62, s62, 1',f's_cbranch_scc0 {lp}',f'{go}:','s_mov_b64 exec, -1')
DPP=' row_mask:0xf bank_mask:0xf'
def allreduce(op, regs, steps, tmp=None):
    n=len(regs); pad=max(0,2-(n-1))
    ctl={'x1':'quad_perm:[1,0,3,2]','x2':'quad_perm:[2,3,0,1]','hm':'row_half_mirror','m':'row_mirror','ror4':'row_ror:4','ror8':'row_ror:8'}
    for s in steps:
        if s in ctl:
            if pad: A(f's_nop {pad-1}')
            for r in regs: A(f'{op}_dpp v{r}, v{r}, v{r} {ctl[s]}{DPP}')
        else:
            ins='v_permlane16_swap_b32' if s=='r16' else 'v_permlane32_swap_b32'
            for i,r in enumerate(regs): A(f'v_mov_b32 v{tmp+i}, v{r}')
            A('s_nop 1')
            for i,r in enumerate(regs): A(f'{ins} v{r}, v{tmp+i}')
            A('s_nop 0')
            for i,r in enumerate(regs): A(f'{op} v{r}, v{r}, v{tmp+i}')
def pkadd(d,a,b):
    for k in (0,2): A(f'v_pk_add_f32 v[{d+k}:{d+k+1}], v[{a+k}:{a+k+1}], v[{b+k}:{b+k+1}]')
BB=('s_barrier',)

for c in """Fused decode step in one launch: out = g*attn(x)@wo + (1-g)*relu(x@w1)@w2, g = sigmoid(x.gate_w).
Kernarg: x, k_cache, v_cache, wq, wo, B_x (unused), w1, w2, gate_w, out, debug, ws (8-byte pointers).
256 workgroups (one per CU), wg = xcd(3b) | kvh&1 | batch | split(3b); 13 role-specialised waves:
  0 Q: 72x128 slab of wq -> q partial, gathers q    1 H: slab of w1 -> h partial, gathers h
  2 L: streams the 256-key K and V slices into LDS (windowed LDS-DMA)   3 X: gate, code prefetch
  4-7 C: QK^T, softmax (true running max), PV, publish o partial, gather + combine o
  8-12 W: 16 rows of wo + 18 rows of w2, one column block each -> output partial
  waves 0-7 of workgroups 0..71: sum the 256 output partials, 16 outputs per workgroup.
GEMVs use 16x16x32 bf16 MFMA with the vector spread on a diagonal A operand (weights stay row-major).
Hand-offs go through ws as 16-byte granules whose low mantissa bits carry a per-launch tag (epoch+1);
every reader verifies the tag of every word, so results do not depend on placement or stale ws data.
Generated by gen/gen8.py.""".split('\n'): A('; '+c)
A(f'; @launch grid=(256,1,1) block=(832,1,1) lds={LDS}')
A('.amdgcn_target "amdgcn-amd-amdhsa--gfx950"','.text',f'.globl {KNAME}','.p2align 8',f'.type {KNAME},@function',f'{KNAME}:')
if STAMPS or PROBE>=0: A('s_memrealtime s[82:83]')
A('s_cmp_ge_u32 s2, 256','s_cbranch_scc1 L_end')
A('s_load_dwordx16 s[16:31], s[0:1], 0','s_load_dwordx8 s[32:39], s[0:1], 64')
A('v_lshrrev_b32 v1, 6, v0','v_and_b32 v0, 63, v0','s_and_b32 s4, s2, 7','v_readfirstlane_b32 s3, v1')
A('s_lshl_b32 s4, s4, 1','s_bfe_u32 s5, s2, 0x10003','s_add_u32 s4, s4, s5')
A('s_bfe_u32 s5, s2, 0x10004','s_lshr_b32 s6, s2, 5','s_lshr_b32 s7, s2, 4')
A('v_and_b32 v1, 15, v0','v_lshrrev_b32 v2, 4, v0')
if CPF:
    A(f's_cmp_lg_u32 s3, {PFW}','s_cbranch_scc1 L_nopf')
    A('s_getpc_b64 s[10:11]','s_and_b32 s10, s10, 0xffffff00','s_lshr_b32 s8, s2, 3','s_mul_i32 s8, s8, PFSTEP','v_add_u32 v3, s8, v0')
    A('v_subrev_u32 v4, NLINES, v3','v_min_u32 v3, v3, v4','v_lshlrev_b32 v3, 7, v3',f's_mov_b32 exec_lo, {hex(((1<<CPF)-1)&0xffffffff)}',f's_mov_b32 exec_hi, {hex(((1<<CPF)-1)>>32)}','global_load_dword v127, v3, s[10:11]','s_mov_b64 exec, -1','L_nopf:')
A('s_cmp_gt_u32 s3, 1','s_cbranch_scc1 L_disp')
QPOS=len(L)

def red_id():
    if RM: A('s_lshr_b32 s14, s2, 4','s_lshl_b32 s14, s14, 3','s_and_b32 s8, s2, 7','s_add_u32 s14, s14, s8','s_lshl_b32 s14, s14, 1','s_bfe_u32 s8, s2, 0x10003','s_add_u32 s14, s14, s8')
    else: A('s_mov_b32 s14, s2')
RED_EMITTED=[0]
def reducer(role):
    CUR[0]=role
    if not STAMPS:
        if RED_EMITTED[0]:
            A('s_branch L_red'); return
        RED_EMITTED[0]=1; A('L_red:')
    fin=newlab('fin')
    red_id()
    A(f's_cmp_ge_u32 s14, {NRED}', f's_cbranch_scc1 {fin}', 's_setprio 0')
    A('v_lshlrev_b32 v5, 4, v0','v_and_b32 v6, 3, v0')
    if FLAY=='t': A('s_lshl_b32 s8, s14, 14','s_lshl_b32 s9, s3, 11','s_add_u32 s8, s8, s9',f's_add_u32 s8, s8, {hex(FP)}','s_add_u32 s11, s8, 1024')
    else: A('v_lshrrev_b32 v5, 2, v0','v_mul_u32_u24 v5, 4608, v5','v_lshl_add_u32 v5, v6, 4, v5',f's_mul_i32 s8, s3, {32*4608}','s_lshl_b32 s9, s14, 6','s_add_u32 s8, s8, s9',f's_add_u32 s8, s8, {hex(FP)}',f's_add_u32 s11, s8, {16*4608}')
    A('v_bfe_u32 v8, v0, 2, 2','v_lshl_add_u32 v8, v6, 2, v8','v_lshlrev_b32 v8, 5, v8','s_lshl_b32 s10, s3, 2',f's_add_u32 s10, s10, {hex(FSL)}','v_add_u32 v8, s10, v8')
    A('v_mov_b32 v11, 1',f'v_mov_b32 v10, {hex(FC)}','v_lshlrev_b32 v12, 5, v0',f'v_add_u32 v12, {hex(FSL)}, v12','v_lshlrev_b32 v13, 1, v0')
    srd(44,34,2304)
    A('s_lshl_b32 s10, s14, 5')
    A('s_mov_b32 s64, 0x00f000f0','s_mov_b32 s65, 0x00f000f0','s_mov_b32 s66, 0x0f000f00','s_mov_b32 s67, 0x0f000f00','s_mov_b32 s68, 0xf000f000','s_mov_b32 s69, 0xf000f000')
    A('s_barrier')
    if FDL: A(f's_sleep {FDL}')
    if role=='L' and FINE==5: stamp(12,'L')
    if PIPE: ppoll([16,20],[[32+8*k,36+8*k] for k in range(PIPE)],[f'v5, s[52:55], s8 offen {FLD}',f'v5, s[52:55], s11 offen {FLD}'],'fp',9,PIPE)
    else: mpoll([(16,4,f'buffer_load_dwordx4 v[16:19], v5, s[52:55], s8 offen {FLD}'),(20,4,f'buffer_load_dwordx4 v[20:23], v5, s[52:55], s11 offen {FLD}')],'fp',9,slp=FSLP)
    if role=='C': stamp(10, role)
    if FINE==5:
        A('s_memrealtime s[80:81]','s_waitcnt lgkmcnt(0)','v_mov_b32 v24, s80','v_mov_b32 v25, s81','v_mov_b32 v26, 0','s_lshl_b32 s8, s2, 7', f's_add_u32 s8, s8, {hex(STAMP_OFF+8)}','s_lshl_b32 s9, s3, 3','s_add_u32 s8, s8, s9','buffer_store_dwordx2 v[24:25], v26, s[52:55], s8 offen')
    for k in range(4): A(f'v_add_f32 v{16+k}, v{16+k}, v{20+k}')
    allreduce('v_add_f32',[16,17,18,19],['ror4','ror8'])
    A('v_cndmask_b32 v16, v16, v17, s[64:65]','v_cndmask_b32 v16, v16, v18, s[66:67]','v_cndmask_b32 v16, v16, v19, s[68:69]')
    allreduce('v_add_f32',[16],['r16','r32'],tmp=17)
    A('s_mov_b64 exec, 0xffff','ds_write_b32 v8, v16','s_mov_b64 exec, 1','ds_add_rtn_u32 v9, v10, v11','s_mov_b64 exec, 0xffff')
    if SPEC: A('ds_read_b128 v[16:19], v12','ds_read_b128 v[20:23], v12 offset:16','s_waitcnt lgkmcnt(2)')
    else: A('s_waitcnt lgkmcnt(0)')
    A('v_readfirstlane_b32 s8, v9','s_cmp_lg_u32 s8, 7',f's_cbranch_scc1 {fin}')
    if not SPEC: A('ds_read_b128 v[16:19], v12','ds_read_b128 v[20:23], v12 offset:16')
    A('s_waitcnt lgkmcnt(0)')
    pkadd(16,16,20)
    A('v_pk_add_f32 v[16:17], v[16:17], v[18:19]','v_add_f32 v16, v16, v17','v_cvt_pk_bf16_f32 v16, v16, v16')
    A(f'buffer_store_short v16, v13, s[44:47], s10 offen {OSP}')
    stamp_now(11)
    A('s_mov_b64 exec, 1','s_cmp_lg_u32 s2, 0',f's_cbranch_scc1 {fin}')
    if PROBE>=0:
        pl=newlab('pl')
        A('s_memrealtime s[80:81]',f'v_mov_b32 v31, {STL}','ds_read_b32 v30, v31','s_waitcnt lgkmcnt(0)','v_readfirstlane_b32 s84, v30')
        if PROBE==11: A('s_mov_b32 s84, s80')
        A('s_sub_u32 s84, s84, s82','s_min_u32 s84, s84, 10000',f's_mul_i32 s84, s84, {PMUL}')
        A(f'{pl}:','s_memrealtime s[86:87]','s_waitcnt lgkmcnt(0)','s_sub_u32 s86, s86, s80','s_cmp_lt_u32 s86, s84',f's_cbranch_scc1 {pl}')
    A('v_mov_b32 v9, s42','v_mov_b32 v8, 0',f'buffer_store_dword v9, v8, s[52:55], 0 offen offset:{EPOCH}')
    A(f'{fin}:')
    flush_stamps(role)
    A('s_endpgm')

def gemv_loop(n, credits):
    A(f's_waitcnt vmcnt({n})')
    for t in range(n):
        a=(28,120)[t&1]
        buildA(a, 16+t//2, t&1)
        A(f's_waitcnt vmcnt({n-1-t})')
        A('s_memrealtime s[98:99]' if (FINE==3 and t==0) else 's_nop 0')
        mfma(124,a,32+4*t,t==0)
        if t in credits: A('s_mov_b64 exec, 1','ds_add_u32 v6, v3','s_mov_b64 exec, -1')
    A('s_nop 7')
    for r in range(4): A(f'v_bfi_b32 v{124+r}, s56, v7, v{124+r}')
    A('buffer_store_dwordx4 v[124:127], v5, s[52:55], s13 offen sc1')

A('s_setprio 3')
A('s_mul_i32 s9, s2, 293','s_lshr_b32 s9, s9, 11','s_mul_i32 s10, s9, 7','s_sub_u32 s10, s2, s10')
A('s_mul_i32 s11, s10, 88','s_mul_i32 s12, s10, 80','s_add_u32 s12, s12, 16','s_min_u32 s11, s11, s12')
A('s_cmp_lt_u32 s10, 2','s_cselect_b32 s14, 22, 20',f's_cselect_b32 s57, 0, {hex(OOB)}')
A('s_lshl_b32 s15, s9, 8','s_cmp_ge_u32 s2, 252',f's_cselect_b32 s15, {hex(OOB)}, s15')
A('s_lshr_b32 s12, s7, 1','s_mul_i32 s13, s12, 72','s_and_b32 s8, s7, 1','s_lshl_b32 s58, s4, 1','s_add_u32 s58, s58, s8','s_lshl_b32 s59, s58, 8')
A('s_lshl_b32 s43, s3, 10','s_add_u32 s43, s43, 8192')
A('s_cmp_eq_u32 s3, 0','s_cselect_b32 s11, s13, s11','s_cselect_b32 s14, 18, s14','s_cselect_b32 s15, s59, s15',f's_cselect_b32 s56, {hex(OOB)}, 0','s_cselect_b32 s57, 0, s57')
A('s_mul_i32 s8, s14, s43','v_mul_u32_u24 v3, s8, v2','v_lshl_add_u32 v3, v1, 4, v3')
A('v_bfe_u32 v4, v0, 3, 1','v_mul_u32_u24 v4, 1152, v4','s_lshl_b32 s8, s14, 1','v_mul_u32_u24 v5, s8, v2','v_add_u32 v4, v4, v5')
A('s_lshl_b32 s8, s11, 1','s_mul_i32 s11, s11, s43','s_add_u32 s11, s11, s15','s_mul_i32 s50, s43, 576','s_mov_b32 s51, 0x20000','s_mov_b32 s46, 2304','s_mov_b32 s47, 0x20000','s_cmp_eq_u32 s3, 0')
A('s_waitcnt lgkmcnt(0)')
if FINE==3: A('s_memrealtime s[94:95]')
A(f's_load_dword s40, s[38:39], {EPOCH}')
A('s_mov_b32 s44, s16','s_mov_b32 s45, s17','s_cselect_b32 s48, s22, s28','s_cselect_b32 s49, s23, s29')
if B0: A('s_cbranch_scc1 L_nb0','s_barrier','L_nb0:')
stamp(22,'Q')
A('buffer_load_dwordx4 v[16:19], v4, s[44:47], s8 offen','buffer_load_dwordx4 v[20:23], v4, s[44:47], s8 offen offset:16','buffer_load_dwordx3 v[24:26], v4, s[44:47], s8 offen offset:32')
for t in range(22):
    A(f'buffer_load_dwordx4 v[{32+4*t}:{35+4*t}], v3, s[48:51], s11 offen{PW}')
    if t<21: A('s_add_u32 s11, s11, s43')
    if t==17: A('s_add_u32 s11, s11, s56')
    if t==19: A('s_add_u32 s11, s11, s57')
if B0: A('s_cmp_lg_u32 s3, 0','s_cbranch_scc1 L_nb1','s_barrier','L_nb1:')
if FINE==3: A('s_memrealtime s[96:97]')
stamp(21,'Q')
A('s_barrier')
A('s_branch L_QH2')
A('L_disp:')
A('s_cmp_eq_u32 s3, 2','s_cbranch_scc1 L_L')
A('v_mov_b32 v4, 0','v_lshlrev_b32 v5, 2, v0',f'v_add_u32 v5, {hex(ML)}, v5','ds_write_b32 v5, v4','s_waitcnt lgkmcnt(0)')
epoch_load()
A('s_barrier')
A('s_cmp_eq_u32 s3, 3','s_cbranch_scc1 L_X','s_cmp_ge_u32 s3, 8','s_cbranch_scc1 L_W','s_branch L_C')
A('L_L:','s_setprio 3')
for u in range(4): A(f'v_add_u32 v8, {4*u}, v2','v_xor_b32 v8, v8, v1','v_lshlrev_b32 v8, 4, v8',f'v_lshl_add_u32 v{12+u}, v2, 8, v8')
A('s_lshl_b32 s12, s5, 4','s_add_u32 s12, s12, s4','s_lshl_b32 s12, s12, 21','s_lshl_b32 s13, s6, 16','s_add_u32 s12, s12, s13','s_add_u32 s12, s12, 0x180000')
A('s_lshr_b32 s13, s2, 3','s_add_u32 s13, s13, s2','s_lshl_b32 s13, s13, 12','s_mov_b32 s46, 0x4000000','s_mov_b32 s47, 0x20000','s_mov_b32 s50, 0x4000000','s_mov_b32 s51, 0x20000')
A('v_lshlrev_b32 v3, 4, v0',f'v_mov_b32 v9, {hex(LD)}','s_waitcnt lgkmcnt(0)')
A('s_mov_b32 s44, s18','s_mov_b32 s45, s19','s_mov_b32 s48, s20','s_mov_b32 s49, s21')
epoch_load()
A('s_barrier')
stamp(20,'L')
n=0; sig=0
def signal(upto):
    global sig
    if upto>sig:
        sig=upto
        A(f'v_mov_b32 v10, {upto}','ds_write_b32 v9, v10')
NT=32
for i in range(NT):
    for u in range(4):
        if n in RAMPC: lds_spin(CR,RAMPC[n],16,'cr',sleep=0)
        if n==RAMPN:
            tag_ready(); A('s_barrier')
        if u==0: A('s_and_b32 s14, s13, 0xf000','s_add_u32 s14, s14, s12','s_add_u32 s13, s13, 0x1000',f's_mov_b32 m0, {hex(i*4096)}')
        w = RAMPN if n==RAMPN else (WIN2 if (WIN2 and n>=N2) else WIN)
        if n>=w:
            A(f's_waitcnt vmcnt({w-1})')
            signal((n-w+1)//4)
        elif u==0: A('s_nop 0')
        if i<16: A(f'buffer_load_dwordx4 v{12+u}, s[44:47], s14 offen offset:{u*1024}{PKV} lds')
        else: A(f'buffer_load_dwordx4 v3, s[48:51], s14 offen offset:{u*1024}{PKV} lds')
        n+=1
stamp(14,'L')
while sig<NT:
    A(f's_waitcnt vmcnt({4*NT-4*(sig+1)})')
    signal(sig+1)
stamp(3,'L')
LRED=len(L)
A('s_branch L_Lred')
A('.p2align 6','L_QH2:')
srd(52,38,WS_SIZE); A('s_mov_b32 s41, 0xfff')
A(f's_mul_i32 s13, s10, {2*4608*4}','s_lshl_b32 s8, s15, 1','s_add_u32 s13, s13, s8',f's_add_u32 s13, s13, {hex(HP)}')
A('s_lshl_b32 s8, s4, 14','s_lshl_b32 s9, s12, 10','s_add_u32 s8, s8, s9','s_and_b32 s9, s7, 1','s_lshl_b32 s9, s9, 9','s_add_u32 s8, s8, s9',f's_add_u32 s8, s8, {hex(QP)}')
A('s_cmp_ge_u32 s2, 252',f's_cselect_b32 s13, {hex(OOB)}, s13','s_cmp_eq_u32 s3, 0','s_cselect_b32 s13, s8, s13','s_mul_i32 s8, s3, 10240','s_add_u32 s8, s8, 8192')
A('v_lshrrev_b32 v5, 1, v2','v_mul_u32_u24 v5, s8, v5','v_lshl_add_u32 v5, v1, 5, v5','v_and_b32 v6, 1, v2','v_lshl_add_u32 v5, v6, 4, v5')
tag_ready()
A('s_barrier')
selectors(8, 120)
A(f'v_mov_b32 v6, {hex(CR)}','v_mov_b32 v3, 1','s_cmp_eq_u32 s3, 0',f's_cselect_b32 s56, {hex((1<<QB)-1)}, s41','v_and_b32 v27, s56, v7')
gemv_loop(22,(9,17))
A('s_cmp_lg_u32 s3, 0','s_cbranch_scc1 L_H2')
A('s_getreg_b32 s15, hwreg(HW_REG_XCC_ID, 0, 3)','s_lshl_b32 s8, s42, 3','s_or_b32 s15, s15, s8')
A('v_mov_b32 v25, v27','v_lshlrev_b32 v26, 7, v0','v_mov_b32 v27, s15','s_lshl_b32 s14, s4, 11','s_lshl_b32 s8, s7, 2','s_add_u32 s14, s14, s8',f's_add_u32 s14, s14, {hex(FL)}')
A('s_mov_b64 exec, 0xffff','buffer_store_dword v27, v26, s[52:55], s14 offen sc1','s_mov_b64 exec, -1')
stamp(1,'Q')
if FINE==3:
    A('s_waitcnt lgkmcnt(0)','s_lshl_b32 s8, s2, 7', f's_add_u32 s8, s8, {hex(STAMP_OFF)}','v_mov_b32 v22, 0')
    for sr,k in ((82,4),(94,5),(96,13),(98,15)):
        A(f'v_mov_b32 v20, s{sr}',f'v_mov_b32 v21, s{sr+1}',f'buffer_store_dwordx2 v[20:21], v22, s[52:55], s8 offen offset:{8*k}','s_nop 1')
A('v_lshlrev_b32 v5, 4, v0')
A('s_lshl_b32 s13, s4, 1','s_add_u32 s13, s13, s5','s_lshl_b32 s13, s13, 13',f's_add_u32 s13, s13, {hex(QP)}','s_add_u32 s14, s13, 4096')
A('s_lshl_b32 s8, s4, 4','s_add_u32 s8, s8, s7','s_lshl_b32 s8, s8, 7',f's_add_u32 s8, s8, {hex(FL)}','s_add_u32 s46, s38, s8','s_addc_u32 s47, s39, 0')
A('s_mov_b32 s8, 1',f's_mov_b32 s62, {GSPIN}','L_qprobe:',f's_sleep {QSL}','s_load_dwordx16 s[64:79], s[46:47], 0 glc','s_sub_u32 s62, s62, 1','s_cbranch_scc1 L_qfetch0','s_waitcnt lgkmcnt(0)')
A('s_xor_b32 s8, s64, s15')
for p in range(1,16): A(f's_xor_b32 s9, s{64+p}, s15','s_or_b32 s8, s8, s9')
A('s_lshr_b32 s9, s8, 3')
A('s_cbranch_scc1 L_qprobe','L_qfetch0:',f's_mov_b32 s62, {GSPIN}','s_waitcnt lgkmcnt(0)')
if QFAST: A('s_cmp_eq_u32 s8, 0',f's_cselect_b32 s9, {QA-QP}, 0','s_add_u32 s13, s13, s9','s_add_u32 s14, s14, s9')
if FINE==1: stamp(8,'Q')
A('L_qfetch:')
if NOQ: A('s_branch L_qgo')
for r in range(8): A(f'buffer_load_dwordx4 v[{32+4*r}:{35+4*r}], v5, s[52:55], s{13 if r<4 else 14} offen offset:{(r&3)*1024} sc1')
A('s_sub_u32 s62, s62, 1','s_cbranch_scc1 L_qgo','v_mov_b32 v6, 0')
for r in range(8):
    A(f's_waitcnt vmcnt({7-r})')
    for k in range(4): A(f'v_xor_b32 v{32+4*r+k}, v25, v{32+4*r+k}')
    A(f'v_or3_b32 v6, v6, v{32+4*r}, v{33+4*r}',f'v_or3_b32 v6, v6, v{34+4*r}, v{35+4*r}')
A('v_and_b32 v6, s56, v6','v_cmp_ne_u32 vcc, 0, v6','s_cbranch_vccnz L_qfetch','L_qgo:','s_waitcnt vmcnt(0)')
for r in (0,2,4,6): pkadd(32+4*r,32+4*r,36+4*r)
pkadd(32,32,40); pkadd(48,48,56); pkadd(32,32,48)
A('v_cvt_pk_bf16_f32 v32, v32, v33','v_cvt_pk_bf16_f32 v33, v34, v35','v_lshlrev_b32 v5, 3, v0',f'v_add_u32 v5, {hex(QL)}, v5','ds_write_b64 v5, v[32:33]')
A('s_cmp_eq_u32 s8, 0',f's_cselect_b32 s9, {1+FAST}, 1','v_mov_b32 v6, s9',f'v_mov_b32 v5, {hex(QF)}','ds_write_b32 v5, v6')
stamp(2,'Q')
if not CG:
    A('v_lshlrev_b32 v123, 11, v1','v_lshl_add_u32 v122, v2, 4, v123')
    A('s_lshl_b32 s43, s4, 15','s_lshl_b32 s8, s7, 7','s_add_u32 s43, s43, s8',f's_add_u32 s43, s43, {hex(OP)}')
    A('v_lshlrev_b32 v121, 3, v0',f'v_add_u32 v121, {hex(YO)}, v121',f'v_mov_b32 v120, {hex(YOF)}','v_mov_b32 v119, 1')
    lds_spin(PB,1,104,'oc',sleep=OCS)
    if WDK: lds_spin(WD,WDK,104,'wd',sleep=0)
    if FINE==4: stamp(4,'Q')
    if PR:
        for k in range(PR):
            if k: A(f's_sleep {PSL}')
            A(f'buffer_load_dwordx4 v[{16+8*k}:{19+8*k}], v122, s[52:55], s43 offen sc1',f'buffer_load_dwordx4 v[{20+8*k}:{23+8*k}], v123, s[52:55], s43 offen offset:64 sc1')
        if WQI: A(f'ds_write_b32 v120, v119 offset:{QI-YOF}')
        for k in range(PR):
            A(f's_waitcnt vmcnt({2*(PR-1-k)})')
            for i in range(8): A(f'v_xor_b32 v{64+i}, v7, v{16+8*k+i}')
            A('v_or3_b32 v74, v64, v65, v66','v_or3_b32 v74, v74, v67, v68','v_or3_b32 v74, v74, v69, v70','v_or_b32 v74, v74, v71','v_and_b32 v74, s41, v74','v_cmp_ne_u32 vcc, 0, v74','s_cbranch_vccz L_odone')
    mpoll([(64,4,'buffer_load_dwordx4 v[64:67], v122, s[52:55], s43 offen sc1'),(68,4,'buffer_load_dwordx4 v[68:71], v123, s[52:55], s43 offen offset:64 sc1')],'op',74)
    A('L_odone:')
    if FINE==4:
        A(f's_sub_u32 s8, {GSPIN}, s62','s_mul_i32 s8, s8, 100','s_waitcnt lgkmcnt(0)','s_add_u32 s98, s82, s8','s_addc_u32 s99, s83, 0','s_lshl_b32 s8, s2, 7', f's_add_u32 s8, s8, {hex(STAMP_OFF)}','v_mov_b32 v22, 0','v_mov_b32 v20, s98','v_mov_b32 v21, s99','buffer_store_dwordx2 v[20:21], v22, s[52:55], s8 offen offset:120')
    stamp(7,'Q')
    allreduce('v_max_f32',[70],['x1','x2','hm'])
    A('v_sub_f32 v68, v68, v70','v_exp_f32 v68, v68','s_nop 0','v_mul_f32 v69, v68, v69')
    for k in range(4): A(f'v_mul_f32 v{64+k}, v68, v{64+k}')
    allreduce('v_add_f32',[69,64,65,66,67],['x1','x2','hm'])
    A('v_rcp_f32 v69, v69','s_nop 0')
    for k in range(4): A(f'v_mul_f32 v{64+k}, v69, v{64+k}')
    A('v_cvt_pk_bf16_f32 v64, v64, v65','v_cvt_pk_bf16_f32 v65, v66, v67','ds_write_b64 v121, v[64:65]','ds_write_b32 v120, v119')
reducer('Q')

A('.p2align 6')
A('L_H2:')
stamp(12,'H')
A('v_and_b32 v6, 7, v0','v_lshlrev_b32 v6, 1, v6','v_bfe_u32 v9, v0, 3, 1','v_add_u32 v6, v6, v9',f'v_mul_u32_u24 v6, {4608*4}, v6')
A('v_mov_b32 v9, v6','v_lshl_add_u32 v6, v2, 4, v6')
A('s_mul_i32 s11, s2, 72',f's_add_u32 s11, s11, {hex(HP)}','s_and_b32 s8, s2, 1','s_lshl_b32 s8, s8, 3','s_sub_u32 s12, s11, s8')
A('s_cmp_eq_u32 s8, 0','s_cselect_b32 s64, 0, -1','s_mov_b32 s65, s64','s_mov_b32 s66, 0xffff0000','s_mov_b32 s67, 0xffff0000')
A('v_lshlrev_b32 v121, 4, v0',f'v_add_u32 v121, {hex(YH)}, v121',f'v_mov_b32 v120, {hex(YHF)}','v_mov_b32 v119, 1')
for k in range(8): A(f'v_mov_b32 v{64+k}, 0')
A('s_mov_b32 s78, 0x7f7f7f7f','s_mov_b32 s79, 0x7f7f7f7f')
if HPF:
    lds_spin(LD,HPF,104,'hq',sleep=4)
    A('s_add_u32 s56, s38, s12','s_addc_u32 s57, s39, 0')
    for e in range(14):
        A(f's_load_dword s{80+(e&1)}, s[56:57], {e*18432}',f's_load_dword s{82+(e&1)}, s[56:57], {e*18432+76}')
        if e%4==3: A('s_waitcnt lgkmcnt(0)') if False else None
    A('s_waitcnt lgkmcnt(0)')
lds_spin(LD,HTH,104,'hl',sleep=4)
if not NOH: mpoll([(64,4,'buffer_load_dwordx4 v[64:67], v6, s[52:55], s11 offen sc1'),(68,4,'buffer_load_dwordx4 v[68:71], v9, s[52:55], s12 offen offset:64 sc1')],'hp',72,init='s[78:79]')
A('v_cndmask_b32 v68, v68, v70, s[64:65]','v_cndmask_b32 v69, v69, v71, s[64:65]','v_cndmask_b32 v68, v68, v69, s[66:67]','s_nop 0')
stamp(13,'H')
allreduce('v_add_f32',[64,65,66,67,68],['x1','x2','hm'])
for k in range(5): A(f'v_max_f32 v{64+k}, 0, v{64+k}')
A('v_cvt_pk_bf16_f32 v64, v64, v65','v_cvt_pk_bf16_f32 v65, v66, v67','v_cvt_pk_bf16_f32 v66, v68, v68','ds_write_b128 v121, v[64:67]','ds_write_b32 v120, v119')
reducer('H')

A('L_Lred:')
reducer('L')
A('.p2align 6','L_C:','s_setprio 2','s_sub_u32 s15, s3, 4')
A('v_lshlrev_b32 v122, 4, v0',f'v_add_u32 v122, {hex(OACC)}, v122','s_lshl_b32 s8, s15, 10','v_add_u32 v125, s8, v122')
tag_ready()
A(*BB)
selectors(8,104)
A('s_lshl_b32 s8, s15, 12')
for ks in range(4): A(f'v_add_u32 v4, {4*ks}, v2','v_xor_b32 v4, v4, v1','v_lshlrev_b32 v4, 4, v4','v_lshl_add_u32 v4, v1, 8, v4',f'v_add_u32 v{116+ks}, s8, v4')
A('v_lshlrev_b32 v3, 4, v0',f's_add_u32 s9, s8, {hex(VL)}','v_add_u32 v3, s9, v3')
A('v_and_b32 v5, 1, v0','v_lshlrev_b32 v5, 8, v5','v_lshl_add_u32 v5, v2, 4, v5',f'v_add_u32 v5, {hex(QL)}, v5')
A('s_lshl_b32 s8, s15, 8',f's_add_u32 s8, s8, {hex(PL)}')
A('v_and_b32 v6, 3, v0','v_lshlrev_b32 v6, 5, v6','v_lshrrev_b32 v4, 2, v0','v_lshl_add_u32 v6, v4, 1, v6','v_add_u32 v6, s8, v6')
A('v_bfe_u32 v4, v0, 3, 1','v_lshl_add_u32 v4, v4, 2, v2','v_lshlrev_b32 v4, 5, v4','v_add_u32 v123, s8, v4')
A('v_lshrrev_b32 v124, 5, v0','v_lshlrev_b32 v124, 4, v124',f'v_add_u32 v124, {hex(ML)}, v124')
A('v_lshrrev_b32 v121, 5, v0','v_lshlrev_b32 v121, 3, v121','v_lshrrev_b32 v4, 1, v1','v_add_u32 v121, v121, v4','v_lshlrev_b32 v121, 7, v121')
A('v_and_b32 v4, 1, v1','v_lshl_add_u32 v120, v4, 5, v121','v_and_b32 v4, 1, v2','v_lshl_add_u32 v120, v4, 4, v120')
A('s_lshl_b32 s12, s4, 1','s_add_u32 s12, s12, s5','s_lshl_b32 s12, s12, 3','s_add_u32 s12, s12, s6','s_lshl_b32 s12, s12, 11',f's_add_u32 s12, s12, {hex(OP)}')
if DV:
    srd(44,20,0x4000000)
    A('s_lshl_b32 s14, s5, 4','s_add_u32 s14, s14, s4','s_lshl_b32 s14, s14, 21','s_lshl_b32 s8, s6, 16','s_add_u32 s14, s14, s8','s_add_u32 s14, s14, 0x180000')
    A('s_lshr_b32 s8, s2, 3','s_add_u32 s8, s8, s2','s_add_u32 s8, s8, s15','s_add_u32 s8, s8, 12','s_and_b32 s8, s8, 15','s_lshl_b32 s8, s8, 12','s_add_u32 s14, s14, s8','v_lshlrev_b32 v126, 4, v0')
A(f's_mov_b32 s43, {hex(f2u(1.4426950408889634 if RND else SC))}',f's_mov_b32 s74, {hex(f2u(0.08838834764831845))}')
A('s_mov_b32 s64, 0xffff0000','s_mov_b32 s65, 0','s_mov_b32 s66, 0','s_mov_b32 s67, 0xffff','s_mov_b32 s68, 0','s_mov_b32 s69, 0xffff0000')
if STAMPS:
    stamp_regs['C']=[0]; A('s_mov_b64 s[84:85], s[82:83]')
if PT:
    lds_spin(LD,4,16,'pt',sleep=4)
    A('s_cmp_lg_u32 s15, 0','s_cbranch_scc1 L_Cnopt','buffer_load_dwordx4 v[76:79], v120, s[52:55], s12 offen','L_Cnopt:')
lds_spin(QF,1,16,'qf',sleep=2)
A('s_mov_b32 s73, s63')
for ks in range(4): A(f'ds_read_b128 v[{80+4*ks}:{83+4*ks}], v5 offset:{ks*64}')
A('s_add_u32 s13, s15, 13')
lds_spin(LD,'s13',16,'kl')
A('s_mov_b32 s72, s63','s_waitcnt vmcnt(0)')
for t in range(4):
    for ks in range(4): A(f'ds_read_b128 v[{16+16*t+4*ks}:{19+16*t+4*ks}], v{116+ks} offset:{t*16384}')
for t in range(4):
    A(f's_waitcnt lgkmcnt({12-4*t})')
    for ks in range(4): mfma(96+4*t, 80+4*ks, 16+16*t+4*ks, ks==0)
A('s_nop 7')
for h in range(2): A(f'v_cndmask_b32 v{16+h}, v{96+h}, v{100+h}, s[64:65]')
for h in range(2): A(f'v_cndmask_b32 v{16+h}, v{16+h}, v{104+h}, s[66:67]')
for h in range(2): A(f'v_cndmask_b32 v{16+h}, v{16+h}, v{108+h}, s[68:69]')
if RND:
    A('v_cvt_pk_bf16_f32 v18, v16, v17','v_lshlrev_b32 v16, 16, v18','v_and_b32 v17, 0xffff0000, v18','v_mul_f32 v16, s74, v16','v_mul_f32 v17, s74, v17')
    A('v_cvt_pk_bf16_f32 v18, v16, v17','v_lshlrev_b32 v16, 16, v18','v_and_b32 v17, 0xffff0000, v18')
A('v_mov_b32 v18, v16','v_mov_b32 v19, v17')
allreduce('v_max_f32',[18,19],['x1','x2','hm','m','r16','r32'],tmp=20)
A('v_sub_f32 v16, v16, v18','v_sub_f32 v17, v17, v19','v_mul_f32 v16, s43, v16','v_mul_f32 v17, s43, v17')
A('v_exp_f32 v16, v16','v_exp_f32 v17, v17','s_nop 0','v_cvt_pk_bf16_f32 v22, v16, v17')
A('ds_write_b16 v6, v22','ds_write_b16_d16_hi v6, v22 offset:128','ds_read_b128 v[80:83], v123','ds_read_b128 v[84:87], v123 offset:16')
allreduce('v_add_f32',[16,17],['x1','x2','hm','m','r16','r32'],tmp=20)
A('s_lshl_b32 s8, s15, 2',f's_add_u32 s8, s8, {hex(ML)}','v_mov_b32 v5, s8','s_mov_b32 s70, -1','s_mov_b32 s71, 0')
A('v_cndmask_b32 v96, v19, v18, s[70:71]')
A('s_mov_b64 exec, 1','ds_write2_b32 v5, v18, v19 offset0:0 offset1:4','ds_write2_b32 v5, v16, v17 offset0:8 offset1:12')
A('v_mov_b32 v6, 1',f'v_mov_b32 v5, {hex(PF)}','ds_add_u32 v5, v6','s_mov_b64 exec, -1')
stamp(4,'C')
def cg_setup():
    A('v_lshlrev_b32 v117, 11, v1','v_lshl_add_u32 v116, v2, 4, v117')
    A('s_lshl_b32 s75, s4, 15','s_lshl_b32 s8, s7, 7','s_add_u32 s75, s75, s8',f's_add_u32 s75, s75, {hex(OP)}')
    A('v_lshlrev_b32 v118, 3, v0',f'v_add_u32 v118, {hex(YO)}, v118',f'v_mov_b32 v119, {hex(YOF)}')
def factors():
    if CG: cg_setup()
    lds_spin(PF,4,104,'pf')
    A('ds_read_b128 v[88:91], v124','ds_read_b128 v[92:95], v124 offset:32','s_waitcnt lgkmcnt(0)')
    A('v_max3_f32 v97, v88, v89, v90','v_max_f32 v97, v97, v91')
    for k in range(4): A(f'v_sub_f32 v{88+k}, v{88+k}, v97')
    A('v_sub_f32 v96, v96, v97')
    for k in range(4): A(f'v_mul_f32 v{88+k}, s43, v{88+k}')
    A('v_mul_f32 v96, s43, v96')
    for k in range(4): A(f'v_exp_f32 v{88+k}, v{88+k}')
    A('v_exp_f32 v96, v96','v_mul_f32 v99, v88, v92')
    for k in range(1,4): A(f'v_fmac_f32 v99, v{88+k}, v{92+k}')
    A('v_bfi_b32 v100, s41, v7, v97','v_bfi_b32 v101, s41, v7, v99','v_and_b32 v102, s41, v97','v_lshl_or_b32 v102, v102, 12, v7','v_mov_b32 v103, v101')
    A('v_mov_b32 v106, 1',f'v_mov_b32 v107, {hex(OC)}')
A('s_waitcnt lgkmcnt(0)')
for tau in range(4):
    for u in range(4): buildA(32+4*u, 80+(4*tau+u)//2, u&1)
    if tau==3: factors()
    sk=newlab('vsk')
    A(f's_add_u32 s13, s15, {17+4*tau}','s_cmp_ge_u32 s72, s13',f's_cbranch_scc1 {sk}')
    lds_spin(LD,'s13',104,'vl',sleep=0)
    A('s_mov_b32 s72, s63',f'{sk}:')
    for u in range(4): A(f'ds_read_b128 v[{16+4*u}:{19+4*u}], v3 offset:{tau*16384+u*1024}')
    for u in range(4):
        A(f's_waitcnt lgkmcnt({3-u})')
        mfma(112,32+4*u,16+4*u,tau==0 and u==0)
A('s_nop 7')
for r in range(4): A(f'v_mul_f32 v{112+r}, v96, v{112+r}')
A('ds_write_b128 v125, v[112:115]','s_mov_b64 exec, 1','ds_add_rtn_u32 v106, v107, v106','s_mov_b64 exec, -1')
if SPEC:
    for w in range(4): A(f'ds_read_b128 v[{16+4*w}:{19+4*w}], v122 offset:{1024*w}')
A(f's_waitcnt lgkmcnt({4 if SPEC else 0})')
A('v_readfirstlane_b32 s8, v106','s_cmp_lg_u32 s8, 3','s_cbranch_scc1 L_Cnopub')
if not SPEC:
    for w in range(4): A(f'ds_read_b128 v[{16+4*w}:{19+4*w}], v122 offset:{1024*w}')
A('s_setprio 3','s_waitcnt lgkmcnt(2)')
pkadd(16,16,20)
A('s_waitcnt lgkmcnt(0)')
pkadd(24,24,28); pkadd(112,16,24)
for r in range(4): A(f'v_bfi_b32 v{112+r}, s41, v7, v{112+r}')
A('s_cmp_eq_u32 s73, 2','s_cbranch_scc1 L_Cfast')
A('buffer_store_dwordx4 v[112:115], v120, s[52:55], s12 offen sc1')
A('s_mov_b32 exec_lo, 0x5555','s_mov_b32 exec_hi, 0x5555','buffer_store_dwordx4 v[100:103], v121, s[52:55], s12 offen offset:64 sc1','s_branch L_Cpubd')
A('L_Cfast:','buffer_store_dwordx4 v[112:115], v120, s[52:55], s12 offen')
A('s_mov_b32 exec_lo, 0x5555','s_mov_b32 exec_hi, 0x5555','buffer_store_dwordx4 v[100:103], v121, s[52:55], s12 offen offset:64')
A('L_Cpubd:','s_mov_b64 exec, -1')
if CG:
    A('s_mov_b32 s78, s43','s_mov_b32 s43, s75')
    A('buffer_load_dwordx4 v[16:19], v116, s[52:55], s43 offen sc1','buffer_load_dwordx4 v[20:23], v117, s[52:55], s43 offen offset:64 sc1',f'ds_write_b32 v119, v119 offset:{QI-YOF}')
    stamp_now2(6)
    A('s_waitcnt vmcnt(0)')
    for i in range(8): A(f'v_xor_b32 v{64+i}, v7, v{16+i}')
    A('v_or3_b32 v74, v64, v65, v66','v_or3_b32 v74, v74, v67, v68','v_or3_b32 v74, v74, v69, v70','v_or_b32 v74, v74, v71','v_and_b32 v74, s41, v74','v_cmp_ne_u32 vcc, 0, v74','s_cbranch_vccz L_codone')
    mpoll([(64,4,'buffer_load_dwordx4 v[64:67], v116, s[52:55], s43 offen sc1'),(68,4,'buffer_load_dwordx4 v[68:71], v117, s[52:55], s43 offen offset:64 sc1')],'op',74)
    A('L_codone:')
    stamp_now2(7)
    A('v_lshrrev_b32 v70, 12, v70','v_or_b32 v68, v68, v70','v_mov_b32 v70, v68')
    allreduce('v_max_f32',[70],['x1','x2','hm'])
    A('v_sub_f32 v68, v68, v70','v_mul_f32 v68, s78, v68','v_exp_f32 v68, v68','s_nop 0','v_mul_f32 v69, v68, v69')
    for k in range(4): A(f'v_mul_f32 v{64+k}, v68, v{64+k}')
    allreduce('v_add_f32',[69,64,65,66,67],['x1','x2','hm'])
    A('v_rcp_f32 v69, v69','s_nop 0')
    for k in range(4): A(f'v_mul_f32 v{64+k}, v69, v{64+k}')
    A('v_cvt_pk_bf16_f32 v64, v64, v65','v_cvt_pk_bf16_f32 v65, v66, v67','ds_write_b64 v118, v[64:65]','ds_write_b32 v119, v119')
    if WB==1: A('buffer_wbl2 sc1')
    if WB==2: A('buffer_store_dwordx4 v[112:115], v120, s[52:55], s12 offen sc1','s_mov_b32 exec_lo, 0x5555','s_mov_b32 exec_hi, 0x5555','buffer_store_dwordx4 v[100:103], v121, s[52:55], s12 offen offset:64 sc1','s_mov_b64 exec, -1')
    stamp_flush2()
else:
    A(f'ds_write_b32 v107, v107 offset:{PB-OC}')
    stamp_now(6)
A('L_Cnopub:','s_waitcnt lgkmcnt(0)')
stamp(5,'C')
reducer('C')

A('.p2align 6','L_X:')
A('v_and_b32 v9, 31, v0','v_mul_u32_u24 v9, 36, v9','v_lshrrev_b32 v10, 5, v0','v_mul_u32_u24 v10, 1152, v10','v_add_u32 v10, v10, v9')
srd(44,16,2304); srd(48,32,1152)
tag_ready()
A(*BB)
for k in range(3): A(f'buffer_load_dwordx3 v[{64+4*k}:{66+4*k}], v10, s[44:47], 0 offen offset:{12*k}')
for k in range(3): A(f'buffer_load_dwordx3 v[{80+4*k}:{82+4*k}], v9, s[48:51], 0 offen offset:{12*k}')
if PTO:
    A('v_mov_b32 v4, 0','s_mov_b64 exec, 1')
    if PTO&1:
        srd(56,34,2304); A('buffer_load_dword v102, v4, s[56:59], 0 offen')
    if PTO&2:
        A('s_mul_i32 s8, s2, 4608',f's_add_u32 s8, s8, {hex(FP)}','buffer_load_dword v103, v4, s[52:55], s8 offen')
    if PTO&4:
        A('s_lshl_b32 s12, s5, 4','s_add_u32 s12, s12, s4','s_lshl_b32 s12, s12, 21','s_add_u32 s12, s12, 0x180000')
        srd(56,20,0x4000000); A('buffer_load_dword v104, v4, s[56:59], s12 offen')
        A('s_lshl_b32 s12, s4, 4','s_add_u32 s12, s12, s7',f's_mul_i32 s12, s12, {16*1152}')
        srd(56,24,4096*1152); A('buffer_load_dword v105, v4, s[56:59], s12 offen')
        A(f's_mul_i32 s12, s2, {18*1152}')
        srd(56,30,4608*1152); A('buffer_load_dword v106, v4, s[56:59], s12 offen')
    A('s_mov_b64 exec, -1')
A('v_mov_b32 v100, 0','s_waitcnt vmcnt(0)')
for k in range(3):
    for i in range(3):
        x=64+4*k+i; w=80+4*k+i
        A(f'v_lshlrev_b32 v96, 16, v{x}',f'v_lshlrev_b32 v97, 16, v{w}',f'v_and_b32 v98, 0xffff0000, v{x}',f'v_and_b32 v99, 0xffff0000, v{w}')
        A('v_mul_f32 v96, v96, v97','v_mul_f32 v98, v98, v99','v_cvt_pk_bf16_f32 v96, v96, v98','v_lshlrev_b32 v97, 16, v96','v_and_b32 v98, 0xffff0000, v96')
        A('v_add_f32 v100, v100, v97','v_add_f32 v100, v100, v98')
allreduce('v_add_f32',[100],['x1','x2','hm','m','r16'],tmp=101)
A('v_cvt_pk_bf16_f32 v100, v100, v100','v_and_b32 v100, 0xffff0000, v100',f'v_mul_f32 v100, {hex(f2u(-1.4426950408889634))}, v100')
A('v_exp_f32 v100, v100','s_nop 0','v_add_f32 v100, 1.0, v100','v_rcp_f32 v100, v100','s_nop 0')
A('v_cvt_pk_bf16_f32 v100, v100, v100','v_and_b32 v100, 0xffff0000, v100')
A('v_sub_f32 v101, 1.0, v100','v_cvt_pk_bf16_f32 v101, v101, v101','v_and_b32 v101, 0xffff0000, v101')
A('v_lshrrev_b32 v9, 5, v0','v_lshlrev_b32 v9, 3, v9',f'v_add_u32 v9, {hex(GL)}, v9','ds_write_b64 v9, v[100:101]')
A('v_mov_b32 v9, 1',f'v_mov_b32 v10, {hex(GF)}','ds_write_b32 v10, v9')
reducer('X')

A('.p2align 6','L_W:')
A('s_sub_u32 s15, s3, 8')
A('v_lshlrev_b32 v3, 4, v1',f'v_mov_b32 v9, {hex(OOB)}','s_cmp_eq_u32 s15, 4','s_cselect_b32 s60, 0xff00ff00, 0','s_mov_b32 s61, s60')
A('v_cndmask_b32 v3, v3, v9, s[60:61]')
A(f'v_mul_u32_u24 v4, {4*1152}, v2','v_add_u32 v4, v4, v3')
A('v_mul_u32_u24 v5, 1152, v2','v_add_u32 v5, v5, v3','s_mov_b32 s62, 0','s_mov_b32 s63, -1','v_cndmask_b32 v5, v5, v9, s[62:63]')
A('s_lshl_b32 s8, s15, 8',f's_mul_i32 s10, s2, {18*1152}','s_add_u32 s10, s10, s8',f's_add_u32 s13, s10, {16*1152}')
A('s_lshl_b32 s12, s4, 4','s_add_u32 s12, s12, s7',f's_mul_i32 s12, s12, {16*1152}','s_add_u32 s12, s12, s8')
A('v_lshrrev_b32 v120, 5, v0','v_lshlrev_b32 v121, 3, v120',f'v_add_u32 v121, {hex(GL)}, v121')
A('v_mul_u32_u24 v120, 576, v120','v_lshl_add_u32 v120, v1, 3, v120','v_and_b32 v122, 1, v2','v_lshl_add_u32 v120, v122, 2, v120')
A('s_lshl_b32 s8, s15, 7','v_add_u32 v120, s8, v120')
if FLAY=='t': A('v_and_b32 v122, 15, v120','v_lshrrev_b32 v120, 4, v120','v_lshlrev_b32 v120, 14, v120','v_lshl_add_u32 v120, v122, 2, v120')
else: A('v_lshlrev_b32 v120, 2, v120')
A('v_cndmask_b32 v120, v120, v9, s[60:61]')
if PSW: A('s_and_b32 s14, s2, 7','s_lshl_b32 s14, s14, 5','s_lshr_b32 s8, s2, 3','s_add_u32 s14, s14, s8','s_lshl_b32 s14, s14, 6')
else: A('s_lshl_b32 s14, s2, 6')
if FLAY=='c': A('s_mul_i32 s14, s14, 72')
A(f's_add_u32 s14, s14, {hex(FP)}')
A('v_lshlrev_b32 v122, 4, v0',f'v_add_u32 v122, {hex(YH)}, v122','v_lshlrev_b32 v123, 3, v0',f'v_add_u32 v123, {hex(YO)}, v123')
srd(44,24,4096*1152); srd(48,30,4608*1152)
tag_ready()
A(*BB)
selectors(8,104)
thr=sum(t<<(6*i) for i,t in enumerate(THR))
A(f's_mov_b32 s8, {hex(thr)}','s_mul_i32 s9, s15, 6','s_lshr_b32 s8, s8, s9','s_and_b32 s64, s8, 63')
if PT:
    lds_spin(LD,8,104,'pt',sleep=4)
    A('buffer_load_dwordx4 v[76:79], v120, s[52:55], s14 offen')
lds_spin(GF,1,104,'gl',sleep=4)
A('ds_read_b64 v[72:73], v121')
lds_spin(LD,'s64',104,'wg',sleep=WGS)
if WPB<5:
    A(f's_cmp_lt_u32 s15, {WPB}','s_cbranch_scc1 L_Wnopb')
    if SPF:
        A('s_add_u32 s56, s30, s10','s_addc_u32 s57, s31, 0','s_add_u32 s58, s24, s12','s_addc_u32 s59, s25, 0')
        k=0
        for half in range(2):
            if half==1: A('s_cmp_eq_u32 s15, 4','s_cbranch_scc1 L_Wpfd')
            for r in range(18):
                for o in range(0,128,SPG): A(f's_load_dword s{66+(k&7)}, s[56:57], {r*1152+half*128+o}'); k+=1
            for r in range(16):
                for o in range(0,128,SPG): A(f's_load_dword s{66+(k&7)}, s[58:59], {r*1152+half*128+o}'); k+=1
        A('L_Wpfd:')
    lds_spin(QI if WQI else PB,1,104,'wpb',sleep=0)
    A('L_Wnopb:')
A('s_setprio 1')
for t in range(4): A(f'buffer_load_dwordx4 v[{16+4*t}:{19+4*t}], v4, s[48:51], s10 offen offset:{t*1152}{PW}')
A(f'buffer_load_dwordx4 v[32:35], v5, s[48:51], s13 offen{PW}')
for t in range(4): A(f'buffer_load_dwordx4 v[{36+4*t}:{39+4*t}], v4, s[44:47], s12 offen offset:{t*1152}{PW}')
stamp(15,'W')
lds_spin(YHF,1,104,'yh',sleep=1)
A('ds_read_b128 v[64:67], v122','s_waitcnt lgkmcnt(0)')
for t in range(5):
    a=104+4*(t&1)
    buildA(a, 64+t//2, t&1)
    A(f's_waitcnt vmcnt({8-t})','s_nop 0')
    mfma(116,a,16+4*t,t==0)
A('s_nop 7')
if WDK: A('v_mov_b32 v104, 1',f'v_mov_b32 v105, {hex(WD)}','s_mov_b64 exec, 1','ds_add_u32 v105, v104','s_mov_b64 exec, -1')
for r in range(4): A(f'v_mul_f32 v{116+r}, v73, v{116+r}')
A('s_setprio 3')
if FINE in (2,4):
    A('s_waitcnt vmcnt(0)'); stamp(8,'W')
lds_spin(YOF,1,104,'yo',sleep=0)
A('ds_read_b64 v[64:65], v123','s_waitcnt lgkmcnt(0)')
for t in range(4):
    buildA(80+4*t, 64+t//2, t&1)
    if t>0:
        A(f's_waitcnt vmcnt({4-t})')
        mfma(112,80+4*(t-1),36+4*(t-1),t==1)
A('s_waitcnt vmcnt(0)')
mfma(112,92,48,False)
A('s_nop 7')
for r in range(4): A(f'v_fma_f32 v{112+r}, v72, v{112+r}, v{116+r}')
for r in range(4): A(f'v_bfi_b32 v{112+r}, s41, v7, v{112+r}')
A('buffer_store_dwordx4 v[112:115], v120, s[52:55], s14 offen sc1')
stamp(9,'W')
red_id()
A(f's_cmp_ge_u32 s14, {NRED}','s_cbranch_scc1 L_Wend')
if ACK: A('s_waitcnt vmcnt(0)')
A('s_barrier','L_Wend:')
flush_stamps('W')
A('L_end:','s_endpgm','L_code_end:')
A('.section .rodata,"a"','.p2align 6',f'.amdhsa_kernel {KNAME}')
A('  .amdhsa_next_free_vgpr 128','  .amdhsa_next_free_sgpr 102','  .amdhsa_accum_offset 128')
A('  .amdhsa_group_segment_fixed_size 0','  .amdhsa_kernarg_size 96','  .amdhsa_user_sgpr_count 2','  .amdhsa_user_sgpr_kernarg_segment_ptr 1','  .amdhsa_system_sgpr_workgroup_id_x 1')
A('  .amdhsa_float_denorm_mode_32 3','.end_amdhsa_kernel')
import subprocess, re, os
def emit(nl):
    t='\n'.join(L)+'\n'
    return t.replace('PFSTEP',hex(0x100+0) if nl is None else f'{(nl+31)//32:#x}').replace('NLINES',hex(0x100) if nl is None else f'{nl:#x}')
def size_of(txt):
    open(out+'.tmp.s','w').write(txt)
    subprocess.run(['clang','-x','assembler','-target','amdgcn-amd-amdhsa','-mcpu=gfx950','-c',out+'.tmp.s','-o',out+'.tmp.o'],check=True)
    o=subprocess.run(['llvm-readelf','-S',out+'.tmp.o'],capture_output=True,text=True).stdout
    os.remove(out+'.tmp.s'); os.remove(out+'.tmp.o')
    m=re.search(r'\.text\s+PROGBITS\s+\w+\s+\w+\s+(\w+)',o)
    return int(m.group(1),16)
sz=size_of(emit(None)); nl=sz//128
txt=emit(nl); sz2=size_of(txt)
while nl*128>sz2:
    nl-=1; txt=emit(nl); sz2=size_of(txt)
open(out,'w').write(txt)
print('code bytes',sz2,end=' ')
print('lines',len(L),'lds',LDS,'ws end',hex(WS_END))
```

```python
import sys, struct
KNAME='gated_mix__sliding_block_cached__dense_activation_relu__decode_kernel'
opts=dict(a.split('=') for a in sys.argv[2:])
out=sys.argv[1]
def I(n,d): return int(opts.get(n,d))
STAMPS=I('stamps',0); PROBE=I('probe',-1); PMUL=I('pmul',2); FINE=I('fine',0)
SPIN=I('spin',1<<17); GSPIN=I('gspin',1<<17); WIN=I('win',32)
THR=[int(x) for x in opts.get('thr','26,29,28,28,28').split(',')]
RP=opts.get('ramp','20').split(',')
RAMPC={int(x.split(':')[0]):int(x.split(':')[1]) for x in RP[:-1]}; RAMPN=int(RP[-1])
SLP=I('slp',1); WIN2=I('win2',0); N2=I('n2',64); FLD=opts.get('fld','sc1').replace('+',' '); FSLP=I('fslp',0); FLAY=opts.get('flay','c'); FDL=I('fdl',0); PR=I('pr',1); PSL=I('psl',6); ACK=I('ack',1); WPB=I('wpb',2); CPF=I('cpf',24); CSZ=I('csz',0); SPEC=I('spec',1); WGS=I('wgs',2); RND=I('rnd',1); PTO=I('pto',0); QB=I('qb',4); WQI=I('wqi',1); OCS=I('ocs',0); DV=I('dv',0); DVT=I('dvt',21); B0=I('b0',0); PIPE=I('pipe',0); PGAP=I('pgap',0); CG=1; RM=I('rm',1); HPF=I('hpf',0); WB=I('wb',0); OSP=opts.get('osp','').replace('+',' '); SPF=I('spf',0); SPG=I('spg',128); PFW=I('pfw',0); QIP=I('qip',0); FAST=I('fast',1); NOQ=I('noq',0); NOH=I('noh',0); QFAST=I('qfast',0); WDK=I('wdk',0); HTH=I('hth',20); PSW=I('psw',1); QSL=I('qsl',4); PT=I('pt',0); NOST=I('nostore',0); NOPOLL=I('nopoll',0)
NRED=72
def pol(n):
    p=opts.get(n,'nt').replace('+',' ')
    return '' if p=='none' else ' '+p
PKV=pol('pkv'); PW=pol('pw')
def f2u(f): return struct.unpack('<I',struct.pack('<f',f))[0]
EPOCH=0x0
QP=0x1000
OP=QP+0x40000
HP=OP+0x80000
FP=HP+7*2*4608*4
QA=FP+256*4608
FL=QA+0x40000
WS_END=FL+256*128
WS_SIZE=0x10000000 if STAMPS else WS_END
STAMP_OFF=0x8000000
OOB=0x7f000000
VL=0x10000; SB=0x20000
QL=SB+0x000; PL=SB+0x200; ML=SB+0x600; QF=SB+0x640; PF=SB+0x644; OC=SB+0x648; FC=SB+0x64c; LD=SB+0x650; CR=SB+0x654; YHF=SB+0x658; YOF=SB+0x65c; WD=SB+0x660; PB=SB+0x664; QI=SB+0x668
GL=SB+0x680; GF=SB+0x690; OACC=SB+0x800; FSL=SB+0x1800; STL=SB+0x1A00; YH=SB+0x1C00; YO=SB+0x2000
LDS=SB+0x2200
SC=0.08838834764831845*1.4426950408889634
L=[]
def A(*ss):
    for s in ss:
        if NOST and s.startswith('buffer_store') and s.endswith(' sc1'): s='s_nop 0'
        if NOPOLL and s.startswith('buffer_load') and s.endswith(' sc1'): s='s_nop 0'
        L.append(s)
lab=[0]
def newlab(p):
    lab[0]+=1; return f'L_{p}{lab[0]}'
FIRST={'C':7 if FINE else 4,'L':2,'Q':0,'H':1,'X':3,'W':11 if FINE in (2,6) else (12 if FINE==4 else 8)}
def srd(d,p,n):
    A(f's_mov_b32 s{d}, s{p}', f's_mov_b32 s{d+1}, s{p+1}', f's_mov_b32 s{d+2}, {hex(n)}', f's_mov_b32 s{d+3}, 0x20000')
stamp_regs={}
CUR=['']
def stamp(k, role):
    if FINE==6 and ((k in (1,2) and role!='C') or (k==10 and CUR[0]=='C') or k in (4,5)): return
    if FINE==5 and not (k in (9,) or (role=='L' and k in (12,13))): return
    if FINE in (3,4) and k in (4,5,13,15) and role!='Q': return
    if PROBE==k:
        sk=newlab('pk')
        A(f's_cmp_lg_u32 s3, {FIRST[role]}', f's_cbranch_scc1 {sk}')
        A('s_memrealtime s[84:85]','s_waitcnt lgkmcnt(0)','v_mov_b32 v30, s84',f'v_mov_b32 v31, {STL}','ds_write_b32 v31, v30','s_waitcnt lgkmcnt(0)')
        A(f'{sk}:')
    if not STAMPS or k>=16: return
    lst=stamp_regs.setdefault(role,[])
    i=len(lst); lst.append(k); assert i<8
    A(f's_memrealtime s[{84+2*i}:{85+2*i}]')
def stamp_now(k):
    if not STAMPS: return
    if FINE==5 and k==6: return
    A('s_memrealtime s[80:81]','s_waitcnt lgkmcnt(0)','v_mov_b32 v20, s80','v_mov_b32 v21, s81','v_mov_b32 v22, 0')
    A('s_lshl_b32 s8, s2, 7', f's_add_u32 s8, s8, {hex(STAMP_OFF)}')
    A(f'buffer_store_dwordx2 v[20:21], v22, s[52:55], s8 offen offset:{8*k}')
S2=[]
def stamp_now2(k):
    if not STAMPS or FINE==5: return
    A(f's_memrealtime s[{96+2*len(S2)}:{97+2*len(S2)}]'); S2.append(k)
def stamp_flush2():
    if not S2: return
    A('s_waitcnt lgkmcnt(0)','v_mov_b32 v22, 0','s_lshl_b32 s8, s2, 7', f's_add_u32 s8, s8, {hex(STAMP_OFF)}')
    for i,k in enumerate(S2): A(f'v_mov_b32 v20, s{96+2*i}',f'v_mov_b32 v21, s{97+2*i}',f'buffer_store_dwordx2 v[20:21], v22, s[52:55], s8 offen offset:{8*k}','s_nop 1')
def flush_stamps(role):
    if not STAMPS: return
    lst=stamp_regs.get(role,[])
    skip=newlab('nost')
    A('s_mov_b64 exec, -1', f's_cmp_lg_u32 s3, {FIRST[role]}', f's_cbranch_scc1 {skip}', 's_waitcnt lgkmcnt(0)')
    A('s_lshl_b32 s8, s2, 7', f's_add_u32 s8, s8, {hex(STAMP_OFF)}', 'v_mov_b32 v3, 0')
    for i,k in enumerate(lst):
        A(f'v_mov_b32 v4, s{84+2*i}', f'v_mov_b32 v5, s{85+2*i}', f'buffer_store_dwordx2 v[4:5], v3, s[52:55], s8 offen offset:{k*8}', 's_waitcnt vmcnt(0)')
    A(f'{skip}:')
def epoch_load():
    A(f's_load_dword s40, s[38:39], {EPOCH}')
    srd(52,38,WS_SIZE)
    A('s_mov_b32 s41, 0xfff')
def tag_ready():
    A('s_waitcnt lgkmcnt(0)','s_add_u32 s42, s40, 1','s_and_b32 s40, s42, s41','v_mov_b32 v7, s40')
def selectors(base, tmp):
    A(f'v_mov_b32 v{tmp}, 0x0c0c0100', f'v_mov_b32 v{tmp+1}, 0x01000c0c', 's_mov_b32 s60, 0xaaaaaaaa', 's_mov_b32 s61, 0xaaaaaaaa')
    A(f'v_cndmask_b32 v{tmp}, v{tmp}, v{tmp+1}, s[60:61]')
    A(f'v_mov_b32 v{tmp+1}, 0x0c0c0302', f'v_mov_b32 v{tmp+2}, 0x03020c0c')
    A(f'v_cndmask_b32 v{tmp+1}, v{tmp+1}, v{tmp+2}, s[60:61]')
    A(f'v_mov_b32 v{tmp+2}, 0x0c0c0c0c')
    for d in range(4):
        m=(0x03030303<<(2*d))&0xffffffff
        A(f's_mov_b32 s60, {hex(m)}', f's_mov_b32 s61, {hex(m)}')
        A(f'v_cndmask_b32 v{base+d}, v{tmp+2}, v{tmp}, s[60:61]', f'v_cndmask_b32 v{base+4+d}, v{tmp+2}, v{tmp+1}, s[60:61]')
def buildA(dst, src, odd, sel=8):
    for d in range(4): A(f'v_perm_b32 v{dst+d}, v{src}, v{src}, v{sel+(4 if odd else 0)+d}')
def mfma(d,a,b,first):
    c='0' if first else f'v[{d}:{d+3}]'
    A(f'v_mfma_f32_16x16x32_bf16 v[{d}:{d+3}], v[{a}:{a+3}], v[{b}:{b+3}], {c}')
def lds_spin(addr, val, vt, name, sleep=1):
    l=newlab(name); d=newlab(name+'d')
    A(f'v_mov_b32 v{vt}, {hex(addr)}', f's_mov_b32 s62, {SPIN}', f'{l}:', f'ds_read_b32 v{vt+1}, v{vt}', 's_sub_u32 s62, s62, 1', 's_waitcnt lgkmcnt(0)')
    A(f'v_readfirstlane_b32 s63, v{vt+1}', f's_cbranch_scc1 {d}', f's_cmp_ge_u32 s63, {val}')
    if sleep: A(f's_cbranch_scc1 {d}', f's_sleep {sleep*SLP}', f's_branch {l}')
    else: A(f's_cbranch_scc0 {l}')
    A(f'{d}:')
def mpoll(loads, name, chk, init='-1', slp=0):
    lp=newlab(name); go=newlab(name+'go')
    for i,_ in enumerate(loads): A(f's_mov_b64 s[{72+2*i}:{73+2*i}], {init}')
    A(f's_mov_b32 s62, {GSPIN}', f'{lp}:')
    if slp: A(f's_sleep {slp}')
    for i,(d,n,t) in enumerate(loads):
        sk=newlab('sk')
        A(f's_mov_b64 exec, s[{72+2*i}:{73+2*i}]', f's_cbranch_execz {sk}', t, f'{sk}:')
    A('s_sub_u32 s62, s62, 1', f's_cbranch_scc1 {go}', 's_waitcnt vmcnt(0)')
    if FINE==5 and name=='fp' and CUR[0]=='L':
        A(f's_cmp_lg_u32 s62, {GSPIN-1}','s_cbranch_scc1 L_nf5'); stamp(13,'L'); A('L_nf5:')
    if FINE==4 and name=='op':
        A(f's_cmp_lg_u32 s62, {GSPIN-1}','s_cbranch_scc1 L_nf4'); stamp(5,'Q'); A('L_nf4:')
    for i,(d,n,t) in enumerate(loads):
        A(f's_mov_b64 exec, s[{72+2*i}:{73+2*i}]')
        for k in range(n): A(f'v_xor_b32 v{d+k}, v7, v{d+k}')
        if n==4: A(f'v_or3_b32 v{chk}, v{d}, v{d+1}, v{d+2}', f'v_or_b32 v{chk}, v{chk}, v{d+3}', f'v_and_b32 v{chk}, s41, v{chk}')
        else: A(f'v_and_b32 v{chk}, s41, v{d}')
        A(f'v_cmp_ne_u32 s[{72+2*i}:{73+2*i}], 0, v{chk}')
    A('s_nop 0', 's_or_b64 s[76:77], s[72:73], s[74:75]', f's_cbranch_scc1 {lp}', f'{go}:', 's_mov_b64 exec, -1', 's_waitcnt vmcnt(0)')
def ppoll(res, stage, addr, name, chk, depth):
    go=newlab(name+'go'); lp=newlab(name)
    n=len(res)
    def issue(k, first=False):
        for i in range(n):
            if first: A('s_mov_b64 exec, -1')
            else: A(f's_or_b64 exec, s[{72+2*i}:{73+2*i}], 1')
            A(f'buffer_load_dwordx4 v[{stage[k][i]}:{stage[k][i]+3}], {addr[i]}')
    def check(k):
        for i in range(n):
            d=res[i]
            A(f's_mov_b64 exec, s[{72+2*i}:{73+2*i}]')
            for q in range(4): A(f'v_xor_b32 v{d+q}, v7, v{stage[k][i]+q}')
            A(f'v_or3_b32 v{chk}, v{d}, v{d+1}, v{d+2}', f'v_or_b32 v{chk}, v{chk}, v{d+3}', f'v_and_b32 v{chk}, s41, v{chk}', f'v_cmp_ne_u32 s[{72+2*i}:{73+2*i}], 0, v{chk}')
        A('s_nop 0','s_or_b64 s[76:77], s[72:73], s[74:75]',f's_cbranch_scc0 {go}')
    for i in range(n): A(f's_mov_b64 s[{72+2*i}:{73+2*i}], -1')
    A(f's_mov_b32 s62, {GSPIN}')
    issue(0,True)
    A('s_waitcnt vmcnt(0)'); check(0)
    for k in range(depth-1):
        issue(k)
        if PGAP: A(f's_sleep {PGAP}')
    A(f'{lp}:')
    for k in range(depth):
        issue((k+depth-1)%depth)
        A(f's_waitcnt vmcnt({n*(depth-1)})')
        check(k)
    A('s_sub_u32 s62, s62, 1',f's_cbranch_scc0 {lp}',f'{go}:','s_mov_b64 exec, -1')
DPP=' row_mask:0xf bank_mask:0xf'
def allreduce(op, regs, steps, tmp=None):
    n=len(regs); pad=max(0,2-(n-1))
    ctl={'x1':'quad_perm:[1,0,3,2]','x2':'quad_perm:[2,3,0,1]','hm':'row_half_mirror','m':'row_mirror','ror4':'row_ror:4','ror8':'row_ror:8'}
    for s in steps:
        if s in ctl:
            if pad: A(f's_nop {pad-1}')
            for r in regs: A(f'{op}_dpp v{r}, v{r}, v{r} {ctl[s]}{DPP}')
        else:
            ins='v_permlane16_swap_b32' if s=='r16' else 'v_permlane32_swap_b32'
            for i,r in enumerate(regs): A(f'v_mov_b32 v{tmp+i}, v{r}')
            A('s_nop 1')
            for i,r in enumerate(regs): A(f'{ins} v{r}, v{tmp+i}')
            A('s_nop 0')
            for i,r in enumerate(regs): A(f'{op} v{r}, v{r}, v{tmp+i}')
def pkadd(d,a,b):
    for k in (0,2): A(f'v_pk_add_f32 v[{d+k}:{d+k+1}], v[{a+k}:{a+k+1}], v[{b+k}:{b+k+1}]')
BB=('s_barrier',)

for c in """Fused decode step in one launch: out = g*attn(x)@wo + (1-g)*relu(x@w1)@w2, g = sigmoid(x.gate_w).
Kernarg: x, k_cache, v_cache, wq, wo, B_x (unused), w1, w2, gate_w, out, debug, ws (8-byte pointers).
256 workgroups (one per CU), wg = xcd(3b) | kvh&1 | batch | split(3b); 13 role-specialised waves:
  0 Q: code prefetch, 72x128 slab of wq -> q partial, gathers q    1 H: slab of w1 -> h partial, gathers h
  2 L: streams the 256-key K and V slices into LDS (windowed LDS-DMA)   3 X: gate
  4-7 C: QK^T, softmax (true running max), PV, publish o partial, gather + combine o
  8-12 W: 16 rows of wo + 18 rows of w2, one column block each -> output partial
  waves 0-7 of 72 workgroups (ids < 80): sum the 256 output partials, 16 outputs per workgroup.
GEMVs use 16x16x32 bf16 MFMA with the vector spread on a diagonal A operand (weights stay row-major).
Hand-offs go through ws as 16-byte granules whose low mantissa bits carry a per-launch tag (epoch+1);
every reader verifies the tag of every word, so results do not depend on placement or stale ws data.
Generated by gen/gen8.py.""".split('\n'): A('; '+c)
A(f'; @launch grid=(256,1,1) block=(832,1,1) lds={LDS}')
A('.amdgcn_target "amdgcn-amd-amdhsa--gfx950"','.text',f'.globl {KNAME}','.p2align 8',f'.type {KNAME},@function',f'{KNAME}:')
if STAMPS or PROBE>=0: A('s_memrealtime s[82:83]')
A('s_cmp_ge_u32 s2, 256','s_cbranch_scc1 L_end')
A('s_load_dwordx16 s[16:31], s[0:1], 0','s_load_dwordx8 s[32:39], s[0:1], 64')
A('v_lshrrev_b32 v1, 6, v0','v_and_b32 v0, 63, v0','s_and_b32 s4, s2, 7','v_readfirstlane_b32 s3, v1')
A('s_lshl_b32 s4, s4, 1','s_bfe_u32 s5, s2, 0x10003','s_add_u32 s4, s4, s5')
A('s_bfe_u32 s5, s2, 0x10004','s_lshr_b32 s6, s2, 5','s_lshr_b32 s7, s2, 4')
A('v_and_b32 v1, 15, v0','v_lshrrev_b32 v2, 4, v0')
if CPF:
    A(f's_cmp_lg_u32 s3, {PFW}','s_cbranch_scc1 L_nopf')
    A('s_getpc_b64 s[10:11]','s_and_b32 s10, s10, 0xffffff00','s_lshr_b32 s8, s2, 3','s_mul_i32 s8, s8, PFSTEP','v_add_u32 v3, s8, v0')
    A('v_subrev_u32 v4, NLINES, v3','v_min_u32 v3, v3, v4','v_lshlrev_b32 v3, 7, v3',f's_mov_b32 exec_lo, {hex(((1<<CPF)-1)&0xffffffff)}',f's_mov_b32 exec_hi, {hex(((1<<CPF)-1)>>32)}','global_load_dword v127, v3, s[10:11]','s_mov_b64 exec, -1','L_nopf:')
A('s_cmp_gt_u32 s3, 1','s_cbranch_scc1 L_disp')
QPOS=len(L)

def red_id():
    if RM: A('s_lshr_b32 s14, s2, 4','s_lshl_b32 s14, s14, 3','s_and_b32 s8, s2, 7','s_add_u32 s14, s14, s8','s_lshl_b32 s14, s14, 1','s_bfe_u32 s8, s2, 0x10003','s_add_u32 s14, s14, s8')
    else: A('s_mov_b32 s14, s2')
RED_EMITTED=[0]
def reducer(role):
    CUR[0]=role
    if not STAMPS:
        if RED_EMITTED[0]:
            A('s_branch L_red'); return
        RED_EMITTED[0]=1; A('L_red:')
    fin=newlab('fin')
    red_id()
    A(f's_cmp_ge_u32 s14, {NRED}', f's_cbranch_scc1 {fin}', 's_setprio 0')
    A('v_lshlrev_b32 v5, 4, v0','v_and_b32 v6, 3, v0')
    if FLAY=='t': A('s_lshl_b32 s8, s14, 14','s_lshl_b32 s9, s3, 11','s_add_u32 s8, s8, s9',f's_add_u32 s8, s8, {hex(FP)}','s_add_u32 s11, s8, 1024')
    else: A('v_lshrrev_b32 v5, 2, v0','v_mul_u32_u24 v5, 4608, v5','v_lshl_add_u32 v5, v6, 4, v5',f's_mul_i32 s8, s3, {32*4608}','s_lshl_b32 s9, s14, 6','s_add_u32 s8, s8, s9',f's_add_u32 s8, s8, {hex(FP)}',f's_add_u32 s11, s8, {16*4608}')
    A('v_bfe_u32 v8, v0, 2, 2','v_lshl_add_u32 v8, v6, 2, v8','v_lshlrev_b32 v8, 5, v8','s_lshl_b32 s10, s3, 2',f's_add_u32 s10, s10, {hex(FSL)}','v_add_u32 v8, s10, v8')
    A('v_mov_b32 v11, 1',f'v_mov_b32 v10, {hex(FC)}','v_lshlrev_b32 v12, 5, v0',f'v_add_u32 v12, {hex(FSL)}, v12','v_lshlrev_b32 v13, 1, v0')
    srd(44,34,2304)
    A('s_lshl_b32 s10, s14, 5')
    A('s_mov_b32 s64, 0x00f000f0','s_mov_b32 s65, 0x00f000f0','s_mov_b32 s66, 0x0f000f00','s_mov_b32 s67, 0x0f000f00','s_mov_b32 s68, 0xf000f000','s_mov_b32 s69, 0xf000f000')
    A('s_barrier')
    if FDL: A(f's_sleep {FDL}')
    if role=='L' and FINE==5: stamp(12,'L')
    if PIPE: ppoll([16,20],[[32+8*k,36+8*k] for k in range(PIPE)],[f'v5, s[52:55], s8 offen {FLD}',f'v5, s[52:55], s11 offen {FLD}'],'fp',9,PIPE)
    else: mpoll([(16,4,f'buffer_load_dwordx4 v[16:19], v5, s[52:55], s8 offen {FLD}'),(20,4,f'buffer_load_dwordx4 v[20:23], v5, s[52:55], s11 offen {FLD}')],'fp',9,slp=FSLP)
    if role=='C': stamp(10, role)
    if FINE==5:
        A('s_memrealtime s[80:81]','s_waitcnt lgkmcnt(0)','v_mov_b32 v24, s80','v_mov_b32 v25, s81','v_mov_b32 v26, 0','s_lshl_b32 s8, s2, 7', f's_add_u32 s8, s8, {hex(STAMP_OFF+8)}','s_lshl_b32 s9, s3, 3','s_add_u32 s8, s8, s9','buffer_store_dwordx2 v[24:25], v26, s[52:55], s8 offen')
    for k in range(4): A(f'v_add_f32 v{16+k}, v{16+k}, v{20+k}')
    allreduce('v_add_f32',[16,17,18,19],['ror4','ror8'])
    A('v_cndmask_b32 v16, v16, v17, s[64:65]','v_cndmask_b32 v16, v16, v18, s[66:67]','v_cndmask_b32 v16, v16, v19, s[68:69]')
    allreduce('v_add_f32',[16],['r16','r32'],tmp=17)
    A('s_mov_b64 exec, 0xffff','ds_write_b32 v8, v16','s_mov_b64 exec, 1','ds_add_rtn_u32 v9, v10, v11','s_mov_b64 exec, 0xffff')
    if SPEC: A('ds_read_b128 v[16:19], v12','ds_read_b128 v[20:23], v12 offset:16','s_waitcnt lgkmcnt(2)')
    else: A('s_waitcnt lgkmcnt(0)')
    A('v_readfirstlane_b32 s8, v9','s_cmp_lg_u32 s8, 7',f's_cbranch_scc1 {fin}')
    if not SPEC: A('ds_read_b128 v[16:19], v12','ds_read_b128 v[20:23], v12 offset:16')
    A('s_waitcnt lgkmcnt(0)')
    pkadd(16,16,20)
    A('v_pk_add_f32 v[16:17], v[16:17], v[18:19]','v_add_f32 v16, v16, v17','v_cvt_pk_bf16_f32 v16, v16, v16')
    A(f'buffer_store_short v16, v13, s[44:47], s10 offen {OSP}')
    stamp_now(11)
    A('s_mov_b64 exec, 1','s_cmp_lg_u32 s2, 0',f's_cbranch_scc1 {fin}')
    if PROBE>=0:
        pl=newlab('pl')
        A('s_memrealtime s[80:81]',f'v_mov_b32 v31, {STL}','ds_read_b32 v30, v31','s_waitcnt lgkmcnt(0)','v_readfirstlane_b32 s84, v30')
        if PROBE==11: A('s_mov_b32 s84, s80')
        A('s_sub_u32 s84, s84, s82','s_min_u32 s84, s84, 10000',f's_mul_i32 s84, s84, {PMUL}')
        A(f'{pl}:','s_memrealtime s[86:87]','s_waitcnt lgkmcnt(0)','s_sub_u32 s86, s86, s80','s_cmp_lt_u32 s86, s84',f's_cbranch_scc1 {pl}')
    A('v_mov_b32 v9, s42','v_mov_b32 v8, 0',f'buffer_store_dword v9, v8, s[52:55], 0 offen offset:{EPOCH}')
    A(f'{fin}:')
    flush_stamps(role)
    A('s_endpgm')

def gemv_loop(n, credits):
    A(f's_waitcnt vmcnt({n})')
    for t in range(n):
        a=(28,120)[t&1]
        buildA(a, 16+t//2, t&1)
        A(f's_waitcnt vmcnt({n-1-t})')
        A('s_memrealtime s[98:99]' if (FINE==3 and t==0) else 's_nop 0')
        mfma(124,a,32+4*t,t==0)
        if t in credits: A('s_mov_b64 exec, 1','ds_add_u32 v6, v3','s_mov_b64 exec, -1')
    A('s_nop 7')
    for r in range(4): A(f'v_bfi_b32 v{124+r}, s56, v7, v{124+r}')
    A('buffer_store_dwordx4 v[124:127], v5, s[52:55], s13 offen sc1')

A('s_setprio 3')
A('s_mul_i32 s9, s2, 293','s_lshr_b32 s9, s9, 11','s_mul_i32 s10, s9, 7','s_sub_u32 s10, s2, s10')
A('s_mul_i32 s11, s10, 88','s_mul_i32 s12, s10, 80','s_add_u32 s12, s12, 16','s_min_u32 s11, s11, s12')
A('s_cmp_lt_u32 s10, 2','s_cselect_b32 s14, 22, 20',f's_cselect_b32 s57, 0, {hex(OOB)}')
A('s_lshl_b32 s15, s9, 8','s_cmp_ge_u32 s2, 252',f's_cselect_b32 s15, {hex(OOB)}, s15')
A('s_lshr_b32 s12, s7, 1','s_mul_i32 s13, s12, 72','s_and_b32 s8, s7, 1','s_lshl_b32 s58, s4, 1','s_add_u32 s58, s58, s8','s_lshl_b32 s59, s58, 8')
A('s_lshl_b32 s43, s3, 10','s_add_u32 s43, s43, 8192')
A('s_cmp_eq_u32 s3, 0','s_cselect_b32 s11, s13, s11','s_cselect_b32 s14, 18, s14','s_cselect_b32 s15, s59, s15',f's_cselect_b32 s56, {hex(OOB)}, 0','s_cselect_b32 s57, 0, s57')
A('s_mul_i32 s8, s14, s43','v_mul_u32_u24 v3, s8, v2','v_lshl_add_u32 v3, v1, 4, v3')
A('v_bfe_u32 v4, v0, 3, 1','v_mul_u32_u24 v4, 1152, v4','s_lshl_b32 s8, s14, 1','v_mul_u32_u24 v5, s8, v2','v_add_u32 v4, v4, v5')
A('s_lshl_b32 s8, s11, 1','s_mul_i32 s11, s11, s43','s_add_u32 s11, s11, s15','s_mul_i32 s50, s43, 576','s_mov_b32 s51, 0x20000','s_mov_b32 s46, 2304','s_mov_b32 s47, 0x20000','s_cmp_eq_u32 s3, 0')
A('s_waitcnt lgkmcnt(0)')
if FINE==3: A('s_memrealtime s[94:95]')
A(f's_load_dword s40, s[38:39], {EPOCH}')
A('s_mov_b32 s44, s16','s_mov_b32 s45, s17','s_cselect_b32 s48, s22, s28','s_cselect_b32 s49, s23, s29')
if B0: A('s_cbranch_scc1 L_nb0','s_barrier','L_nb0:')
stamp(22,'Q')
A('buffer_load_dwordx4 v[16:19], v4, s[44:47], s8 offen','buffer_load_dwordx4 v[20:23], v4, s[44:47], s8 offen offset:16','buffer_load_dwordx3 v[24:26], v4, s[44:47], s8 offen offset:32')
for t in range(22):
    A(f'buffer_load_dwordx4 v[{32+4*t}:{35+4*t}], v3, s[48:51], s11 offen{PW}')
    if t<21: A('s_add_u32 s11, s11, s43')
    if t==17: A('s_add_u32 s11, s11, s56')
    if t==19: A('s_add_u32 s11, s11, s57')
if B0: A('s_cmp_lg_u32 s3, 0','s_cbranch_scc1 L_nb1','s_barrier','L_nb1:')
if FINE==3: A('s_memrealtime s[96:97]')
stamp(21,'Q')
A('s_barrier')
A('s_branch L_QH2')
A('L_disp:')
A('s_cmp_eq_u32 s3, 2','s_cbranch_scc1 L_L')
A('v_mov_b32 v4, 0','v_lshlrev_b32 v5, 2, v0',f'v_add_u32 v5, {hex(ML)}, v5','ds_write_b32 v5, v4','s_waitcnt lgkmcnt(0)')
epoch_load()
A('s_barrier')
A('s_cmp_eq_u32 s3, 3','s_cbranch_scc1 L_X','s_cmp_ge_u32 s3, 8','s_cbranch_scc1 L_W','s_branch L_C')
A('L_L:','s_setprio 3')
for u in range(4): A(f'v_add_u32 v8, {4*u}, v2','v_xor_b32 v8, v8, v1','v_lshlrev_b32 v8, 4, v8',f'v_lshl_add_u32 v{12+u}, v2, 8, v8')
A('s_lshl_b32 s12, s5, 4','s_add_u32 s12, s12, s4','s_lshl_b32 s12, s12, 21','s_lshl_b32 s13, s6, 16','s_add_u32 s12, s12, s13','s_add_u32 s12, s12, 0x180000')
A('s_lshr_b32 s13, s2, 3','s_add_u32 s13, s13, s2','s_lshl_b32 s13, s13, 12','s_mov_b32 s46, 0x4000000','s_mov_b32 s47, 0x20000','s_mov_b32 s50, 0x4000000','s_mov_b32 s51, 0x20000')
A('v_lshlrev_b32 v3, 4, v0',f'v_mov_b32 v9, {hex(LD)}','s_waitcnt lgkmcnt(0)')
A('s_mov_b32 s44, s18','s_mov_b32 s45, s19','s_mov_b32 s48, s20','s_mov_b32 s49, s21')
epoch_load()
A('s_barrier')
stamp(20,'L')
n=0; sig=0
def signal(upto):
    global sig
    if upto>sig:
        sig=upto
        A(f'v_mov_b32 v10, {upto}','ds_write_b32 v9, v10')
NT=32
for i in range(NT):
    for u in range(4):
        if n in RAMPC: lds_spin(CR,RAMPC[n],16,'cr',sleep=0)
        if n==RAMPN:
            tag_ready(); A('s_barrier')
        if u==0: A('s_and_b32 s14, s13, 0xf000','s_add_u32 s14, s14, s12','s_add_u32 s13, s13, 0x1000',f's_mov_b32 m0, {hex(i*4096)}')
        w = RAMPN if n==RAMPN else (WIN2 if (WIN2 and n>=N2) else WIN)
        if n>=w:
            A(f's_waitcnt vmcnt({w-1})')
            signal((n-w+1)//4)
        elif u==0: A('s_nop 0')
        if i<16: A(f'buffer_load_dwordx4 v{12+u}, s[44:47], s14 offen offset:{u*1024}{PKV} lds')
        else: A(f'buffer_load_dwordx4 v3, s[48:51], s14 offen offset:{u*1024}{PKV} lds')
        n+=1
stamp(14,'L')
while sig<NT:
    A(f's_waitcnt vmcnt({4*NT-4*(sig+1)})')
    signal(sig+1)
stamp(3,'L')
LRED=len(L)
A('s_branch L_Lred')
A('.p2align 6','L_QH2:')
srd(52,38,WS_SIZE); A('s_mov_b32 s41, 0xfff')
A(f's_mul_i32 s13, s10, {2*4608*4}','s_lshl_b32 s8, s15, 1','s_add_u32 s13, s13, s8',f's_add_u32 s13, s13, {hex(HP)}')
A('s_lshl_b32 s8, s4, 14','s_lshl_b32 s9, s12, 10','s_add_u32 s8, s8, s9','s_and_b32 s9, s7, 1','s_lshl_b32 s9, s9, 9','s_add_u32 s8, s8, s9',f's_add_u32 s8, s8, {hex(QP)}')
A('s_cmp_ge_u32 s2, 252',f's_cselect_b32 s13, {hex(OOB)}, s13','s_cmp_eq_u32 s3, 0','s_cselect_b32 s13, s8, s13','s_mul_i32 s8, s3, 10240','s_add_u32 s8, s8, 8192')
A('v_lshrrev_b32 v5, 1, v2','v_mul_u32_u24 v5, s8, v5','v_lshl_add_u32 v5, v1, 5, v5','v_and_b32 v6, 1, v2','v_lshl_add_u32 v5, v6, 4, v5')
tag_ready()
A('s_barrier')
selectors(8, 120)
A(f'v_mov_b32 v6, {hex(CR)}','v_mov_b32 v3, 1','s_cmp_eq_u32 s3, 0',f's_cselect_b32 s56, {hex((1<<QB)-1)}, s41','v_and_b32 v27, s56, v7')
gemv_loop(22,(9,17))
A('s_cmp_lg_u32 s3, 0','s_cbranch_scc1 L_H2')
A('s_getreg_b32 s15, hwreg(HW_REG_XCC_ID, 0, 3)','s_lshl_b32 s8, s42, 3','s_or_b32 s15, s15, s8')
A('v_mov_b32 v25, v27','v_lshlrev_b32 v26, 7, v0','v_mov_b32 v27, s15','s_lshl_b32 s14, s4, 11','s_lshl_b32 s8, s7, 2','s_add_u32 s14, s14, s8',f's_add_u32 s14, s14, {hex(FL)}')
A('s_mov_b64 exec, 0xffff','buffer_store_dword v27, v26, s[52:55], s14 offen sc1','s_mov_b64 exec, -1')
stamp(1,'Q')
if FINE==3:
    A('s_waitcnt lgkmcnt(0)','s_lshl_b32 s8, s2, 7', f's_add_u32 s8, s8, {hex(STAMP_OFF)}','v_mov_b32 v22, 0')
    for sr,k in ((82,4),(94,5),(96,13),(98,15)):
        A(f'v_mov_b32 v20, s{sr}',f'v_mov_b32 v21, s{sr+1}',f'buffer_store_dwordx2 v[20:21], v22, s[52:55], s8 offen offset:{8*k}','s_nop 1')
A('v_lshlrev_b32 v5, 4, v0')
A('s_lshl_b32 s13, s4, 1','s_add_u32 s13, s13, s5','s_lshl_b32 s13, s13, 13',f's_add_u32 s13, s13, {hex(QP)}','s_add_u32 s14, s13, 4096')
A('s_lshl_b32 s8, s4, 4','s_add_u32 s8, s8, s7','s_lshl_b32 s8, s8, 7',f's_add_u32 s8, s8, {hex(FL)}','s_add_u32 s46, s38, s8','s_addc_u32 s47, s39, 0')
A('s_mov_b32 s8, 1',f's_mov_b32 s62, {GSPIN}','L_qprobe:',f's_sleep {QSL}','s_load_dwordx16 s[64:79], s[46:47], 0 glc','s_sub_u32 s62, s62, 1','s_cbranch_scc1 L_qfetch0','s_waitcnt lgkmcnt(0)')
A('s_xor_b32 s8, s64, s15')
for p in range(1,16): A(f's_xor_b32 s9, s{64+p}, s15','s_or_b32 s8, s8, s9')
A('s_lshr_b32 s9, s8, 3')
A('s_cbranch_scc1 L_qprobe','L_qfetch0:',f's_mov_b32 s62, {GSPIN}','s_waitcnt lgkmcnt(0)')
if QFAST: A('s_cmp_eq_u32 s8, 0',f's_cselect_b32 s9, {QA-QP}, 0','s_add_u32 s13, s13, s9','s_add_u32 s14, s14, s9')
if FINE==1: stamp(8,'Q')
A('L_qfetch:')
if NOQ: A('s_branch L_qgo')
for r in range(8): A(f'buffer_load_dwordx4 v[{32+4*r}:{35+4*r}], v5, s[52:55], s{13 if r<4 else 14} offen offset:{(r&3)*1024} sc1')
A('s_sub_u32 s62, s62, 1','s_cbranch_scc1 L_qgo','v_mov_b32 v6, 0')
for r in range(8):
    A(f's_waitcnt vmcnt({7-r})')
    for k in range(4): A(f'v_xor_b32 v{32+4*r+k}, v25, v{32+4*r+k}')
    A(f'v_or3_b32 v6, v6, v{32+4*r}, v{33+4*r}',f'v_or3_b32 v6, v6, v{34+4*r}, v{35+4*r}')
A('v_and_b32 v6, s56, v6','v_cmp_ne_u32 vcc, 0, v6','s_cbranch_vccnz L_qfetch','L_qgo:','s_waitcnt vmcnt(0)')
for r in (0,2,4,6): pkadd(32+4*r,32+4*r,36+4*r)
pkadd(32,32,40); pkadd(48,48,56); pkadd(32,32,48)
A('v_cvt_pk_bf16_f32 v32, v32, v33','v_cvt_pk_bf16_f32 v33, v34, v35','v_lshlrev_b32 v5, 3, v0',f'v_add_u32 v5, {hex(QL)}, v5','ds_write_b64 v5, v[32:33]')
A('s_cmp_eq_u32 s8, 0',f's_cselect_b32 s9, {1+FAST}, 1','v_mov_b32 v6, s9',f'v_mov_b32 v5, {hex(QF)}','ds_write_b32 v5, v6')
stamp(2,'Q')
if not CG:
    A('v_lshlrev_b32 v123, 11, v1','v_lshl_add_u32 v122, v2, 4, v123')
    A('s_lshl_b32 s43, s4, 15','s_lshl_b32 s8, s7, 7','s_add_u32 s43, s43, s8',f's_add_u32 s43, s43, {hex(OP)}')
    A('v_lshlrev_b32 v121, 3, v0',f'v_add_u32 v121, {hex(YO)}, v121',f'v_mov_b32 v120, {hex(YOF)}','v_mov_b32 v119, 1')
    lds_spin(PB,1,104,'oc',sleep=OCS)
    if WDK: lds_spin(WD,WDK,104,'wd',sleep=0)
    if FINE==4: stamp(4,'Q')
    if PR:
        for k in range(PR):
            if k: A(f's_sleep {PSL}')
            A(f'buffer_load_dwordx4 v[{16+8*k}:{19+8*k}], v122, s[52:55], s43 offen sc1',f'buffer_load_dwordx4 v[{20+8*k}:{23+8*k}], v123, s[52:55], s43 offen offset:64 sc1')
        if WQI: A(f'ds_write_b32 v120, v119 offset:{QI-YOF}')
        for k in range(PR):
            A(f's_waitcnt vmcnt({2*(PR-1-k)})')
            for i in range(8): A(f'v_xor_b32 v{64+i}, v7, v{16+8*k+i}')
            A('v_or3_b32 v74, v64, v65, v66','v_or3_b32 v74, v74, v67, v68','v_or3_b32 v74, v74, v69, v70','v_or_b32 v74, v74, v71','v_and_b32 v74, s41, v74','v_cmp_ne_u32 vcc, 0, v74','s_cbranch_vccz L_odone')
    mpoll([(64,4,'buffer_load_dwordx4 v[64:67], v122, s[52:55], s43 offen sc1'),(68,4,'buffer_load_dwordx4 v[68:71], v123, s[52:55], s43 offen offset:64 sc1')],'op',74)
    A('L_odone:')
    if FINE==4:
        A(f's_sub_u32 s8, {GSPIN}, s62','s_mul_i32 s8, s8, 100','s_waitcnt lgkmcnt(0)','s_add_u32 s98, s82, s8','s_addc_u32 s99, s83, 0','s_lshl_b32 s8, s2, 7', f's_add_u32 s8, s8, {hex(STAMP_OFF)}','v_mov_b32 v22, 0','v_mov_b32 v20, s98','v_mov_b32 v21, s99','buffer_store_dwordx2 v[20:21], v22, s[52:55], s8 offen offset:120')
    stamp(7,'Q')
    allreduce('v_max_f32',[70],['x1','x2','hm'])
    A('v_sub_f32 v68, v68, v70','v_exp_f32 v68, v68','s_nop 0','v_mul_f32 v69, v68, v69')
    for k in range(4): A(f'v_mul_f32 v{64+k}, v68, v{64+k}')
    allreduce('v_add_f32',[69,64,65,66,67],['x1','x2','hm'])
    A('v_rcp_f32 v69, v69','s_nop 0')
    for k in range(4): A(f'v_mul_f32 v{64+k}, v69, v{64+k}')
    A('v_cvt_pk_bf16_f32 v64, v64, v65','v_cvt_pk_bf16_f32 v65, v66, v67','ds_write_b64 v121, v[64:65]','ds_write_b32 v120, v119')
reducer('Q')

A('.p2align 6')
A('L_H2:')
stamp(12,'H')
A('v_and_b32 v6, 7, v0','v_lshlrev_b32 v6, 1, v6','v_bfe_u32 v9, v0, 3, 1','v_add_u32 v6, v6, v9',f'v_mul_u32_u24 v6, {4608*4}, v6')
A('v_mov_b32 v9, v6','v_lshl_add_u32 v6, v2, 4, v6')
A('s_mul_i32 s11, s2, 72',f's_add_u32 s11, s11, {hex(HP)}','s_and_b32 s8, s2, 1','s_lshl_b32 s8, s8, 3','s_sub_u32 s12, s11, s8')
A('s_cmp_eq_u32 s8, 0','s_cselect_b32 s64, 0, -1','s_mov_b32 s65, s64','s_mov_b32 s66, 0xffff0000','s_mov_b32 s67, 0xffff0000')
A('v_lshlrev_b32 v121, 4, v0',f'v_add_u32 v121, {hex(YH)}, v121',f'v_mov_b32 v120, {hex(YHF)}','v_mov_b32 v119, 1')
for k in range(8): A(f'v_mov_b32 v{64+k}, 0')
A('s_mov_b32 s78, 0x7f7f7f7f','s_mov_b32 s79, 0x7f7f7f7f')
if HPF:
    lds_spin(LD,HPF,104,'hq',sleep=4)
    A('s_add_u32 s56, s38, s12','s_addc_u32 s57, s39, 0')
    for e in range(14):
        A(f's_load_dword s{80+(e&1)}, s[56:57], {e*18432}',f's_load_dword s{82+(e&1)}, s[56:57], {e*18432+76}')
        if e%4==3: A('s_waitcnt lgkmcnt(0)') if False else None
    A('s_waitcnt lgkmcnt(0)')
lds_spin(LD,HTH,104,'hl',sleep=4)
if not NOH: mpoll([(64,4,'buffer_load_dwordx4 v[64:67], v6, s[52:55], s11 offen sc1'),(68,4,'buffer_load_dwordx4 v[68:71], v9, s[52:55], s12 offen offset:64 sc1')],'hp',72,init='s[78:79]')
A('v_cndmask_b32 v68, v68, v70, s[64:65]','v_cndmask_b32 v69, v69, v71, s[64:65]','v_cndmask_b32 v68, v68, v69, s[66:67]','s_nop 0')
stamp(13,'H')
allreduce('v_add_f32',[64,65,66,67,68],['x1','x2','hm'])
for k in range(5): A(f'v_max_f32 v{64+k}, 0, v{64+k}')
A('v_cvt_pk_bf16_f32 v64, v64, v65','v_cvt_pk_bf16_f32 v65, v66, v67','v_cvt_pk_bf16_f32 v66, v68, v68','ds_write_b128 v121, v[64:67]','ds_write_b32 v120, v119')
reducer('H')

A('L_Lred:')
reducer('L')
A('.p2align 6','L_C:','s_setprio 2','s_sub_u32 s15, s3, 4')
A('v_lshlrev_b32 v122, 4, v0',f'v_add_u32 v122, {hex(OACC)}, v122','s_lshl_b32 s8, s15, 10','v_add_u32 v125, s8, v122')
tag_ready()
A(*BB)
selectors(8,104)
A('s_lshl_b32 s8, s15, 12')
for ks in range(4): A(f'v_add_u32 v4, {4*ks}, v2','v_xor_b32 v4, v4, v1','v_lshlrev_b32 v4, 4, v4','v_lshl_add_u32 v4, v1, 8, v4',f'v_add_u32 v{116+ks}, s8, v4')
A('v_lshlrev_b32 v3, 4, v0',f's_add_u32 s9, s8, {hex(VL)}','v_add_u32 v3, s9, v3')
A('v_and_b32 v5, 1, v0','v_lshlrev_b32 v5, 8, v5','v_lshl_add_u32 v5, v2, 4, v5',f'v_add_u32 v5, {hex(QL)}, v5')
A('s_lshl_b32 s8, s15, 8',f's_add_u32 s8, s8, {hex(PL)}')
A('v_and_b32 v6, 3, v0','v_lshlrev_b32 v6, 5, v6','v_lshrrev_b32 v4, 2, v0','v_lshl_add_u32 v6, v4, 1, v6','v_add_u32 v6, s8, v6')
A('v_bfe_u32 v4, v0, 3, 1','v_lshl_add_u32 v4, v4, 2, v2','v_lshlrev_b32 v4, 5, v4','v_add_u32 v123, s8, v4')
A('v_lshrrev_b32 v124, 5, v0','v_lshlrev_b32 v124, 4, v124',f'v_add_u32 v124, {hex(ML)}, v124')
A('v_lshrrev_b32 v121, 5, v0','v_lshlrev_b32 v121, 3, v121','v_lshrrev_b32 v4, 1, v1','v_add_u32 v121, v121, v4','v_lshlrev_b32 v121, 7, v121')
A('v_and_b32 v4, 1, v1','v_lshl_add_u32 v120, v4, 5, v121','v_and_b32 v4, 1, v2','v_lshl_add_u32 v120, v4, 4, v120')
A('s_lshl_b32 s12, s4, 1','s_add_u32 s12, s12, s5','s_lshl_b32 s12, s12, 3','s_add_u32 s12, s12, s6','s_lshl_b32 s12, s12, 11',f's_add_u32 s12, s12, {hex(OP)}')
if DV:
    srd(44,20,0x4000000)
    A('s_lshl_b32 s14, s5, 4','s_add_u32 s14, s14, s4','s_lshl_b32 s14, s14, 21','s_lshl_b32 s8, s6, 16','s_add_u32 s14, s14, s8','s_add_u32 s14, s14, 0x180000')
    A('s_lshr_b32 s8, s2, 3','s_add_u32 s8, s8, s2','s_add_u32 s8, s8, s15','s_add_u32 s8, s8, 12','s_and_b32 s8, s8, 15','s_lshl_b32 s8, s8, 12','s_add_u32 s14, s14, s8','v_lshlrev_b32 v126, 4, v0')
A(f's_mov_b32 s43, {hex(f2u(1.4426950408889634 if RND else SC))}',f's_mov_b32 s74, {hex(f2u(0.08838834764831845))}')
A('s_mov_b32 s64, 0xffff0000','s_mov_b32 s65, 0','s_mov_b32 s66, 0','s_mov_b32 s67, 0xffff','s_mov_b32 s68, 0','s_mov_b32 s69, 0xffff0000')
if STAMPS:
    stamp_regs['C']=[0]; A('s_mov_b64 s[84:85], s[82:83]')
if PT:
    lds_spin(LD,4,16,'pt',sleep=4)
    A('s_cmp_lg_u32 s15, 0','s_cbranch_scc1 L_Cnopt','buffer_load_dwordx4 v[76:79], v120, s[52:55], s12 offen','L_Cnopt:')
lds_spin(QF,1,16,'qf',sleep=2)
A('s_mov_b32 s73, s63')
for ks in range(4): A(f'ds_read_b128 v[{80+4*ks}:{83+4*ks}], v5 offset:{ks*64}')
A('s_add_u32 s13, s15, 13')
lds_spin(LD,'s13',16,'kl')
A('s_mov_b32 s72, s63','s_waitcnt vmcnt(0)')
for t in range(4):
    for ks in range(4): A(f'ds_read_b128 v[{16+16*t+4*ks}:{19+16*t+4*ks}], v{116+ks} offset:{t*16384}')
for t in range(4):
    A(f's_waitcnt lgkmcnt({12-4*t})')
    for ks in range(4): mfma(96+4*t, 80+4*ks, 16+16*t+4*ks, ks==0)
A('s_nop 7')
for h in range(2): A(f'v_cndmask_b32 v{16+h}, v{96+h}, v{100+h}, s[64:65]')
for h in range(2): A(f'v_cndmask_b32 v{16+h}, v{16+h}, v{104+h}, s[66:67]')
for h in range(2): A(f'v_cndmask_b32 v{16+h}, v{16+h}, v{108+h}, s[68:69]')
if RND:
    A('v_cvt_pk_bf16_f32 v18, v16, v17','v_lshlrev_b32 v16, 16, v18','v_and_b32 v17, 0xffff0000, v18','v_mul_f32 v16, s74, v16','v_mul_f32 v17, s74, v17')
    A('v_cvt_pk_bf16_f32 v18, v16, v17','v_lshlrev_b32 v16, 16, v18','v_and_b32 v17, 0xffff0000, v18')
A('v_mov_b32 v18, v16','v_mov_b32 v19, v17')
allreduce('v_max_f32',[18,19],['x1','x2','hm','m','r16','r32'],tmp=20)
A('v_sub_f32 v16, v16, v18','v_sub_f32 v17, v17, v19','v_mul_f32 v16, s43, v16','v_mul_f32 v17, s43, v17')
A('v_exp_f32 v16, v16','v_exp_f32 v17, v17','s_nop 0','v_cvt_pk_bf16_f32 v22, v16, v17')
A('ds_write_b16 v6, v22','ds_write_b16_d16_hi v6, v22 offset:128','ds_read_b128 v[80:83], v123','ds_read_b128 v[84:87], v123 offset:16')
allreduce('v_add_f32',[16,17],['x1','x2','hm','m','r16','r32'],tmp=20)
A('s_lshl_b32 s8, s15, 2',f's_add_u32 s8, s8, {hex(ML)}','v_mov_b32 v5, s8','s_mov_b32 s70, -1','s_mov_b32 s71, 0')
A('v_cndmask_b32 v96, v19, v18, s[70:71]')
A('s_mov_b64 exec, 1','ds_write2_b32 v5, v18, v19 offset0:0 offset1:4','ds_write2_b32 v5, v16, v17 offset0:8 offset1:12')
A('v_mov_b32 v6, 1',f'v_mov_b32 v5, {hex(PF)}','ds_add_u32 v5, v6','s_mov_b64 exec, -1')
stamp(4,'C')
def cg_setup():
    A('v_lshlrev_b32 v117, 11, v1','v_lshl_add_u32 v116, v2, 4, v117')
    A('s_lshl_b32 s75, s4, 15','s_lshl_b32 s8, s7, 7','s_add_u32 s75, s75, s8',f's_add_u32 s75, s75, {hex(OP)}')
    A('v_lshlrev_b32 v118, 3, v0',f'v_add_u32 v118, {hex(YO)}, v118',f'v_mov_b32 v119, {hex(YOF)}')
def factors():
    if CG: cg_setup()
    lds_spin(PF,4,104,'pf')
    A('ds_read_b128 v[88:91], v124','ds_read_b128 v[92:95], v124 offset:32','s_waitcnt lgkmcnt(0)')
    A('v_max3_f32 v97, v88, v89, v90','v_max_f32 v97, v97, v91')
    for k in range(4): A(f'v_sub_f32 v{88+k}, v{88+k}, v97')
    A('v_sub_f32 v96, v96, v97')
    for k in range(4): A(f'v_mul_f32 v{88+k}, s43, v{88+k}')
    A('v_mul_f32 v96, s43, v96')
    for k in range(4): A(f'v_exp_f32 v{88+k}, v{88+k}')
    A('v_exp_f32 v96, v96','v_mul_f32 v99, v88, v92')
    for k in range(1,4): A(f'v_fmac_f32 v99, v{88+k}, v{92+k}')
    A('v_bfi_b32 v100, s41, v7, v97','v_bfi_b32 v101, s41, v7, v99','v_and_b32 v102, s41, v97','v_lshl_or_b32 v102, v102, 12, v7','v_mov_b32 v103, v101')
    A('v_mov_b32 v106, 1',f'v_mov_b32 v107, {hex(OC)}')
A('s_waitcnt lgkmcnt(0)')
for tau in range(4):
    for u in range(4): buildA(32+4*u, 80+(4*tau+u)//2, u&1)
    if tau==3: factors()
    sk=newlab('vsk')
    A(f's_add_u32 s13, s15, {17+4*tau}','s_cmp_ge_u32 s72, s13',f's_cbranch_scc1 {sk}')
    lds_spin(LD,'s13',104,'vl',sleep=0)
    A('s_mov_b32 s72, s63',f'{sk}:')
    if FINE==6 and tau==3: stamp(1,'C')
    for u in range(4): A(f'ds_read_b128 v[{16+4*u}:{19+4*u}], v3 offset:{tau*16384+u*1024}')
    for u in range(4):
        A(f's_waitcnt lgkmcnt({3-u})')
        mfma(112,32+4*u,16+4*u,tau==0 and u==0)
A('s_nop 7')
for r in range(4): A(f'v_mul_f32 v{112+r}, v96, v{112+r}')
if FINE==6: stamp(2,'C')
A('ds_write_b128 v125, v[112:115]','s_mov_b64 exec, 1','ds_add_rtn_u32 v106, v107, v106','s_mov_b64 exec, -1')
if SPEC:
    for w in range(4): A(f'ds_read_b128 v[{16+4*w}:{19+4*w}], v122 offset:{1024*w}')
A(f's_waitcnt lgkmcnt({4 if SPEC else 0})')
if FINE==6: stamp(10,'C')
A('v_readfirstlane_b32 s8, v106','s_cmp_lg_u32 s8, 3','s_cbranch_scc1 L_Cnopub')
if not SPEC:
    for w in range(4): A(f'ds_read_b128 v[{16+4*w}:{19+4*w}], v122 offset:{1024*w}')
A('s_setprio 3','s_waitcnt lgkmcnt(2)')
pkadd(16,16,20)
A('s_waitcnt lgkmcnt(0)')
if QIP==3: A(f'ds_write_b32 v119, v119 offset:{QI-YOF}')
pkadd(24,24,28); pkadd(112,16,24)
for r in range(4): A(f'v_bfi_b32 v{112+r}, s41, v7, v{112+r}')
if QIP==2: A(f'ds_write_b32 v119, v119 offset:{QI-YOF}')
A('s_cmp_eq_u32 s73, 2','s_cbranch_scc1 L_Cfast')
A('buffer_store_dwordx4 v[112:115], v120, s[52:55], s12 offen sc1')
A('s_mov_b32 exec_lo, 0x5555','s_mov_b32 exec_hi, 0x5555','buffer_store_dwordx4 v[100:103], v121, s[52:55], s12 offen offset:64 sc1','s_branch L_Cpubd')
A('L_Cfast:','buffer_store_dwordx4 v[112:115], v120, s[52:55], s12 offen')
A('s_mov_b32 exec_lo, 0x5555','s_mov_b32 exec_hi, 0x5555','buffer_store_dwordx4 v[100:103], v121, s[52:55], s12 offen offset:64')
A('L_Cpubd:','s_mov_b64 exec, -1')
if QIP==1: A(f'ds_write_b32 v119, v119 offset:{QI-YOF}')
if CG:
    A('s_mov_b32 s78, s43','s_mov_b32 s43, s75')
    A('buffer_load_dwordx4 v[16:19], v116, s[52:55], s43 offen sc1','buffer_load_dwordx4 v[20:23], v117, s[52:55], s43 offen offset:64 sc1')
    if QIP==0: A(f'ds_write_b32 v119, v119 offset:{QI-YOF}')
    stamp_now2(6)
    A('s_waitcnt vmcnt(0)')
    for i in range(8): A(f'v_xor_b32 v{64+i}, v7, v{16+i}')
    A('v_or3_b32 v74, v64, v65, v66','v_or3_b32 v74, v74, v67, v68','v_or3_b32 v74, v74, v69, v70','v_or_b32 v74, v74, v71','v_and_b32 v74, s41, v74','v_cmp_ne_u32 vcc, 0, v74','s_cbranch_vccz L_codone')
    mpoll([(64,4,'buffer_load_dwordx4 v[64:67], v116, s[52:55], s43 offen sc1'),(68,4,'buffer_load_dwordx4 v[68:71], v117, s[52:55], s43 offen offset:64 sc1')],'op',74)
    A('L_codone:')
    stamp_now2(7)
    A('v_lshrrev_b32 v70, 12, v70','v_or_b32 v68, v68, v70','v_mov_b32 v70, v68')
    allreduce('v_max_f32',[70],['x1','x2','hm'])
    A('v_sub_f32 v68, v68, v70','v_mul_f32 v68, s78, v68','v_exp_f32 v68, v68','s_nop 0','v_mul_f32 v69, v68, v69')
    for k in range(4): A(f'v_mul_f32 v{64+k}, v68, v{64+k}')
    allreduce('v_add_f32',[69,64,65,66,67],['x1','x2','hm'])
    A('v_rcp_f32 v69, v69','s_nop 0')
    for k in range(4): A(f'v_mul_f32 v{64+k}, v69, v{64+k}')
    A('v_cvt_pk_bf16_f32 v64, v64, v65','v_cvt_pk_bf16_f32 v65, v66, v67','ds_write_b64 v118, v[64:65]','ds_write_b32 v119, v119')
    if WB==1: A('buffer_wbl2 sc1')
    if WB==2: A('buffer_store_dwordx4 v[112:115], v120, s[52:55], s12 offen sc1','s_mov_b32 exec_lo, 0x5555','s_mov_b32 exec_hi, 0x5555','buffer_store_dwordx4 v[100:103], v121, s[52:55], s12 offen offset:64 sc1','s_mov_b64 exec, -1')
    stamp_flush2()
else:
    A(f'ds_write_b32 v107, v107 offset:{PB-OC}')
    stamp_now(6)
A('L_Cnopub:','s_waitcnt lgkmcnt(0)')
stamp(5,'C')
reducer('C')

A('.p2align 6','L_X:')
A('v_and_b32 v9, 31, v0','v_mul_u32_u24 v9, 36, v9','v_lshrrev_b32 v10, 5, v0','v_mul_u32_u24 v10, 1152, v10','v_add_u32 v10, v10, v9')
srd(44,16,2304); srd(48,32,1152)
tag_ready()
A(*BB)
for k in range(3): A(f'buffer_load_dwordx3 v[{64+4*k}:{66+4*k}], v10, s[44:47], 0 offen offset:{12*k}')
for k in range(3): A(f'buffer_load_dwordx3 v[{80+4*k}:{82+4*k}], v9, s[48:51], 0 offen offset:{12*k}')
if PTO:
    A('v_mov_b32 v4, 0','s_mov_b64 exec, 1')
    if PTO&1:
        srd(56,34,2304); A('buffer_load_dword v102, v4, s[56:59], 0 offen')
    if PTO&2:
        A('s_mul_i32 s8, s2, 4608',f's_add_u32 s8, s8, {hex(FP)}','buffer_load_dword v103, v4, s[52:55], s8 offen')
    if PTO&4:
        A('s_lshl_b32 s12, s5, 4','s_add_u32 s12, s12, s4','s_lshl_b32 s12, s12, 21','s_add_u32 s12, s12, 0x180000')
        srd(56,20,0x4000000); A('buffer_load_dword v104, v4, s[56:59], s12 offen')
        A('s_lshl_b32 s12, s4, 4','s_add_u32 s12, s12, s7',f's_mul_i32 s12, s12, {16*1152}')
        srd(56,24,4096*1152); A('buffer_load_dword v105, v4, s[56:59], s12 offen')
        A(f's_mul_i32 s12, s2, {18*1152}')
        srd(56,30,4608*1152); A('buffer_load_dword v106, v4, s[56:59], s12 offen')
    A('s_mov_b64 exec, -1')
A('v_mov_b32 v100, 0','s_waitcnt vmcnt(0)')
for k in range(3):
    for i in range(3):
        x=64+4*k+i; w=80+4*k+i
        A(f'v_lshlrev_b32 v96, 16, v{x}',f'v_lshlrev_b32 v97, 16, v{w}',f'v_and_b32 v98, 0xffff0000, v{x}',f'v_and_b32 v99, 0xffff0000, v{w}')
        A('v_mul_f32 v96, v96, v97','v_mul_f32 v98, v98, v99','v_cvt_pk_bf16_f32 v96, v96, v98','v_lshlrev_b32 v97, 16, v96','v_and_b32 v98, 0xffff0000, v96')
        A('v_add_f32 v100, v100, v97','v_add_f32 v100, v100, v98')
allreduce('v_add_f32',[100],['x1','x2','hm','m','r16'],tmp=101)
A('v_cvt_pk_bf16_f32 v100, v100, v100','v_and_b32 v100, 0xffff0000, v100',f'v_mul_f32 v100, {hex(f2u(-1.4426950408889634))}, v100')
A('v_exp_f32 v100, v100','s_nop 0','v_add_f32 v100, 1.0, v100','v_rcp_f32 v100, v100','s_nop 0')
A('v_cvt_pk_bf16_f32 v100, v100, v100','v_and_b32 v100, 0xffff0000, v100')
A('v_sub_f32 v101, 1.0, v100','v_cvt_pk_bf16_f32 v101, v101, v101','v_and_b32 v101, 0xffff0000, v101')
A('v_lshrrev_b32 v9, 5, v0','v_lshlrev_b32 v9, 3, v9',f'v_add_u32 v9, {hex(GL)}, v9','ds_write_b64 v9, v[100:101]')
A('v_mov_b32 v9, 1',f'v_mov_b32 v10, {hex(GF)}','ds_write_b32 v10, v9')
reducer('X')

A('.p2align 6','L_W:')
A('s_sub_u32 s15, s3, 8')
A('v_lshlrev_b32 v3, 4, v1',f'v_mov_b32 v9, {hex(OOB)}','s_cmp_eq_u32 s15, 4','s_cselect_b32 s60, 0xff00ff00, 0','s_mov_b32 s61, s60')
A('v_cndmask_b32 v3, v3, v9, s[60:61]')
A(f'v_mul_u32_u24 v4, {4*1152}, v2','v_add_u32 v4, v4, v3')
A('v_mul_u32_u24 v5, 1152, v2','v_add_u32 v5, v5, v3','s_mov_b32 s62, 0','s_mov_b32 s63, -1','v_cndmask_b32 v5, v5, v9, s[62:63]')
A('s_lshl_b32 s8, s15, 8',f's_mul_i32 s10, s2, {18*1152}','s_add_u32 s10, s10, s8',f's_add_u32 s13, s10, {16*1152}')
A('s_lshl_b32 s12, s4, 4','s_add_u32 s12, s12, s7',f's_mul_i32 s12, s12, {16*1152}','s_add_u32 s12, s12, s8')
A('v_lshrrev_b32 v120, 5, v0','v_lshlrev_b32 v121, 3, v120',f'v_add_u32 v121, {hex(GL)}, v121')
A('v_mul_u32_u24 v120, 576, v120','v_lshl_add_u32 v120, v1, 3, v120','v_and_b32 v122, 1, v2','v_lshl_add_u32 v120, v122, 2, v120')
A('s_lshl_b32 s8, s15, 7','v_add_u32 v120, s8, v120')
if FLAY=='t': A('v_and_b32 v122, 15, v120','v_lshrrev_b32 v120, 4, v120','v_lshlrev_b32 v120, 14, v120','v_lshl_add_u32 v120, v122, 2, v120')
else: A('v_lshlrev_b32 v120, 2, v120')
A('v_cndmask_b32 v120, v120, v9, s[60:61]')
if PSW: A('s_and_b32 s14, s2, 7','s_lshl_b32 s14, s14, 5','s_lshr_b32 s8, s2, 3','s_add_u32 s14, s14, s8','s_lshl_b32 s14, s14, 6')
else: A('s_lshl_b32 s14, s2, 6')
if FLAY=='c': A('s_mul_i32 s14, s14, 72')
A(f's_add_u32 s14, s14, {hex(FP)}')
A('v_lshlrev_b32 v122, 4, v0',f'v_add_u32 v122, {hex(YH)}, v122','v_lshlrev_b32 v123, 3, v0',f'v_add_u32 v123, {hex(YO)}, v123')
srd(44,24,4096*1152); srd(48,30,4608*1152)
tag_ready()
A(*BB)
selectors(8,104)
thr=sum(t<<(6*i) for i,t in enumerate(THR))
A(f's_mov_b32 s8, {hex(thr)}','s_mul_i32 s9, s15, 6','s_lshr_b32 s8, s8, s9','s_and_b32 s64, s8, 63')
if PT:
    lds_spin(LD,8,104,'pt',sleep=4)
    A('buffer_load_dwordx4 v[76:79], v120, s[52:55], s14 offen')
lds_spin(GF,1,104,'gl',sleep=4)
A('ds_read_b64 v[72:73], v121')
lds_spin(LD,'s64',104,'wg',sleep=WGS)
if WPB<5:
    A(f's_cmp_lt_u32 s15, {WPB}','s_cbranch_scc1 L_Wnopb')
    if SPF:
        A('s_add_u32 s56, s30, s10','s_addc_u32 s57, s31, 0','s_add_u32 s58, s24, s12','s_addc_u32 s59, s25, 0')
        k=0
        for half in range(2):
            if half==1: A('s_cmp_eq_u32 s15, 4','s_cbranch_scc1 L_Wpfd')
            for r in range(18):
                for o in range(0,128,SPG): A(f's_load_dword s{66+(k&7)}, s[56:57], {r*1152+half*128+o}'); k+=1
            for r in range(16):
                for o in range(0,128,SPG): A(f's_load_dword s{66+(k&7)}, s[58:59], {r*1152+half*128+o}'); k+=1
        A('L_Wpfd:')
    lds_spin(QI if WQI else PB,1,104,'wpb',sleep=0)
    A('L_Wnopb:')
A('s_setprio 1')
for t in range(4): A(f'buffer_load_dwordx4 v[{16+4*t}:{19+4*t}], v4, s[48:51], s10 offen offset:{t*1152}{PW}')
A(f'buffer_load_dwordx4 v[32:35], v5, s[48:51], s13 offen{PW}')
for t in range(4): A(f'buffer_load_dwordx4 v[{36+4*t}:{39+4*t}], v4, s[44:47], s12 offen offset:{t*1152}{PW}')
stamp(15,'W')
if FINE==6: stamp(8,'W')
lds_spin(YHF,1,104,'yh',sleep=1)
A('ds_read_b128 v[64:67], v122','s_waitcnt lgkmcnt(0)')
for t in range(5):
    a=104+4*(t&1)
    buildA(a, 64+t//2, t&1)
    A(f's_waitcnt vmcnt({8-t})','s_nop 0')
    mfma(116,a,16+4*t,t==0)
A('s_nop 7')
if WDK: A('v_mov_b32 v104, 1',f'v_mov_b32 v105, {hex(WD)}','s_mov_b64 exec, 1','ds_add_u32 v105, v104','s_mov_b64 exec, -1')
for r in range(4): A(f'v_mul_f32 v{116+r}, v73, v{116+r}')
A('s_setprio 3')
if FINE in (2,4):
    A('s_waitcnt vmcnt(0)'); stamp(8,'W')
lds_spin(YOF,1,104,'yo',sleep=0)
A('ds_read_b64 v[64:65], v123','s_waitcnt lgkmcnt(0)')
for t in range(4):
    buildA(80+4*t, 64+t//2, t&1)
    if t>0:
        A(f's_waitcnt vmcnt({4-t})')
        mfma(112,80+4*(t-1),36+4*(t-1),t==1)
A('s_waitcnt vmcnt(0)')
mfma(112,92,48,False)
A('s_nop 7')
for r in range(4): A(f'v_fma_f32 v{112+r}, v72, v{112+r}, v{116+r}')
for r in range(4): A(f'v_bfi_b32 v{112+r}, s41, v7, v{112+r}')
A('buffer_store_dwordx4 v[112:115], v120, s[52:55], s14 offen sc1')
stamp(9,'W')
red_id()
A(f's_cmp_ge_u32 s14, {NRED}','s_cbranch_scc1 L_Wend')
if ACK: A('s_waitcnt vmcnt(0)')
A('s_barrier','L_Wend:')
flush_stamps('W')
A('L_end:','s_endpgm','L_code_end:')
A('.section .rodata,"a"','.p2align 6',f'.amdhsa_kernel {KNAME}')
A('  .amdhsa_next_free_vgpr 128','  .amdhsa_next_free_sgpr 102','  .amdhsa_accum_offset 128')
A('  .amdhsa_group_segment_fixed_size 0','  .amdhsa_kernarg_size 96','  .amdhsa_user_sgpr_count 2','  .amdhsa_user_sgpr_kernarg_segment_ptr 1','  .amdhsa_system_sgpr_workgroup_id_x 1')
A('  .amdhsa_float_denorm_mode_32 3','.end_amdhsa_kernel')
import subprocess, re, os
def emit(nl):
    t='\n'.join(L)+'\n'
    return t.replace('PFSTEP',hex(0x100+0) if nl is None else f'{(nl+31)//32:#x}').replace('NLINES',hex(0x100) if nl is None else f'{nl:#x}')
def size_of(txt):
    open(out+'.tmp.s','w').write(txt)
    subprocess.run(['clang','-x','assembler','-target','amdgcn-amd-amdhsa','-mcpu=gfx950','-c',out+'.tmp.s','-o',out+'.tmp.o'],check=True)
    o=subprocess.run(['llvm-readelf','-S',out+'.tmp.o'],capture_output=True,text=True).stdout
    os.remove(out+'.tmp.s'); os.remove(out+'.tmp.o')
    m=re.search(r'\.text\s+PROGBITS\s+\w+\s+\w+\s+(\w+)',o)
    return int(m.group(1),16)
sz=size_of(emit(None)); nl=sz//128
txt=emit(nl); sz2=size_of(txt)
while nl*128>sz2:
    nl-=1; txt=emit(nl); sz2=size_of(txt)
open(out,'w').write(txt)
print('code bytes',sz2,end=' ')
print('lines',len(L),'lds',LDS,'ws end',hex(WS_END))
```
